```python
import torch

def _softmax(x, axis=-1):
    return torch.softmax(x, dim=axis)
def _gelu(x):
    return torch.nn.functional.gelu(x, approximate="tanh")
def _silu(x):
    return torch.nn.functional.silu(x)
def _sigmoid(x):
    return torch.sigmoid(x)
def _layernorm(x, axis=-1, eps=1e-5):
    m = x.mean(dim=axis, keepdim=True)
    v = x.var(dim=axis, keepdim=True, unbiased=False)
    return (x - m) / torch.sqrt(v + eps)
def _scatter_add(tgt, idx, src, axis=0):
    return tgt.clone().index_add_(axis, idx, src)
def _segment_sum(src, seg, n):
    out = torch.zeros((n,) + src.shape[1:], dtype=src.dtype)
    return out.index_add_(0, seg, src)
def _pad(x, pw):
    flat = tuple(v for pair in reversed(pw) for v in pair)
    return torch.nn.functional.pad(x, flat)

kernel_name = 'interleave_layers__sliding_block__glu_gated_bilinear__prompt'

def setup_inputs():

    _w = (lambda a: (lambda t: t.to(torch.bfloat16) if t.is_floating_point() else t)(torch.as_tensor(a)))
    def _A_setup():
        B, S, D = 1, 2048, 640
        return {
            "x": _w((lambda *s: torch.randn(*s, dtype=torch.bfloat16) * 0.05)(B, S, D)),
            "wqkv": _w((lambda *s: torch.randn(*s, dtype=torch.bfloat16) * 0.05)(D, 3 * D)),
            "wo": _w((lambda *s: torch.randn(*s, dtype=torch.bfloat16) * 0.05)(D, D)),
        }
    _A_in = _A_setup()

    def _B_setup():
        B, S, D, F = 1, 2048, 640, 1536
        return {
            "x": _w((lambda *s: torch.randn(*s, dtype=torch.bfloat16) * 0.05)(B, S, D)),
            "w_gate": _w((lambda *s: torch.randn(*s, dtype=torch.bfloat16) * 0.8)(D, F) * (D ** -0.5)),
            "w_up": _w((lambda *s: torch.randn(*s, dtype=torch.bfloat16) * 0.8)(D, F) * (D ** -0.5)),
            "w_down": _w((lambda *s: torch.randn(*s, dtype=torch.bfloat16) * 0.8)(F, D) * (F ** -0.5)),
        }
    _B_in = _B_setup()

    return {
        "A_x": _A_in["x"],
        "A_wqkv": _A_in["wqkv"],
        "A_wo": _A_in["wo"],
        "B_x": _B_in["x"],
        "B_w_gate": _B_in["w_gate"],
        "B_w_up": _B_in["w_up"],
        "B_w_down": _B_in["w_down"],
    }

def reference(A_x, A_wqkv, A_wo, B_x, B_w_gate, B_w_up, B_w_down):
    def _A_ref(x, wqkv, wo):
        B, S, D = x.shape
        H = 32; Dh = D // H; W = 256
        qkv = (lambda x, *d: x.permute(*d))((x @ wqkv).reshape(B, S, 3, H, Dh), 2, 0, 3, 1, 4)
        q, k, v = qkv[0], qkv[1], qkv[2]
        scores = torch.einsum("bhqd,bhkd->bhqk", q, k) * (Dh ** -0.5)
        idx = torch.arange(S)
        mask = (idx[:, None] - idx[None, :] >= 0) & (idx[:, None] - idx[None, :] < W)
        scores = torch.where(mask[None, None], scores, -1e9)
        p = _softmax(scores, axis=-1)
        o = torch.einsum("bhqk,bhkd->bhqd", p, v)
        return (lambda x, *d: x.permute(*d))(o, 0, 2, 1, 3).reshape(B, S, D) @ wo

    def _B_ref(x, w_gate, w_up, w_down):
        g = torch.einsum("bsd,df->bsf", x, w_gate)
        u = torch.einsum("bsd,df->bsf", x, w_up)
        h = g * u
        return torch.einsum("bsf,fd->bsd", h, w_down)

    x = A_x
    x = x + _A_ref(_layernorm(x, axis=-1), A_wqkv, A_wo)
    x = x + _B_ref(_layernorm(x, axis=-1), B_w_gate, B_w_up, B_w_down)
    x = x + _A_ref(_layernorm(x, axis=-1), A_wqkv, A_wo)
    x = x + _B_ref(_layernorm(x, axis=-1), B_w_gate, B_w_up, B_w_down)
    return x
```

```python
KNAME = "interleave_layers__sliding_block__glu_gated_bilinear__prompt_kernel"

HEADER = """; Kernarg layout for this problem (80 bytes, ptrs only, base s[0:1]):
"""

class Asm:
    def __init__(self):
        self.lines = []
        self.launches = []
        self.kernels = []
        self._lbl = 0

    def e(self, s):
        for ln in s.strip('\n').split('\n'):
            self.lines.append('  ' + ln.strip())

    def c(self, s):
        self.lines.append('  ; ' + s)

    def label(self, name):
        self.lines.append(name + ':')

    def newlabel(self, prefix='L'):
        self._lbl += 1
        return f'{prefix}_{self._lbl}'

    def begin_kernel(self, name):
        self.lines.append(f'.globl {name}')
        self.lines.append('.p2align 8')
        self.lines.append(f'.type {name},@function')
        self.lines.append(f'{name}:')

    def end_kernel(self, name, vgpr, sgpr=102, accum=None):
        if accum is None:
            accum = min(256, (vgpr + 3) // 4 * 4)
        self.kernels.append((name, vgpr, sgpr, accum))

    def launch(self, name, grid, block, lds):
        self.launches.append((name, grid, block, lds))

    def text(self, single=False):
        out = [HEADER.rstrip('\n')]
        if single:
            name, g, b, lds = self.launches[0]
            out.append(f'; @launch grid=({g[0]},{g[1]},{g[2]}) block=({b[0]},{b[1]},{b[2]}) lds={lds}')
        else:
            for name, g, b, lds in self.launches:
                out.append(f'; @launch kernel={name} grid=({g[0]},{g[1]},{g[2]}) block=({b[0]},{b[1]},{b[2]}) lds={lds}')
        out.append('.amdgcn_target "amdgcn-amd-amdhsa--gfx950"')
        out.append('.text')
        out += self.lines
        out.append('.section .rodata,"a"')
        for name, vgpr, sgpr, accum in self.kernels:
            out.append('.p2align 6')
            out.append(f'.amdhsa_kernel {name}')
            out.append(f'  .amdhsa_next_free_vgpr {vgpr}')
            out.append(f'  .amdhsa_next_free_sgpr {sgpr}')
            out.append(f'  .amdhsa_accum_offset {accum}')
            out.append('  .amdhsa_group_segment_fixed_size 0')
            out.append('  .amdhsa_kernarg_size 80')
            out.append('  .amdhsa_user_sgpr_count 2')
            out.append('  .amdhsa_user_sgpr_kernarg_segment_ptr 1')
            out.append('  .amdhsa_system_sgpr_workgroup_id_x 1')
            out.append('.end_amdhsa_kernel')
        return '\n'.join(out) + '\n'
```

```python
import sys
sys.path.insert(0, 'gen')
from asmlib import *

FLAGS = 0
WO_P = 0x10000
WGU_P = WO_P + 819200
WD_P = WGU_P + 3932160
LB0 = 8 << 20
LSTRIDE = 24 << 20
oQ, oK, oV, oO, oX1, oH, oX2 = 0, 2621440, 5242880, 7864320, 10485760, 13107200, 19398656
WS_BYTES = 268435456

MISC = 0
WPOOL, WPOOL_SZ = 4096, 98304
XPOOL, XPOOL_SZ = 102400, 61440
M_ROWM = MISC
M_ROWR = MISC + 512
M_CS = MISC + 1024
LDS_TOTAL = 163840

LOG2E = 1.4426950408889634
QSCALE = LOG2E / (20 ** 0.5)

import struct
def f32(x):
    return '0x%08x' % struct.unpack('<I', struct.pack('<f', x))[0]

S = dict(
    wg=2, wave=3,
    XIN=8, WQKV=12, WS=16, OUT=20, XCUR=24,
    r=28, j=29, layer=30, tag=31, lb=32,
    lw=33,
    t0=34, t1=35, t2=36, t3=37, t4=38, t5=39,
    wsrc=40, xsrc=41, wlds=42, xlds=43, xstride=44,
    woff=45, xoff=46, cnt=47,
    flagme=48, flagcl=49,
    wsrc_n=50, wlds_n=51,
    rb64=52, cb=53,
    ex0=54,
    m0a=56,
    m1a=58,
    c0=60, c1=61, c2=62, c3=63,
)
def s(n, k=1):
    b = S[n]
    return f's{b}' if k == 1 else f's[{b}:{b+k-1}]'

class Gen(Asm):
    def nop(self, n):
        while n > 0:
            k = min(n, 16)
            self.e(f's_nop {k-1}')
            n -= k

def vr(b, n=1):
    return f'v{b}' if n == 1 else f'v[{b}:{b+n-1}]'

def gen_prep(a):
    name = 'prep_kernel'
    a.begin_kernel(name)
    NU = 1640
    a.e(f"""
    s_cmp_ge_u32 s2, {NU}
    s_cbranch_scc1 LP_done
    s_load_dwordx2 s[4:5], s[0:1], 16      ; wo
    s_load_dwordx4 s[8:11], s[0:1], 32
    s_load_dwordx2 s[6:7], s[0:1], 48      ; wd
    s_load_dwordx2 s[36:37], s[0:1], 72    ; ws
    v_lshrrev_b32 v1, 6, v0
    s_nop 0
    v_readfirstlane_b32 s3, v1
    v_and_b32 v0, 63, v0
    s_waitcnt lgkmcnt(0)
    s_mov_b32 s16, s36
    s_mov_b32 s17, s37
    s_mov_b32 s18, {WS_BYTES}
    s_mov_b32 s19, 0x20000
    s_cmp_lt_u32 s2, 80
    s_cbranch_scc0 LP_noz
    s_cmp_eq_u32 s3, 0
    s_cbranch_scc0 LP_noz
    v_lshlrev_b32 v2, 2, v0
    s_lshl_b32 s20, s2, 8
    v_mov_b32 v3, 0
    buffer_store_dword v3, v2, s[16:19], s20 offen
    LP_noz:
    s_cmp_lt_u32 s2, 480
    s_cbranch_scc1 LP_wg
    s_cmp_lt_u32 s2, 960
    s_cbranch_scc1 LP_wu
    s_cmp_lt_u32 s2, 1440
    s_cbranch_scc1 LP_wd
    """)
    a.e(f"""
    s_sub_u32 s24, s2, 1440
    s_mul_i32 s22, s24, 6554
    s_lshr_b32 s22, s22, 16          ; /10
    s_mul_i32 s25, s22, 10
    s_sub_u32 s23, s24, s25
    s_mov_b32 s12, s4
    s_mov_b32 s13, s5
    s_mov_b32 s14, 819200
    s_mov_b32 s21, 1280
    s_mov_b32 s26, 1
    s_mov_b32 s27, {WO_P}
    s_mov_b32 s28, {20*5*1024}
    s_branch LP_go5
    LP_wd:
    s_sub_u32 s24, s2, 960
    s_mul_i32 s22, s24, 6554
    s_lshr_b32 s22, s22, 16
    s_mul_i32 s25, s22, 10
    s_sub_u32 s23, s24, s25
    s_mov_b32 s12, s6
    s_mov_b32 s13, s7
    s_mov_b32 s14, 1966080
    s_mov_b32 s21, 1280
    s_mov_b32 s26, 0
    s_mov_b32 s27, {WD_P}
    s_mov_b32 s28, {48*5*1024}
    LP_go5:
    ; col tile ct = 4*cg + wave ; cb = ct/5 ; q = ct%5 ; dest = base + cb*bytes + s*5120 + q*1024
    s_lshl_b32 s29, s23, 2
    s_add_u32 s29, s29, s3
    s_mul_i32 s30, s29, 13108
    s_lshr_b32 s30, s30, 16          ; /5
    s_mul_i32 s31, s30, 5
    s_sub_u32 s31, s29, s31
    s_mul_i32 s30, s30, s28
    s_add_u32 s27, s27, s30
    s_mul_i32 s30, s22, 5120
    s_add_u32 s27, s27, s30
    s_lshl_b32 s31, s31, 10
    s_add_u32 s27, s27, s31
    s_branch LP_load
    LP_wg:
    s_mov_b32 s24, s2
    s_mov_b32 s12, s8
    s_mov_b32 s13, s9
    s_mov_b32 s32, 0
    s_branch LP_gu
    LP_wu:
    s_sub_u32 s24, s2, 480
    s_mov_b32 s12, s10
    s_mov_b32 s13, s11
    s_mov_b32 s32, 6144
    LP_gu:
    s_mov_b32 s14, 1966080
    s_mov_b32 s21, 3072
    s_mov_b32 s26, 0
    s_mul_i32 s22, s24, 2731
    s_lshr_b32 s22, s22, 16          ; /24
    s_mul_i32 s25, s22, 24
    s_sub_u32 s23, s24, s25
    ; ft = 4*cg + wave ; fb = ft/6 ; q = ft%6 ; dest = WGU_P + fb*245760 + s*12288 + isU*6144 + q*1024
    s_lshl_b32 s29, s23, 2
    s_add_u32 s29, s29, s3
    s_mul_i32 s30, s29, 10923
    s_lshr_b32 s30, s30, 16          ; /6
    s_mul_i32 s31, s30, 6
    s_sub_u32 s31, s29, s31
    s_mul_i32 s27, s30, 245760
    s_add_u32 s27, s27, {WGU_P}
    s_mul_i32 s30, s22, 12288
    s_add_u32 s27, s27, s30
    s_add_u32 s27, s27, s32
    s_lshl_b32 s31, s31, 10
    s_add_u32 s27, s27, s31
    LP_load:
    s_mov_b32 s15, 0x20000
    v_lshrrev_b32 v2, 3, v0
    s_lshl_b32 s29, s3, 3
    v_add_u32 v2, s29, v2
    s_lshl_b32 s29, s22, 5
    v_add_u32 v2, s29, v2            ; k' global
    """)
    a.e(f"""
    s_cmp_eq_u32 s26, 1
    s_cbranch_scc0 LP_noperm
    s_movk_i32 s29, 1639
    v_mul_u32_u24 v3, s29, v2
    v_lshrrev_b32 v3, 16, v3         ; jp = k'/40
    v_mul_u32_u24 v4, 40, v3
    v_sub_u32 v5, v2, v4             ; c
    v_mov_b32 v6, v5                 ; r = c
    v_add_u32 v7, 4, v5              ; c+4 for 16<=c<32
    v_cmp_le_u32 vcc, 16, v5
    s_nop 1
    v_cndmask_b32 v6, v6, v7, vcc
    v_subrev_u32 v7, 16, v5          ; c-16 for 32<=c<36
    v_cmp_le_u32 vcc, 32, v5
    s_nop 1
    v_cndmask_b32 v6, v6, v7, vcc
    v_cmp_le_u32 vcc, 36, v5
    s_nop 1
    v_cndmask_b32 v6, v6, v5, vcc
    v_add_u32 v2, v4, v6
    LP_noperm:
    v_mul_lo_u32 v2, v2, s21
    v_and_b32 v3, 7, v0
    v_lshl_add_u32 v2, v3, 4, v2
    s_lshl_b32 s29, s23, 7
    s_lshl_b32 s30, s3, 10
    s_mov_b32 m0, s30
    s_nop 0
    buffer_load_dwordx4 v2, s[12:15], s29 offen lds
    s_waitcnt vmcnt(0)
    s_barrier
    v_lshrrev_b32 v3, 4, v0
    v_bfe_u32 v4, v0, 2, 2
    v_and_b32 v5, 3, v0
    v_lshl_add_u32 v6, v3, 3, v4
    v_lshlrev_b32 v6, 7, v6
    v_lshl_add_u32 v6, v5, 3, v6
    s_lshl_b32 s30, s3, 5
    v_add_u32 v6, s30, v6
    ds_read_b64_tr_b16 v[8:9], v6
    ds_read_b64_tr_b16 v[10:11], v6 offset:512
    s_waitcnt lgkmcnt(0)
    v_lshlrev_b32 v7, 4, v0
    buffer_store_dwordx4 v[8:11], v7, s[16:19], s27 offen
    s_waitcnt vmcnt(0)
    LP_done:
    s_endpgm
    """)
    a.end_kernel(name, 32, 48)
    a.launch(name, (NU, 1, 1), (256, 1, 1), 4096)

if __name__ == '__main__':
    a = Gen()
    gen_prep(a)
    open('prep.s', 'w').write(a.text())
```

```python
from mk import *

NEG = -1.0e30

class Loader:
    def __init__(self, a):
        self.a = a
        self.q = []
    def issued(self, tag, n=1):
        self.q += [tag] * n
    def wait(self, tags):
        idx = -1
        for i, t in enumerate(self.q):
            if t in tags: idx = i
        if idx < 0: return
        n = len(self.q) - 1 - idx
        assert n <= 63, n
        self.a.e(f's_waitcnt vmcnt({n})')
        self.q = self.q[idx+1:]
    def drained(self):
        self.q = []

def dma_linear(a, L, tag, srd, sbase, goff, ldsbase_s, ldsoff, npieces, voff='v1', flags=''):
    p = 0
    while p < npieces:
        n = min(4, npieces - p)
        a.e(f's_add_u32 m0, {ldsbase_s}, {ldsoff + p*1024}')
        a.e(f's_add_u32 {s("t0")}, {sbase}, {goff + p*1024}')
        for i in range(n):
            o = f' offset:{i*1024}' if i else ''
            a.e(f'buffer_load_dwordx4 {voff}, {srd}, {s("t0")} offen{o} {flags} lds')
        L.issued(tag, n)
        p += n

GE = dict(
    P1=dict(T=10, KS=2, Wb=16384, CW=6, Xb=16384, CX=3),
    P3=dict(T=5, KS=4, Wb=20480, CW=4, Xb=16384, CX=3),
    P4=dict(T=10, KS=2, Wb=24576, CW=4, Xb=16384, CX=3),
    P5=dict(T=12, KS=4, Wb=20480, CW=4, Xb=16384, CX=3),
)

SC1 = 'sc1'

def emit_flag_and_poll(a, L, ph_const, nclusters=1, store=True):
    lab = a.newlabel('Lnf')
    if store:
        a.e(f"""
        s_cmp_lg_u32 {s('lw')}, 0
        s_cbranch_scc1 {lab}
        s_add_u32 {s('t0')}, {s('flagme')}, {ph_const*2048}
        v_mov_b32 v4, {s('t0')}
        v_mov_b32 v5, {s('tag')}
        s_mov_b64 exec, 1
        buffer_store_dword v5, v4, {s('WS',4)}, 0 offen sc1
        s_mov_b64 exec, -1
        {lab}:
        """)

def emit_poll(a, L, ph_const, nclusters=1):
    lp = a.newlabel('Lpoll'); ld = a.newlabel('Lpolled')
    if nclusters == 1:
        a.e(f"""
        s_add_u32 {s('t0')}, {s('flagcl')}, {ph_const*2048}
        v_lshl_add_u32 v4, v0, 2, {s('t0')}
        s_mov_b64 exec, 0xffff
        """)
    else:
        a.e(f"""
        v_add_u32 v5, {s('r')}, v3
        v_subrev_u32 v5, 2, v5
        v_max_i32 v5, 0, v5
        v_lshlrev_b32 v5, 7, v5
        v_lshl_add_u32 v5, v2, 2, v5
        s_mul_i32 {s('t0')}, {s('layer')}, 10240
        s_add_u32 {s('t0')}, {s('t0')}, {FLAGS + ph_const*2048}
        v_add_u32 v4, {s('t0')}, v5
        s_mov_b32 exec_lo, -1
        s_mov_b32 exec_hi, 0xffff
        """)
    a.e(f"""
    {lp}:
    buffer_load_dword v5, v4, {s('WS',4)}, 0 offen sc1
    s_waitcnt vmcnt(0)
    v_cmp_ne_u32 vcc, {s('tag')}, v5
    s_cmp_eq_u64 vcc, 0
    s_cbranch_scc0 {lp}
    s_mov_b64 exec, -1
    """)
    L.drained()

def issue_W(a, L, ph, t):
    c = GE[ph]
    lds = WPOOL + (t % c['CW']) * c['Wb']
    if ph == 'P1':
        a.e(f's_add_u32 m0, {s("wlds_n")}, {lds}')
        a.e(f's_add_u32 {s("t0")}, {s("wsrc_n")}, {t*64*3840}')
        for p in range(4):
            o = f' offset:{p*1024}' if p else ''
            a.e(f'buffer_load_dwordx4 v{8+p}, {s("WQKV",4)}, {s("t0")} offen{o} lds')
        L.issued(('W', ph, t), 4)
    else:
        n = c['Wb'] // 4096
        dma_linear(a, L, ('W', ph, t), s('WS', 4), s('wsrc_n'), t * c['Wb'], s('wlds_n'), lds, n)

def issue_X(a, L, ph, t):
    c = GE[ph]
    lds = XPOOL + (t % c['CX']) * c['Xb']
    if ph == 'P1':
        a.e(f's_add_u32 m0, {s("xlds")}, {lds}')
        a.e(f's_mul_i32 {s("t0")}, {s("xstride")}, {t}')
        a.e(f's_add_u32 {s("t0")}, {s("t0")}, {s("xsrc")}')
        for p in range(4):
            o = f' offset:{p*1024}' if p else ''
            a.e(f'buffer_load_dwordx4 v{12+p}, {s("XCUR",4)}, {s("t0")} offen{o} {SC1} lds')
        L.issued(('X', ph, t), 4)
    else:
        dma_linear(a, L, ('X', ph, t), s('WS', 4), s('xsrc'), t * c['Xb'], s('xlds'), lds, 4, flags=SC1)

def setup_W_next(a, ph):
    c = GE[ph]
    per = c['Wb'] // 4
    a.e(f's_mul_i32 {s("wlds_n")}, {s("lw")}, {per}')
    if ph == 'P1':
        a.e(f"""
        s_min_u32 {s('t1')}, {s('j')}, 14
        s_lshl_b32 {s('t1')}, {s('t1')}, 8
        s_mul_i32 {s('wsrc_n')}, {s('lw')}, {16*3840}
        s_add_u32 {s('wsrc_n')}, {s('wsrc_n')}, {s('t1')}
        """)
        for p in range(4):
            a.e(f"""
            v_or_b32 v4, {((p >> 1) & 1) << 2}, v3
            v_lshlrev_b32 v4, 1, v4
            v_xor_b32 v4, v4, v2
            v_add_u32 v5, {4*p}, v3
            v_mul_u32_u24 v5, 3840, v5
            v_lshl_add_u32 v5, v4, 4, v5
            v_subrev_u32 v{8+p}, {1024*p}, v5
            """)
    elif ph == 'P3':
        a.e(f"""
        s_mul_i32 {s('wsrc_n')}, {s('cb')}, {5*20480}
        s_add_u32 {s('wsrc_n')}, {s('wsrc_n')}, {WO_P}
        s_add_u32 {s('wsrc_n')}, {s('wsrc_n')}, {s('wlds_n')}
        """)
    elif ph == 'P4':
        a.e(f"""
        s_mul_i32 {s('wsrc_n')}, {s('j')}, 245760
        s_add_u32 {s('wsrc_n')}, {s('wsrc_n')}, {WGU_P}
        s_add_u32 {s('wsrc_n')}, {s('wsrc_n')}, {s('wlds_n')}
        """)
    elif ph == 'P5':
        a.e(f"""
        s_mul_i32 {s('wsrc_n')}, {s('cb')}, 245760
        s_add_u32 {s('wsrc_n')}, {s('wsrc_n')}, {WD_P}
        s_add_u32 {s('wsrc_n')}, {s('wsrc_n')}, {s('wlds_n')}
        """)

def setup_X(a, ph):
    a.e(f's_lshl_b32 {s("xlds")}, {s("lw")}, 12')
    if ph == 'P1':
        l1 = a.newlabel('Lx1'); l2 = a.newlabel('Lx2')
        a.e(f"""
        s_cmp_eq_u32 {s('layer')}, 0
        s_cbranch_scc0 {l1}
        s_mov_b32 s{S['XCUR']}, s{S['XIN']}
        s_mov_b32 s{S['XCUR']+1}, s{S['XIN']+1}
        s_mov_b32 s{S['XCUR']+2}, s{S['XIN']+2}
        s_lshl_b32 {s('t1')}, {s('r')}, 2
        s_add_u32 {s('t1')}, {s('t1')}, {s('lw')}
        s_mul_i32 {s('xsrc')}, {s('t1')}, {32*1280}
        s_movk_i32 {s('xstride')}, 128
        """)
        for p in range(4):
            a.e(f"""
            v_add_u32 v4, {4*p}, v3
            v_and_b32 v4, 7, v4
            v_and_b32 v5, 7, v0
            v_xor_b32 v4, v4, v5
            v_lshrrev_b32 v5, 3, v0
            v_add_u32 v5, {8*p}, v5
            v_mul_u32_u24 v5, 1280, v5
            v_lshl_add_u32 v5, v4, 4, v5
            v_subrev_u32 v{12+p}, {1024*p}, v5
            """)
        a.e(f"""
        s_branch {l2}
        {l1}:
        s_mov_b32 s{S['XCUR']}, s{S['WS']}
        s_mov_b32 s{S['XCUR']+1}, s{S['WS']+1}
        s_mov_b32 s{S['XCUR']+2}, s{S['WS']+2}
        s_mul_i32 {s('xsrc')}, {s('r')}, 163840
        s_add_u32 {s('xsrc')}, {s('xsrc')}, {LB0 + oX2}
        s_add_u32 {s('xsrc')}, {s('xsrc')}, {s('xlds')}
        s_movk_i32 {s('xstride')}, 16384
        v_mov_b32 v12, v1
        v_mov_b32 v13, v1
        v_mov_b32 v14, v1
        v_mov_b32 v15, v1
        {l2}:
        """)
    elif ph == 'P3':
        a.e(f"""
        s_mul_i32 {s('xsrc')}, {s('rb64')}, 81920
        s_add_u32 {s('xsrc')}, {s('xsrc')}, {s('lb')}
        s_add_u32 {s('xsrc')}, {s('xsrc')}, {oO}
        s_add_u32 {s('xsrc')}, {s('xsrc')}, {s('xlds')}
        """)
    elif ph == 'P4':
        a.e(f"""
        s_mul_i32 {s('xsrc')}, {s('r')}, 163840
        s_add_u32 {s('xsrc')}, {s('xsrc')}, {s('lb')}
        s_add_u32 {s('xsrc')}, {s('xsrc')}, {oX1}
        s_add_u32 {s('xsrc')}, {s('xsrc')}, {s('xlds')}
        """)
    elif ph == 'P5':
        a.e(f"""
        s_mul_i32 {s('xsrc')}, {s('rb64')}, 196608
        s_add_u32 {s('xsrc')}, {s('xsrc')}, {s('lb')}
        s_add_u32 {s('xsrc')}, {s('xsrc')}, {oH}
        s_add_u32 {s('xsrc')}, {s('xsrc')}, {s('xlds')}
        """)

def emit_xaddr(a, d0, d1, ph, t0='v4', t1='v5'):
    if ph == 'P1':
        l1 = a.newlabel('Lxa1'); l2 = a.newlabel('Lxa2')
        a.e(f"""
        s_cmp_eq_u32 {s('layer')}, 0
        s_cbranch_scc0 {l1}
        v_lshrrev_b32 {t0}, 1, v2
        v_xor_b32 {t0}, {t0}, v3          ; g ^ f(r)
        v_lshlrev_b32 {t1}, 7, v2
        v_lshl_add_u32 {d0}, {t0}, 4, {t1}
        v_xor_b32 {d1}, 64, {d0}
        s_branch {l2}
        {l1}:
        v_mov_b32 {d0}, v1
        v_add_u32 {d1}, 1024, v1
        {l2}:
        """)
    else:
        a.e(f"""
        v_mov_b32 {d0}, v1
        v_add_u32 {d1}, 1024, v1
        """)

def emit_waddr_raw(a, dst, ct_expr_s, t0='v4', t1='v5', t2='v6'):
    a.e(f"""
    v_bfe_u32 {t0}, v0, 2, 2             ; rr
    v_and_b32 {t1}, 1, v3
    v_lshl_or_b32 {t1}, {t1}, 2, {t0}    ; f
    v_xor_b32 {t1}, {ct_expr_s}, {t1}
    v_lshl_add_u32 {t0}, v3, 3, {t0}     ; 8g+rr
    v_lshlrev_b32 {t0}, 8, {t0}
    v_lshl_add_u32 {t0}, {t1}, 5, {t0}
    v_and_b32 {t1}, 3, v0
    v_lshl_add_u32 {dst}, {t1}, 3, {t0}
    """)

def bf16_round(a, v, t):
    a.e(f"""
    v_cvt_pk_bf16_f32 {t}, {v}, {v}
    v_lshlrev_b32 {v}, 16, {t}
    """)

def reduce_g(a, v, t):
    a.e(f"""
    v_mov_b32 {t}, {v}
    s_nop 1
    v_permlane16_swap_b32 {v}, {t}
    s_nop 1
    v_add_f32 {v}, {v}, {t}
    v_mov_b32 {t}, {v}
    s_nop 1
    v_permlane32_swap_b32 {v}, {t}
    s_nop 1
    v_add_f32 {v}, {v}, {t}
    """)

def loader_gemm(a, L, ph, first=False):
    c = GE[ph]
    T, CW, CX = c['T'], c['CW'], c['CX']
    stats = ph in ('P1', 'P4')
    a.c(f'---- loader {ph}')
    if first:
        for t in range(max(CW, CX)):
            if t < CX: issue_X(a, L, ph, t)
            if t < CW: issue_W(a, L, ph, t)
    else:
        for t in range(CX):
            issue_X(a, L, ph, t)
    nct = {'P1': 2, 'P4': 3}.get(ph, 0)
    if stats:
        emit_xaddr(a, 'v16', 'v17', ph)
        a.e(f"""
        s_lshl_b32 {s('t1')}, {s('lw')}, 12
        s_add_u32 {s('t1')}, {s('t1')}, {XPOOL}
        v_add_u32 v16, {s('t1')}, v16
        v_add_u32 v17, {s('t1')}, v17
        """)
        if ph == 'P1':
            for e in range(2):
                a.e(f"""
                s_lshl_b32 {s('t1')}, {s('lw')}, 1
                s_add_u32 {s('t1')}, {s('t1')}, {e}
                """)
                emit_waddr_raw(a, f'v{18+2*e}', s('t1'))
                a.e(f'v_add_u32 v{19+2*e}, 0x10000, v{18+2*e}')
        else:
            a.e(f"""
            s_mul_i32 {s('t1')}, {s('lw')}, 3072
            v_add_u32 v18, {s('t1')}, v1
            v_add_u32 v19, 0x10000, v18
            """)
        for v in range(64, 71):
            a.e(f'v_mov_b32 v{v}, 0')
        a.e(f's_mov_b32 {s("c0")}, 0x3f803f80')
    for t in range(T):
        L.wait({('W', ph, t), ('X', ph, t)})
        a.e('s_barrier')
        if t >= 1:
            if t - 1 + CW < T: issue_W(a, L, ph, t - 1 + CW)
            if t - 1 + CX < T: issue_X(a, L, ph, t - 1 + CX)
        if stats:
            xo = (t % CX) * c['Xb']
            wo = WPOOL + (t % CW) * c['Wb']
            k = 24
            for e in range(2):
                for sx in range(2):
                    a.e(f'ds_read_b128 v[{k}:{k+3}], v{16+sx} offset:{xo + e*2048}')
                    k += 4
            k = 40
            def wrd(basereg, off):
                if off >= 0x10000: return f'v{basereg+1}', off - 0x10000
                return f'v{basereg}', off
            if ph == 'P1':
                for e in range(2):
                    for sx in range(2):
                        for h in range(2):
                            r_, o_ = wrd(18 + 2*e, wo + sx*8192 + h*1024)
                            a.e(f'ds_read_b64_tr_b16 v[{k}:{k+1}], {r_} offset:{o_}')
                            k += 2
            else:
                for e in range(3):
                    for sx in range(2):
                        r_, o_ = wrd(18, wo + (sx*12 + e)*1024)
                        a.e(f'ds_read_b128 v[{k}:{k+3}], {r_} offset:{o_}')
                        k += 4
            nw = 8 if ph == 'P1' else 6
            a.e(f's_waitcnt lgkmcnt({nw})')
            for e in range(2):
                for i in range(8):
                    x = 24 + e*8 + i
                    a.e(f'v_dot2_f32_bf16 v{64+e}, v{x}, {s("c0")}, v{64+e}')
                    a.e(f'v_dot2_f32_bf16 v{66+e}, v{x}, v{x}, v{66+e}')
            a.e('s_waitcnt lgkmcnt(0)')
            for e in range(nct):
                for i in range(8):
                    x = 40 + e*8 + i
                    a.e(f'v_dot2_f32_bf16 v{68+e}, v{x}, {s("c0")}, v{68+e}')
    if stats:
        a.e('s_nop 3')
        for v in range(64, 68 + nct):
            reduce_g(a, f'v{v}', 'v4')
        a.e(f's_mov_b32 {s("c1")}, {f32(1.0/640.0)}')
        a.e(f's_mov_b32 {s("c2")}, {f32(1e-5)}')
        for e in range(2):
            sm, sq = f'v{64+e}', f'v{66+e}'
            a.e(f"""
            v_mul_f32 {sm}, {s('c1')}, {sm}            ; mean
            v_mul_f32 {sq}, {s('c1')}, {sq}            ; E[x^2]
            v_fma_f32 {sq}, -{sm}, {sm}, {sq}          ; var
            v_max_f32 {sq}, 0, {sq}
            """)
            bf16_round(a, sm, 'v4')
            bf16_round(a, sq, 'v4')
            a.e(f'v_add_f32 {sq}, {s("c2")}, {sq}')
            bf16_round(a, sq, 'v4')
            a.e(f'v_sqrt_f32 {sq}, {sq}\ns_nop 0')
            bf16_round(a, sq, 'v4')
            a.e(f'v_rcp_f32 {sq}, {sq}\ns_nop 0')
        a.e(f"""
        s_lshl_b32 {s('t1')}, {s('lw')}, 7
        v_lshl_add_u32 v4, v2, 2, {s('t1')}
        s_mul_i32 {s('t1')}, {s('lw')}, {nct*64}
        v_lshl_add_u32 v5, v2, 2, {s('t1')}
        s_mov_b64 exec, 0xffff
        ds_write_b32 v4, v64 offset:{M_ROWM}
        ds_write_b32 v4, v65 offset:{M_ROWM+64}
        ds_write_b32 v4, v66 offset:{M_ROWR}
        ds_write_b32 v4, v67 offset:{M_ROWR+64}
        """)
        for e in range(nct):
            a.e(f'ds_write_b32 v5, v{68+e} offset:{M_CS + e*64}')
        a.e('s_mov_b64 exec, -1')
    a.e('s_waitcnt lgkmcnt(0)')
    a.e('s_barrier')

ACC = 24
RESID = 246
def compute_gemm(a, ph):
    c = GE[ph]
    T, KS, CW, CX, Wb, Xb = c['T'], c['KS'], c['CW'], c['CX'], c['Wb'], c['Xb']
    a.c(f'---- compute {ph}')
    if ph == 'P1':
        ntt, nct = 4, 4
        nxa, nwa = 2, 4
    elif ph == 'P4':
        ntt, nct = 4, 6
        nxa, nwa = 2, 1
    else:
        ntt, nct = 1, 5
        nxa, nwa = 1, 1
    nacc = ntt * nct * 4
    FR = ACC + nacc
    fsz = (ntt + nct) * 4
    def xf(st, tt): return FR + st*fsz + tt*4
    def wf(st, q): return FR + st*fsz + ntt*4 + q*4
    def acc(tt, q): return ACC + (tt*nct + q)*4
    XB, WB = 16, 18
    XC, WC = 8, 10
    if ph in ('P1', 'P4'):
        emit_xaddr(a, 'v16', 'v17', ph)
        a.e(f"""
        s_and_b32 {s('t1')}, {s('lw')}, 1
        s_lshl_b32 {s('t1')}, {s('t1')}, 13
        v_add_u32 v16, {s('t1')}, v16
        v_add_u32 v17, {s('t1')}, v17
        """)
        if ph == 'P1':
            for q in range(4):
                a.e(f"""
                s_lshr_b32 {s('t1')}, {s('lw')}, 1
                s_lshl_b32 {s('t1')}, {s('t1')}, 2
                s_add_u32 {s('t1')}, {s('t1')}, {q}
                """)
                emit_waddr_raw(a, f'v{WB+q}', s('t1'))
        else:
            a.e(f"""
            s_lshr_b32 {s('t1')}, {s('lw')}, 1
            s_mul_i32 {s('t1')}, {s('t1')}, 3072
            v_add_u32 v{WB}, {s('t1')}, v1
            """)
    else:
        a.e(f"""
        s_lshl_b32 {s('t1')}, {s('lw')}, 10
        v_add_u32 v16, {s('t1')}, v1
        v_mov_b32 v{WB}, v1
        """)
    for i in range(nacc):
        a.e(f'v_mov_b32 v{ACC+i}, 0')
    a.e(f's_mov_b32 {s("xoff")}, {XPOOL}')
    a.e(f's_mov_b32 {s("woff")}, {WPOOL}')
    def set_cur():
        for i in range(nxa):
            a.e(f'v_add_u32 v{XC+i}, {s("xoff")}, v{XB+i}')
        for i in range(nwa):
            a.e(f'v_add_u32 v{WC+i}, {s("woff")}, v{WB+i}')
    def advance():
        a.e(f"""
        s_add_u32 {s('xoff')}, {s('xoff')}, {Xb}
        s_cmp_lt_u32 {s('xoff')}, {XPOOL + CX*Xb}
        s_cselect_b32 {s('xoff')}, {s('xoff')}, {XPOOL}
        s_add_u32 {s('woff')}, {s('woff')}, {Wb}
        s_cmp_lt_u32 {s('woff')}, {WPOOL + CW*Wb}
        s_cselect_b32 {s('woff')}, {s('woff')}, {WPOOL}
        """)
        set_cur()
    def reads(st, sx):
        r = []
        xs, ws = [], []
        if ph == 'P1':
            for tt in range(4):
                xs.append(f'ds_read_b128 {vr(xf(st,tt),4)}, v{XC+sx} offset:{tt*2048}')
            for q in range(4):
                for h in range(2):
                    ws.append(f'ds_read_b64_tr_b16 {vr(wf(st,q)+2*h,2)}, v{WC+q} offset:{sx*8192 + h*1024}')
        elif ph == 'P4':
            for tt in range(4):
                xs.append(f'ds_read_b128 {vr(xf(st,tt),4)}, v{XC+sx} offset:{tt*2048}')
            for q in range(6):
                ct = q if q < 3 else 6 + (q - 3)
                ws.append(f'ds_read_b128 {vr(wf(st,q),4)}, v{WC} offset:{(sx*12 + ct)*1024}')
        else:
            xs.append(f'ds_read_b128 {vr(xf(st,0),4)}, v{XC} offset:{sx*4096}')
            for q in range(5):
                ws.append(f'ds_read_b128 {vr(wf(st,q),4)}, v{WC} offset:{(sx*5 + q)*1024}')
        return xs + ws
    def mfmas(st):
        m = []
        for tt in range(ntt):
            for q in range(nct):
                A, B = (xf(st,tt), wf(st,q)) if ph == 'P1' else (wf(st,q), xf(st,tt))
                m.append(f'v_mfma_f32_16x16x32_bf16 {vr(acc(tt,q),4)}, {vr(A,4)}, {vr(B,4)}, {vr(acc(tt,q),4)}')
        return m
    def interleave(ms, rs, start=0):
        i = 0
        per = max(1, -(-len(rs) // max(1, (len(ms) - start) * 2 // 3)))
        for k, m in enumerate(ms):
            a.e(m)
            if k >= start:
                for _ in range(per):
                    if i < len(rs):
                        a.e(rs[i]); i += 1
        while i < len(rs):
            a.e(rs[i]); i += 1
    def stage_body(last):
        for sx in range(KS):
            st = sx & 1
            a.e('s_waitcnt lgkmcnt(0)')
            ms = mfmas(st)
            if sx < KS - 1:
                interleave(ms, reads(st ^ 1, sx + 1))
            elif not last:
                advance()
                nb = min(2, len(ms) - 1)
                for m in ms[:nb]: a.e(m)
                a.e('s_barrier')
                interleave(ms[nb:], reads(0, 0))
            else:
                for m in ms: a.e(m)
    set_cur()
    a.e('s_barrier')
    for r_ in reads(0, 0): a.e(r_)
    lp = a.newlabel('Lg')
    a.e(f's_mov_b32 {s("cnt")}, {T-1}')
    a.label(lp)
    stage_body(False)
    a.e(f"""
    s_sub_u32 {s('cnt')}, {s('cnt')}, 1
    s_cmp_lg_u32 {s('cnt')}, 0
    s_cbranch_scc1 {lp}
    """)
    stage_body(True)
    a.e('s_barrier')
    a.nop(10)
    return dict(acc=acc, FR=FR)

def epilogue_P1(a, m):
    acc, FR = m['acc'], m['FR']
    a.c('---- epilogue P1')
    M4, R4, CSr = FR, FR + 16, FR + 32
    a.e(f"""
    s_and_b32 {s('t1')}, {s('lw')}, 1        ; wm
    s_lshr_b32 {s('t2')}, {s('lw')}, 1       ; wn
    s_lshl_b32 {s('t3')}, {s('t1')}, 8       ; wm*256
    v_lshl_add_u32 v4, v3, 4, {s('t3')}      ; + g*16
    s_lshl_b32 {s('t3')}, {s('t2')}, 8
    v_lshl_add_u32 v5, v2, 2, {s('t3')}      ; wn*256 + j*4
    """)
    for tt in range(4):
        a.e(f'ds_read_b128 {vr(M4+tt*4,4)}, v4 offset:{M_ROWM + tt*64}')
        a.e(f'ds_read_b128 {vr(R4+tt*4,4)}, v4 offset:{M_ROWR + tt*64}')
    for q in range(4):
        a.e(f'ds_read_b32 v{CSr+q}, v5 offset:{M_CS + q*64}')
    a.e(f"""
    s_min_u32 {s('t3')}, {s('j')}, 14
    s_mul_i32 {s('t4')}, {s('t3')}, 13108
    s_lshr_b32 {s('t4')}, {s('t4')}, 16          ; typ
    s_mul_i32 {s('t5')}, {s('t4')}, 5
    s_sub_u32 {s('t3')}, {s('t3')}, {s('t5')}    ; cbt
    s_mov_b32 {s('c0')}, 1.0
    s_cmp_eq_u32 {s('t4')}, 0
    s_cselect_b32 {s('c0')}, {f32(QSCALE)}, {s('c0')}
    s_waitcnt lgkmcnt(0)
    """)
    for i in range(16):
        a.e(f'v_mul_f32 v{R4+i}, {s("c0")}, v{R4+i}')
    for tt in range(4):
        for q in range(4):
            for i in range(4):
                A = acc(tt, q) + i
                a.e(f'v_fma_f32 v{A}, -v{M4+tt*4+i}, v{CSr+q}, v{A}')
            for i in range(4):
                A = acc(tt, q) + i
                a.e(f'v_mul_f32 v{A}, v{R4+tt*4+i}, v{A}')
    PK = FR + 40
    def pk(u, q): return PK + (u*4 + q)*4
    for u in range(2):
        for q in range(4):
            A, B = acc(2*u, q), acc(2*u+1, q)
            p = pk(u, q)
            a.e(f"""
            v_cvt_pk_bf16_f32 v{p}, v{A}, v{A+1}
            v_cvt_pk_bf16_f32 v{p+1}, v{A+2}, v{A+3}
            v_cvt_pk_bf16_f32 v{p+2}, v{B}, v{B+1}
            v_cvt_pk_bf16_f32 v{p+3}, v{B+2}, v{B+3}
            """)
    AD = FR
    a.e(f"""
    s_lshl_b32 {s('t3')}, {s('t3')}, 7
    s_lshl_b32 {s('t5')}, {s('t2')}, 6
    s_add_u32 {s('t3')}, {s('t3')}, {s('t5')}
    s_mul_i32 {s('t5')}, {s('t4')}, 2621440
    s_add_u32 {s('t5')}, {s('t5')}, {s('lb')}
    s_lshl_b32 {s('c1')}, {s('r')}, 2
    s_lshl_b32 {s('c2')}, {s('t1')}, 1
    s_add_u32 {s('c1')}, {s('c1')}, {s('c2')}
    s_mul_i32 {s('c1')}, {s('c1')}, 1280
    s_add_u32 {s('t5')}, {s('t5')}, {s('c1')}
    s_movk_i32 {s('c1')}, 3277
    s_mov_b32 {s('c2')}, 81920
    """)
    lv = a.newlabel('LepV'); le = a.newlabel('LepE')
    for q in range(4):
        a.e(f"""
        v_add_u32 v4, {s('t3')}, v2
        v_add_u32 v4, {16*q}, v4                 ; col
        v_mul_u32_u24 v5, {s('c1')}, v4
        v_lshrrev_b32 v5, 16, v5                 ; h
        v_mul_u32_u24 v6, 20, v5
        v_sub_u32 v{AD+4+q}, v4, v6              ; d
        v_mul_lo_u32 v{AD+q}, v5, {s('c2')}      ; h*81920
        """)
    a.e(f"""
    s_cmp_eq_u32 {s('t4')}, 2
    s_cbranch_scc1 {lv}
    ; ---- Q/K: off = d*64 + (g&1)*32 + (g>>1)*16
    v_and_b32 v4, 1, v3
    v_lshlrev_b32 v4, 5, v4
    v_lshrrev_b32 v5, 1, v3
    v_lshl_add_u32 v4, v5, 4, v4
    """)
    for q in range(4):
        a.e(f"""
        v_lshl_add_u32 v5, v{AD+4+q}, 6, v4
        v_add_u32 v{AD+q}, v{AD+q}, v5
        """)
    for u in range(2):
        for q in range(4):
            p = pk(u, q)
            a.e(f"""
            v_permlane16_swap_b32 v{p}, v{p+2}
            v_permlane16_swap_b32 v{p+1}, v{p+3}
            """)
    a.e(f"""
    s_branch {le}
    {lv}:
    ; ---- V: off = g*320 + d*16
    v_mul_u32_u24 v4, 320, v3
    """)
    for q in range(4):
        a.e(f"""
        v_lshl_add_u32 v5, v{AD+4+q}, 4, v4
        v_add_u32 v{AD+q}, v{AD+q}, v5
        """)
    for u in range(2):
        for q in range(4):
            p = pk(u, q)
            a.e(f"""
            v_permlane32_swap_b32 v{p}, v{p+2}
            v_permlane32_swap_b32 v{p+1}, v{p+3}
            """)
    a.label(le)
    a.nop(2)
    for u in range(2):
        for q in range(4):
            p = pk(u, q)
            o = f' offset:{u*1280}' if u else ''
            a.e(f'buffer_store_dwordx4 {vr(p,4)}, v{AD+q}, {s("WS",4)}, {s("t5")} offen{o} {SC1}')

def epilogue_P4(a, m):
    acc, FR = m['acc'], m['FR']
    a.c('---- epilogue P4')
    MM, RR, CG, CU = FR, FR + 4, FR + 8, FR + 20
    a.e(f"""
    s_and_b32 {s('t1')}, {s('lw')}, 1        ; wm
    s_lshr_b32 {s('t2')}, {s('lw')}, 1       ; wn
    s_lshl_b32 {s('t3')}, {s('t1')}, 8
    v_lshl_add_u32 v4, v2, 2, {s('t3')}      ; wm*256 + j*4
    """)
    a.e(f"""
    s_mul_i32 {s('t3')}, {s('t2')}, 192
    v_lshl_add_u32 v5, v3, 4, {s('t3')}      ; wn*192 + g*16
    """)
    for tt in range(4):
        a.e(f'ds_read_b32 v{MM+tt}, v4 offset:{M_ROWM + tt*64}')
        a.e(f'ds_read_b32 v{RR+tt}, v4 offset:{M_ROWR + tt*64}')
    for q in range(3):
        a.e(f'ds_read_b128 {vr(CG+q*4,4)}, v5 offset:{M_CS + q*64}')
        a.e(f'ds_read_b128 {vr(CU+q*4,4)}, v5 offset:{M_CS + 384 + q*64}')
    a.e('s_waitcnt lgkmcnt(0)')
    for tt in range(4):
        a.e(f'v_mul_f32 v{RR+tt}, v{RR+tt}, v{RR+tt}')
    PK = FR + 32
    def pk(u, q): return PK + (u*3 + q)*4
    for tt in range(4):
        for q in range(3):
            G, U = acc(tt, q), acc(tt, 3+q)
            for i in range(4):
                a.e(f'v_fma_f32 v{G+i}, -v{MM+tt}, v{CG+q*4+i}, v{G+i}')
                a.e(f'v_fma_f32 v{U+i}, -v{MM+tt}, v{CU+q*4+i}, v{U+i}')
            for i in range(4):
                a.e(f'v_mul_f32 v{G+i}, v{G+i}, v{U+i}')
            for i in range(4):
                a.e(f'v_mul_f32 v{G+i}, v{RR+tt}, v{G+i}')
            p = pk(tt >> 1, q) + 2*(tt & 1)
            a.e(f'v_cvt_pk_bf16_f32 v{p}, v{G}, v{G+1}')
            a.e(f'v_cvt_pk_bf16_f32 v{p+1}, v{G+2}, v{G+3}')
    a.e(f"""
    s_lshl_b32 {s('t3')}, {s('r')}, 1
    s_add_u32 {s('t3')}, {s('t3')}, {s('t1')}
    s_mul_i32 {s('t3')}, {s('t3')}, 196608
    s_add_u32 {s('t3')}, {s('t3')}, {s('lb')}
    s_add_u32 {s('t3')}, {s('t3')}, {oH}
    s_mul_i32 {s('t4')}, {s('j')}, 12
    s_mul_i32 {s('t5')}, {s('t2')}, 6
    s_add_u32 {s('t4')}, {s('t4')}, {s('t5')}
    v_lshrrev_b32 v4, 1, v3
    v_add_u32 v4, {s('t4')}, v4
    v_and_b32 v5, 1, v3
    v_lshlrev_b32 v5, 10, v5
    v_lshl_add_u32 v5, v2, 4, v5             ; (g&1)*1024 + j*16
    """)
    AD = FR
    for q in range(3):
        a.e(f"""
        v_add_u32 v6, {2*q}, v4
        v_lshrrev_b32 v7, 2, v6
        v_lshlrev_b32 v7, 12, v7
        v_and_b32 v6, 3, v6
        v_lshl_add_u32 v7, v6, 8, v7
        v_add_u32 v{AD+q}, v7, v5
        """)
    for u in range(2):
        for q in range(3):
            p = pk(u, q)
            a.e(f"""
            v_permlane16_swap_b32 v{p}, v{p+2}
            v_permlane16_swap_b32 v{p+1}, v{p+3}
            """)
    a.nop(2)
    for u in range(2):
        for q in range(3):
            p = pk(u, q)
            o = f' offset:{u*2048}' if u else ''
            a.e(f'buffer_store_dwordx4 {vr(p,4)}, v{AD+q}, {s("WS",4)}, {s("t3")} offen{o} {SC1}')

def epilogue_P35(a, m, ph):
    acc, FR = m['acc'], m['FR']
    a.c(f'---- epilogue {ph}')
    for ct in range(5):
        A = acc(0, ct)
        R = RESID + 2*ct
        a.e(f"""
        v_lshlrev_b32 v4, 16, v{R}
        v_and_b32 v5, 0xffff0000, v{R}
        v_lshlrev_b32 v6, 16, v{R+1}
        v_and_b32 v7, 0xffff0000, v{R+1}
        v_add_f32 v{A}, v{A}, v4
        v_add_f32 v{A+1}, v{A+1}, v5
        v_add_f32 v{A+2}, v{A+2}, v6
        v_add_f32 v{A+3}, v{A+3}, v7
        v_cvt_pk_bf16_f32 v{R}, v{A}, v{A+1}
        v_cvt_pk_bf16_f32 v{R+1}, v{A+2}, v{A+3}
        """)
    PK = FR
    for pr in range(2):
        for i in range(4):
            a.e(f'v_mov_b32 v{PK+pr*4+i}, v{RESID+pr*4+i}')
    a.nop(1)
    for pr in range(2):
        p = PK + pr*4
        a.e(f"""
        v_permlane16_swap_b32 v{p}, v{p+2}
        v_permlane16_swap_b32 v{p+1}, v{p+3}
        """)
    AD = FR + 8
    lo = a.newlabel('Lout'); le = a.newlabel('Le35')
    if ph == 'P5':
        a.e(f"""
        s_cmp_eq_u32 {s('layer')}, 1
        s_cbranch_scc1 {lo}
        """)
    xo = oX1 if ph == 'P3' else oX2
    a.e(f"""
    s_mul_i32 {s('t3')}, {s('r')}, 163840
    s_add_u32 {s('t3')}, {s('t3')}, {s('lb')}
    s_add_u32 {s('t3')}, {s('t3')}, {xo}
    s_and_b32 {s('t4')}, {s('rb64')}, 1
    s_lshl_b32 {s('t4')}, {s('t4')}, 2
    s_add_u32 {s('t4')}, {s('t4')}, {s('lw')}
    s_lshl_b32 {s('t4')}, {s('t4')}, 11
    s_add_u32 {s('t3')}, {s('t3')}, {s('t4')}
    s_mul_i32 {s('t4')}, {s('cb')}, 10
    v_and_b32 v4, 1, v3
    v_lshrrev_b32 v5, 1, v3
    v_lshl_add_u32 v6, v4, 1, v5             ; 2*(g&1) + (g>>1)
    v_add_u32 v6, {s('t4')}, v6
    v_add_u32 v7, {s('t4')}, v5              ; 10cb + (g>>1)
    """)
    for pr in range(2):
        a.e(f"""
        v_add_u32 v8, {4*pr}, v6
        v_lshrrev_b32 v9, 3, v8
        v_lshlrev_b32 v9, 14, v9
        v_and_b32 v8, 7, v8
        v_lshl_add_u32 v9, v8, 8, v9
        v_lshl_add_u32 v{AD+pr}, v2, 4, v9
        """)
    a.e(f"""
    v_add_u32 v8, 8, v7
    v_lshrrev_b32 v9, 3, v8
    v_lshlrev_b32 v9, 14, v9
    v_and_b32 v8, 7, v8
    v_lshl_add_u32 v9, v8, 8, v9
    v_lshl_add_u32 v9, v2, 4, v9
    v_lshl_add_u32 v{AD+2}, v4, 3, v9
    """)
    for pr in range(2):
        a.e(f'buffer_store_dwordx4 {vr(PK+pr*4,4)}, v{AD+pr}, {s("WS",4)}, {s("t3")} offen {SC1}')
    a.e(f'buffer_store_dwordx2 {vr(RESID+8,2)}, v{AD+2}, {s("WS",4)}, {s("t3")} offen {SC1}')
    if ph == 'P5':
        a.e(f"""
        s_branch {le}
        {lo}:
        s_lshl_b32 {s('t3')}, {s('rb64')}, 2
        s_add_u32 {s('t3')}, {s('t3')}, {s('lw')}
        s_mul_i32 {s('t3')}, {s('t3')}, {16*1280}
        s_mul_i32 {s('t4')}, {s('cb')}, 160
        s_add_u32 {s('t3')}, {s('t3')}, {s('t4')}
        v_mul_u32_u24 v6, 1280, v2
        v_and_b32 v4, 1, v3
        v_lshrrev_b32 v5, 1, v3
        v_lshl_add_u32 v7, v4, 5, v6
        v_lshl_add_u32 v7, v5, 4, v7
        v_lshl_add_u32 v8, v3, 3, v6
        buffer_store_dwordx4 {vr(PK,4)}, v7, {s('OUT',4)}, {s('t3')} offen
        buffer_store_dwordx4 {vr(PK+4,4)}, v7, {s('OUT',4)}, {s('t3')} offen offset:64
        buffer_store_dwordx2 {vr(RESID+8,2)}, v8, {s('OUT',4)}, {s('t3')} offen offset:128
        {le}:
        """)

QLDS = WPOOL + 81920
def attention_load(a, L):
    a.c('---- attention loads')
    a.e(f"""
    s_and_b32 {s('t1')}, {s('lw')}, 1
    s_lshl_b32 {s('t2')}, {s('j')}, 1
    s_add_u32 {s('t1')}, {s('t1')}, {s('t2')}                 ; head
    s_mul_i32 {s('t1')}, {s('t1')}, 81920
    s_add_u32 {s('t1')}, {s('t1')}, {s('lb')}
    s_mul_i32 {s('t2')}, {s('r')}, 5120
    s_add_u32 {s('t1')}, {s('t1')}, {s('t2')}
    s_lshr_b32 {s('t3')}, {s('lw')}, 1
    s_mul_i32 {s('t3')}, {s('t3')}, 2621440
    s_add_u32 {s('t3')}, {s('t3')}, {s('t1')}
    s_add_u32 {s('xsrc')}, {s('t3')}, {oK - 8*1280}
    s_mul_i32 {s('xlds')}, {s('lw')}, 15360
    """)
    dma_linear(a, L, 'KV', s('WS', 4), s('xsrc'), 0, s('xlds'), XPOOL, 15, flags=SC1)
    lq = a.newlabel('Lq')
    a.e(f"""
    s_cmp_lt_u32 {s('lw')}, 2
    s_cbranch_scc0 {lq}
    s_mul_i32 {s('xlds')}, {s('lw')}, 5120
    """)
    dma_linear(a, L, 'Q', s('WS', 4), s('t1'), oQ, s('xlds'), QLDS, 5, flags=SC1)
    a.label(lq)
    a.e('s_waitcnt vmcnt(0)')
    L.drained()

def attention_compute(a):
    a.c('---- attention compute (all 8 waves)')
    SB = 16
    def Sr(t, i=0): return SB + t*16 + i
    OB = 160
    KF = 176
    VF = 188
    QF = 204
    vKa, vKb, vVa, vq, vneg, vzero, vm = 'v8', 'v9', 'v10', 'v11', 'v12', 'v13', 'v14'
    a.e(f"""
    s_lshr_b32 {s('t1')}, {s('wave')}, 2      ; hh
    s_and_b32 {s('t2')}, {s('wave')}, 3       ; qt
    s_mul_i32 {s('t3')}, {s('t1')}, 15360
    s_mul_i32 {s('t4')}, {s('t2')}, 1280
    s_add_u32 {s('t3')}, {s('t3')}, {s('t4')}
    s_add_u32 {s('t3')}, {s('t3')}, {XPOOL}
    v_lshrrev_b32 v4, 1, v3                   ; hf
    v_bfe_u32 v5, v0, 2, 2                    ; rr
    v_and_b32 v6, 3, v0                       ; c
    v_and_b32 v7, 1, v3
    v_lshlrev_b32 v7, 5, v7
    v_lshl_add_u32 v7, v6, 3, v7              ; (G&1)*32 + c*8
    v_lshl_add_u32 v6, v4, 3, v5              ; 8hf+rr
    v_lshl_add_u32 {vKa}, v6, 6, v7
    v_add_u32 v6, 16, v5
    v_lshl_add_u32 {vKb}, v6, 6, v7
    ; Q reads
    s_mul_i32 {s('t5')}, {s('wave')}, 1280
    s_add_u32 {s('t5')}, {s('t5')}, {QLDS}
    v_add_u32 v6, {s('t5')}, {vKa}
    v_add_u32 v7, {s('t5')}, {vKb}
    ds_read_b64_tr_b16 {vr(QF,2)}, v6
    ds_read_b64_tr_b16 {vr(QF+2,2)}, v6 offset:256
    ds_read_b64_tr_b16 {vr(QF+4,2)}, v7
    v_add_u32 {vKa}, {s('t3')}, {vKa}
    v_add_u32 {vKb}, {s('t3')}, {vKb}
    v_and_b32 v6, 31, v0
    v_mul_u32_u24 v7, 320, v4
    v_lshl_add_u32 {vVa}, v6, 4, v7
    s_add_u32 {s('t3')}, {s('t3')}, 30720
    v_add_u32 {vVa}, {s('t3')}, {vVa}
    v_lshlrev_b32 v7, 2, v4
    v_sub_u32 {vq}, v6, v7
    v_mov_b32 {vneg}, {f32(NEG)}
    v_mov_b32 {vzero}, 0
    s_lshl_b32 {s('t4')}, {s('r')}, 2
    s_add_u32 {s('t4')}, {s('t4')}, {s('t2')}
    s_sub_i32 {s('c3')}, 8, {s('t4')}
    v_mov_b32 v7, 0x3f803f80
    v_cmp_eq_u32 vcc, 20, v6
    s_nop 1
    v_cndmask_b32 v7, 0, v7, vcc
    """)
    for i in range(16):
        a.e(f'v_mov_b32 v{VF+i}, v7')
    for i in range(16):
        a.e(f'v_mov_b32 v{OB+i}, 0')
    for b in range(4):
        for i in range(4):
            reg = b*4 + i
            creg = 8*(reg >> 2) + (reg & 3)
            a.e(f'v_cmp_gt_i32 s[{64+2*i}:{65+2*i}], {creg}, {vq}')
        a.e('s_nop 1')
        for i in range(4):
            reg = b*4 + i
            a.e(f'v_cndmask_b32 v{Sr(0,reg)}, {vneg}, {vzero}, s[{64+2*i}:{65+2*i}]')
            a.e(f'v_cndmask_b32 v{Sr(8,reg)}, {vzero}, {vneg}, s[{64+2*i}:{65+2*i}]')
    a.e(f"""
    s_waitcnt lgkmcnt(0)
    s_mov_b32 exec_lo, 0
    v_mov_b32 v{QF+4}, 0
    v_mov_b32 v{QF+5}, 0
    s_mov_b32 exec_lo, -1
    """)
    def kreads(t, st):
        k = KF + st*6
        return [f'ds_read_b64_tr_b16 {vr(k,2)}, {vKa} offset:{t*1280}',
                f'ds_read_b64_tr_b16 {vr(k+2,2)}, {vKa} offset:{t*1280+256}',
                f'ds_read_b64_tr_b16 {vr(k+4,2)}, {vKb} offset:{t*1280}']
    for r_ in kreads(0, 0): a.e(r_)
    for t in range(9):
        st = t & 1
        if t < 8:
            for r_ in kreads(t+1, st ^ 1): a.e(r_)
            a.e('s_waitcnt lgkmcnt(3)')
        else:
            a.e('s_waitcnt lgkmcnt(0)')
        k = KF + st*6
        C = vr(Sr(t), 16) if t in (0, 8) else '0'
        if t < 8:
            inv = a.newlabel('Linv'); nx = a.newlabel('Lnx')
            a.e(f"""
            s_cmp_gt_i32 {s('c3')}, {t}
            s_cbranch_scc1 {inv}
            v_mfma_f32_32x32x16_bf16 {vr(Sr(t),16)}, {vr(k,4)}, {vr(QF,4)}, {C}
            v_mfma_f32_32x32x8_bf16 {vr(Sr(t),16)}, {vr(k+4,2)}, {vr(QF+4,2)}, {vr(Sr(t),16)}
            s_branch {nx}
            {inv}:
            """)
            for i in range(16):
                a.e(f'v_mov_b32 v{Sr(t,i)}, {vneg}')
            a.label(nx)
        else:
            a.e(f"""
            v_mfma_f32_32x32x16_bf16 {vr(Sr(t),16)}, {vr(k,4)}, {vr(QF,4)}, {C}
            v_mfma_f32_32x32x8_bf16 {vr(Sr(t),16)}, {vr(k+4,2)}, {vr(QF+4,2)}, {vr(Sr(t),16)}
            """)
    a.nop(14)
    ch = ['v4', 'v5', 'v6', 'v7']
    regs = [Sr(t, i) for t in range(9) for i in range(16)]
    for c_ in range(4):
        a.e(f'v_max3_f32 {ch[c_]}, v{regs[c_*3]}, v{regs[c_*3+1]}, v{regs[c_*3+2]}')
    idx = 12
    c_ = 0
    while idx < len(regs):
        a.e(f'v_max3_f32 {ch[c_]}, {ch[c_]}, v{regs[idx]}, v{regs[idx+1]}')
        idx += 2; c_ = (c_ + 1) & 3
    a.e(f"""
    v_max3_f32 v4, v4, v5, v6
    v_max_f32 {vm}, v4, v7
    v_mov_b32 v4, {vm}
    s_nop 1
    v_permlane32_swap_b32 {vm}, v4
    s_nop 1
    v_max_f32 {vm}, {vm}, v4
    s_mov_b32 {s('m0a')}, 0xfffff
    s_mov_b32 s{S['m0a']+1}, 0xfffff
    """)
    def vreads(t, st):
        v = VF + st*8
        return [f's_mov_b64 exec, {s("m0a",2)}',
                f'ds_read_b128 {vr(v,4)}, {vVa} offset:{t*1280}',
                f'ds_read_b128 {vr(v+4,4)}, {vVa} offset:{t*1280+640}',
                's_mov_b64 exec, -1']
    for t in range(9):
        st = t & 1
        skip = a.newlabel('Lsk')
        if t < 8:
            a.e(f's_cmp_gt_i32 {s("c3")}, {t}\ns_cbranch_scc1 {skip}')
        for r_ in vreads(t, st): a.e(r_)
        for i in range(16):
            a.e(f'v_sub_f32 v{Sr(t,i)}, v{Sr(t,i)}, {vm}')
        for i in range(16):
            a.e(f'v_exp_f32 v{Sr(t,i)}, v{Sr(t,i)}')
        a.e('s_nop 0')
        for i in range(8):
            a.e(f'v_cvt_pk_bf16_f32 v{Sr(t,i)}, v{Sr(t,2*i)}, v{Sr(t,2*i+1)}')
        v = VF + st*8
        a.e(f"""
        s_waitcnt lgkmcnt(0)
        s_nop 1
        v_mfma_f32_32x32x16_bf16 {vr(OB,16)}, {vr(v,4)}, {vr(Sr(t),4)}, {vr(OB,16)}
        v_mfma_f32_32x32x16_bf16 {vr(OB,16)}, {vr(v+4,4)}, {vr(Sr(t,4),4)}, {vr(OB,16)}
        """)
        if t < 8: a.label(skip)
    a.nop(14)
    a.e(f"""
    v_mov_b32 v4, v{OB+8}
    v_mov_b32 v5, v{OB+8}
    s_nop 1
    v_permlane32_swap_b32 v4, v5
    s_nop 1
    v_rcp_f32 v5, v5
    s_nop 0
    """)
    for i in range(12):
        a.e(f'v_mul_f32 v{OB+i}, v{OB+i}, v5')
    P = KF
    for i in range(6):
        a.e(f'v_cvt_pk_bf16_f32 v{P+i}, v{OB+2*i}, v{OB+2*i+1}')
    a.e(f"""
    s_nop 1
    v_permlane32_swap_b32 v{P}, v{P+2}
    v_permlane32_swap_b32 v{P+1}, v{P+3}
    s_lshl_b32 {s('t3')}, {s('r')}, 1
    s_lshr_b32 {s('t4')}, {s('t2')}, 1
    s_add_u32 {s('t3')}, {s('t3')}, {s('t4')}
    s_mul_i32 {s('t3')}, {s('t3')}, 81920
    s_add_u32 {s('t3')}, {s('t3')}, {s('lb')}
    s_add_u32 {s('t3')}, {s('t3')}, {oO}
    s_and_b32 {s('t4')}, {s('t2')}, 1
    s_lshl_b32 {s('t4')}, {s('t4')}, 11
    s_add_u32 {s('t3')}, {s('t3')}, {s('t4')}          ; + (qt&1)*2048
    s_mul_i32 {s('t4')}, {s('j')}, 5
    s_lshl_b32 {s('t5')}, {s('t1')}, 1
    s_add_u32 {s('t5')}, {s('t5')}, {s('t4')}          ; 5j + 2hh
    v_and_b32 v4, 1, v3
    v_lshlrev_b32 v4, 10, v4
    v_lshl_add_u32 v4, v2, 4, v4                       ; (q>>4)*1024 + rr16*16
    v_lshrrev_b32 v5, 1, v3                            ; hf
    v_add_u32 v5, {s('t5')}, v5                        ; chunk
    v_lshrrev_b32 v6, 2, v5
    v_lshlrev_b32 v6, 12, v6
    v_and_b32 v5, 3, v5
    v_lshl_add_u32 v6, v5, 8, v6
    v_add_u32 v6, v6, v4
    buffer_store_dwordx4 {vr(P,4)}, v6, {s('WS',4)}, {s('t3')} offen {SC1}
    s_add_u32 {s('t4')}, {s('t4')}, 4                  ; chunk 5j+4
    s_lshr_b32 {s('t5')}, {s('t4')}, 2
    s_lshl_b32 {s('t5')}, {s('t5')}, 12
    s_and_b32 {s('t4')}, {s('t4')}, 3
    s_lshl_b32 {s('t4')}, {s('t4')}, 8
    s_add_u32 {s('t5')}, {s('t5')}, {s('t4')}
    s_lshl_b32 {s('t4')}, {s('t1')}, 3
    s_add_u32 {s('t5')}, {s('t5')}, {s('t4')}
    v_add_u32 v7, {s('t5')}, v4
    s_mov_b32 exec_hi, 0
    buffer_store_dwordx2 {vr(P+4,2)}, v7, {s('WS',4)}, {s('t3')} offen {SC1}
    s_mov_b32 exec_hi, -1
    """)

def gen_main(a, stop_after=None, name=None):
    name = name or 'main_kernel'
    a.begin_kernel(name)
    a.e(f"""
    s_cmp_ge_u32 s2, 256
    s_cbranch_scc1 LM_done
    s_load_dwordx4 s[4:7], s[0:1], 0
    s_load_dwordx2 s[34:35], s[0:1], 56
    s_load_dwordx2 s[36:37], s[0:1], 72
    v_lshrrev_b32 v1, 6, v0
    s_nop 0
    v_readfirstlane_b32 {s('wave')}, v1
    v_and_b32 v0, 63, v0
    v_lshlrev_b32 v1, 4, v0
    v_and_b32 v2, 15, v0
    v_lshrrev_b32 v3, 4, v0
    s_waitcnt lgkmcnt(0)
    s_mov_b32 s8, s4
    s_mov_b32 s9, s5
    s_mov_b32 s10, 2621440
    s_mov_b32 s11, 0x20000
    s_mov_b32 s12, s6
    s_mov_b32 s13, s7
    s_mov_b32 s14, 2457600
    s_mov_b32 s15, 0x20000
    s_mov_b32 s16, s36
    s_mov_b32 s17, s37
    s_mov_b32 s18, {WS_BYTES}
    s_mov_b32 s19, 0x20000
    s_mov_b32 s20, s34
    s_mov_b32 s21, s35
    s_mov_b32 s22, 2621440
    s_mov_b32 s23, 0x20000
    s_mov_b32 s24, s4
    s_mov_b32 s25, s5
    s_mov_b32 s26, 2621440
    s_mov_b32 s27, 0x20000
    s_and_b32 {s('t0')}, s2, 7
    s_lshr_b32 {s('t1')}, s2, 3
    s_lshr_b32 {s('t2')}, {s('t0')}, 1
    s_lshl_b32 {s('t2')}, {s('t2')}, 2
    s_lshr_b32 {s('t3')}, {s('t1')}, 3
    s_add_u32 {s('r')}, {s('t2')}, {s('t3')}
    s_and_b32 {s('t2')}, {s('t0')}, 1
    s_lshl_b32 {s('t2')}, {s('t2')}, 3
    s_and_b32 {s('t3')}, {s('t1')}, 7
    s_add_u32 {s('j')}, {s('t2')}, {s('t3')}
    s_and_b32 {s('t2')}, {s('j')}, 1
    s_lshl_b32 {s('rb64')}, {s('r')}, 1
    s_add_u32 {s('rb64')}, {s('rb64')}, {s('t2')}
    s_lshr_b32 {s('cb')}, {s('j')}, 1
    s_and_b32 {s('lw')}, {s('wave')}, 3
    s_mov_b32 {s('layer')}, 0
    s_mov_b32 {s('tag')}, 1
    s_mov_b32 {s('lb')}, {LB0}
    s_lshl_b32 {s('flagcl')}, {s('r')}, 7
    s_add_u32 {s('flagcl')}, {s('flagcl')}, {FLAGS}
    s_lshl_b32 {s('flagme')}, {s('j')}, 2
    s_add_u32 {s('flagme')}, {s('flagme')}, {s('flagcl')}
    s_cmp_ge_u32 {s('wave')}, 4
    s_cbranch_scc1 LM_loader
    """)
    def stop(p):
        return stop_after is not None and stop_after == p
    a.e(f"""
    s_lshl_b32 {s('t0')}, {s('rb64')}, 2
    s_add_u32 {s('t0')}, {s('t0')}, {s('lw')}
    s_mul_i32 {s('t0')}, {s('t0')}, {16*1280}
    s_mul_i32 {s('t1')}, {s('cb')}, 160
    s_add_u32 {s('t0')}, {s('t0')}, {s('t1')}
    v_mul_u32_u24 v4, 1280, v2
    v_lshl_add_u32 v4, v3, 3, v4
    """)
    for ct in range(5):
        a.e(f'buffer_load_dwordx2 {vr(RESID+2*ct,2)}, v4, {s("XIN",4)}, {s("t0")} offen offset:{32*ct}')
    a.label('LC_layer')
    def csync():
        a.e('s_waitcnt vmcnt(0)')
        a.e('s_barrier')
    m = compute_gemm(a, 'P1'); epilogue_P1(a, m); csync()
    if stop(0): a.e('s_branch LM_done')
    a.e('s_barrier')
    attention_compute(a); csync()
    if stop(1): a.e('s_branch LM_done')
    m = compute_gemm(a, 'P3'); epilogue_P35(a, m, 'P3'); csync()
    if stop(2): a.e('s_branch LM_done')
    m = compute_gemm(a, 'P4'); epilogue_P4(a, m); csync()
    if stop(3): a.e('s_branch LM_done')
    m = compute_gemm(a, 'P5'); epilogue_P35(a, m, 'P5'); csync()
    if stop(4): a.e('s_branch LM_done')
    a.e(f"""
    s_cmp_eq_u32 {s('layer')}, 1
    s_cbranch_scc1 LM_done
    s_mov_b32 {s('layer')}, 1
    s_add_u32 {s('lb')}, {s('lb')}, {LSTRIDE}
    s_branch LC_layer
    """)
    a.label('LM_loader')
    L = Loader(a)
    setup_W_next(a, 'P1')
    setup_X(a, 'P1')
    loader_gemm(a, L, 'P1', first=True)
    a.e('s_branch LL_afterP1')
    a.label('LL_layer')
    L2 = Loader(a)
    setup_X(a, 'P1')
    loader_gemm(a, L2, 'P1', first=False)
    a.label('LL_afterP1')
    L = Loader(a)
    def lsync(ph_idx, nxt, ncl=1, last=False):
        if nxt is not None:
            setup_W_next(a, nxt)
            for t in range(min(GE[nxt]['CW'], GE[nxt]['T'])):
                issue_W(a, L, nxt, t)
        return
    lsync(0, 'P3')
    a.e('s_barrier')
    if stop(0): a.e('s_waitcnt vmcnt(0)\ns_branch LM_done')
    emit_flag_and_poll(a, L, 0)
    emit_poll(a, L, 0, nclusters=3)
    attention_load(a, L)
    a.e('s_barrier')
    attention_compute(a)
    a.e('s_waitcnt vmcnt(0)')
    a.e('s_barrier')
    if stop(1): a.e('s_branch LM_done')
    L.drained()
    emit_flag_and_poll(a, L, 1)
    emit_poll(a, L, 1)
    setup_X(a, 'P3')
    loader_gemm(a, L, 'P3')
    lsync(2, 'P4')
    a.e('s_barrier')
    if stop(2): a.e('s_waitcnt vmcnt(0)\ns_branch LM_done')
    emit_flag_and_poll(a, L, 2)
    emit_poll(a, L, 2)
    setup_X(a, 'P4')
    loader_gemm(a, L, 'P4')
    lsync(3, 'P5')
    a.e('s_barrier')
    if stop(3): a.e('s_waitcnt vmcnt(0)\ns_branch LM_done')
    emit_flag_and_poll(a, L, 3)
    emit_poll(a, L, 3)
    setup_X(a, 'P5')
    loader_gemm(a, L, 'P5')
    a.e(f"""
    s_cmp_eq_u32 {s('layer')}, 1
    s_cbranch_scc1 LL_fin
    """)
    lsync(4, 'P1')
    a.e('s_barrier')
    if stop(4): a.e('s_waitcnt vmcnt(0)\ns_branch LM_done')
    emit_flag_and_poll(a, L, 4)
    emit_poll(a, L, 4)
    a.e(f"""
    s_mov_b32 {s('layer')}, 1
    s_add_u32 {s('lb')}, {s('lb')}, {LSTRIDE}
    s_add_u32 {s('flagcl')}, {s('flagcl')}, 10240
    s_add_u32 {s('flagme')}, {s('flagme')}, 10240
    s_branch LL_layer
    LL_fin:
    s_barrier
    LM_done:
    s_endpgm
    """)
    a.end_kernel(name, 256, 102, 256)
    a.launch(name, (256, 1, 1), (512, 1, 1), LDS_TOTAL)

if __name__ == '__main__':
    stop = int(sys.argv[1]) if len(sys.argv) > 1 and sys.argv[1] != 'none' else None
    out = sys.argv[2] if len(sys.argv) > 2 else 'main.s'
    a = Gen()
    gen_prep(a)
    gen_main(a, stop_after=stop)
    open(out, 'w').write(a.text())
    print('lines', len(a.lines))
```

```python
import sys, struct, json
sys.path.insert(0, 'gen')
from asmlib import *

FLAGS = 0
CS_QKV = 0x20000
CS_GU = 0x22000
ST0 = 0x30000
WO_P = 0x60000
WGU_P = WO_P + 819200
WD_P = WGU_P + 3932160
LB0 = 8 << 20
LSTRIDE = 24 << 20
oQ, oK, oV, oO, oX1, oH, oX2 = 0, 2621440, 5242880, 7864320, 10485760, 13107200, 19398656
oST1, oST2 = 22020096, 22151168
WS_BYTES = 268435456
TSB = 200 << 20

MISC = 0
M_ROWM = MISC
M_ROWR = MISC + 512
WPOOL, WPOOL_SZ = 4096, 81920
XPOOL, XPOOL_SZ = 86016, 77824
LDS_TOTAL = 163840
QLDS = XPOOL + 61440

LOG2E = 1.4426950408889634
QSCALE = LOG2E / (20 ** 0.5)
NEG = -1.0e30
SC1 = 'sc1'

def f32(x):
    return '0x%08x' % struct.unpack('<I', struct.pack('<f', x))[0]

S = dict(
    wg=2, wave=3,
    XIN=8, WQKV=12, WS=16, OUT=20, XCUR=24,
    r=28, j=29, layer=30, tag=31, lb=32, lw=33,
    t0=34, t1=35, t2=36, t3=37, t4=38, t5=39,
    wsrc=40, xsrc=41, wlds=42, xlds=43, xstride=44,
    stsrc=45, flb=46, wk=47, xk=48, rot=49, xend=50,
    rb64=52, cb=53,
    m0a=56, c0=60, c1=61, c2=62, c3=63,
)
def s(n, k=1):
    b = S[n]
    return f's{b}' if k == 1 else f's[{b}:{b+k-1}]'
def vr(b, n=1):
    return f'v{b}' if n == 1 else f'v[{b}:{b+n-1}]'

class Gen(Asm):
    stamps = False
    def __init__(self):
        super().__init__()
        self.stampnames = {'C': [], 'L': []}
    def nop(self, n):
        while n > 0:
            k = min(n, 16)
            self.e(f's_nop {k-1}')
            n -= k
    def stamp(self, role, name):
        if not self.stamps: return
        self.e("""
        s_memtime s[70:71]
        s_waitcnt lgkmcnt(0)
        s_mov_b32 m0, s72
        s_nop 0
        v_writelane_b32 v245, s70, m0
        s_add_u32 s72, s72, 1
        """)
        self.stampnames[role].append(name)

DBG = set()
class Loader:
    def __init__(self, a):
        self.a = a; self.q = []
    def issued(self, tag, n=1):
        self.q += [tag] * n
    def wait(self, tags):
        idx = -1
        for i, t in enumerate(self.q):
            if t in tags: idx = i
        if idx < 0: return
        n = len(self.q) - 1 - idx
        assert n <= 63, n
        if 'nowait' not in DBG: self.a.e(f's_waitcnt vmcnt({n})')
        self.q = self.q[idx+1:]
    def drained(self):
        self.q = []

GE = dict(
    P1=dict(T=10, KS=2, Wb=16384, CW=5, Xb=16384, CX=4),
    P3=dict(T=5, KS=4, Wb=20480, CW=4, Xb=16384, CX=4),
    P4=dict(T=10, KS=2, Wb=24576, CW=3, Xb=16384, CX=4),
    P5=dict(T=12, KS=4, Wb=20480, CW=4, Xb=16384, CX=4),
)

def dma_linear(a, L, tag, srd, sbase, goff, ldsbase_s, ldsoff, npieces, voff='v1', flags=''):
    p = 0
    while p < npieces:
        n = min(4, npieces - p)
        a.e(f's_add_u32 m0, {ldsbase_s}, {ldsoff + p*1024}')
        a.e(f's_add_u32 {s("t0")}, {sbase}, {goff + p*1024}')
        for i in range(n):
            o = f' offset:{i*1024}' if i else ''
            a.e(f'buffer_load_dwordx4 {voff}, {srd}, {s("t0")} offen{o} {flags} lds')
        L.issued(tag, n)
        p += n

def bf16_round(a, v, t):
    a.e(f'v_cvt_pk_bf16_f32 {t}, {v}, {v}\nv_lshlrev_b32 {v}, 16, {t}')

def gen_prep(a):
    name = 'prep_kernel'
    a.begin_kernel(name)
    NU = 1640
    NS = 128
    NC = 78
    NT = NU + NS + NC
    a.e(f"""
    s_cmp_ge_u32 s2, {NT}
    s_cbranch_scc1 LP_done
    s_load_dwordx4 s[40:43], s[0:1], 0     ; x, wqkv
    s_load_dwordx2 s[4:5], s[0:1], 16      ; wo
    s_load_dwordx4 s[8:11], s[0:1], 32
    s_load_dwordx2 s[6:7], s[0:1], 48      ; wd
    s_load_dwordx2 s[36:37], s[0:1], 72    ; ws
    v_mov_b32 v20, v0
    v_lshrrev_b32 v1, 6, v0
    s_nop 0
    v_readfirstlane_b32 s3, v1
    v_and_b32 v0, 63, v0
    s_waitcnt lgkmcnt(0)
    s_mov_b32 s16, s36
    s_mov_b32 s17, s37
    s_mov_b32 s18, {WS_BYTES}
    s_mov_b32 s19, 0x20000
    s_cmp_ge_u32 s2, {NU + NS}
    s_cbranch_scc1 LP_colsum
    s_cmp_ge_u32 s2, {NU}
    s_cbranch_scc1 LP_rowstat
    s_cmp_lt_u32 s2, 80
    s_cbranch_scc0 LP_noz
    s_cmp_eq_u32 s3, 0
    s_cbranch_scc0 LP_noz
    v_lshlrev_b32 v2, 4, v0
    s_lshl_b32 s20, s2, 10
    v_mov_b32 v4, 0
    v_mov_b32 v5, 0
    v_mov_b32 v6, 0
    v_mov_b32 v7, 0
    buffer_store_dwordx4 v[4:7], v2, s[16:19], s20 offen
    LP_noz:
    s_cmp_lt_u32 s2, 480
    s_cbranch_scc1 LP_wg
    s_cmp_lt_u32 s2, 960
    s_cbranch_scc1 LP_wu
    s_cmp_lt_u32 s2, 1440
    s_cbranch_scc1 LP_wd
    s_sub_u32 s24, s2, 1440
    s_mul_i32 s22, s24, 6554
    s_lshr_b32 s22, s22, 16
    s_mul_i32 s25, s22, 10
    s_sub_u32 s23, s24, s25
    s_mov_b32 s12, s4
    s_mov_b32 s13, s5
    s_mov_b32 s14, 819200
    s_mov_b32 s21, 1280
    s_mov_b32 s26, 1
    s_mov_b32 s27, {WO_P}
    s_mov_b32 s28, {20*5*1024}
    s_branch LP_go5
    LP_wd:
    s_sub_u32 s24, s2, 960
    s_mul_i32 s22, s24, 6554
    s_lshr_b32 s22, s22, 16
    s_mul_i32 s25, s22, 10
    s_sub_u32 s23, s24, s25
    s_mov_b32 s12, s6
    s_mov_b32 s13, s7
    s_mov_b32 s14, 1966080
    s_mov_b32 s21, 1280
    s_mov_b32 s26, 0
    s_mov_b32 s27, {WD_P}
    s_mov_b32 s28, {48*5*1024}
    LP_go5:
    s_lshl_b32 s29, s23, 2
    s_add_u32 s29, s29, s3
    s_mul_i32 s30, s29, 13108
    s_lshr_b32 s30, s30, 16
    s_mul_i32 s31, s30, 5
    s_sub_u32 s31, s29, s31
    s_mul_i32 s30, s30, s28
    s_add_u32 s27, s27, s30
    s_mul_i32 s30, s22, 5120
    s_add_u32 s27, s27, s30
    s_lshl_b32 s31, s31, 10
    s_add_u32 s27, s27, s31
    s_branch LP_load
    LP_wg:
    s_mov_b32 s24, s2
    s_mov_b32 s12, s8
    s_mov_b32 s13, s9
    s_mov_b32 s32, 0
    s_branch LP_gu
    LP_wu:
    s_sub_u32 s24, s2, 480
    s_mov_b32 s12, s10
    s_mov_b32 s13, s11
    s_mov_b32 s32, 6144
    LP_gu:
    s_mov_b32 s14, 1966080
    s_mov_b32 s21, 3072
    s_mov_b32 s26, 0
    s_mul_i32 s22, s24, 2731
    s_lshr_b32 s22, s22, 16
    s_mul_i32 s25, s22, 24
    s_sub_u32 s23, s24, s25
    s_lshl_b32 s29, s23, 2
    s_add_u32 s29, s29, s3
    s_mul_i32 s30, s29, 10923
    s_lshr_b32 s30, s30, 16
    s_mul_i32 s31, s30, 6
    s_sub_u32 s31, s29, s31
    s_mul_i32 s27, s30, 245760
    s_add_u32 s27, s27, {WGU_P}
    s_mul_i32 s30, s22, 12288
    s_add_u32 s27, s27, s30
    s_add_u32 s27, s27, s32
    s_lshl_b32 s31, s31, 10
    s_add_u32 s27, s27, s31
    LP_load:
    s_mov_b32 s15, 0x20000
    v_lshrrev_b32 v2, 3, v0
    s_lshl_b32 s29, s3, 3
    v_add_u32 v2, s29, v2
    s_lshl_b32 s29, s22, 5
    v_add_u32 v2, s29, v2
    s_cmp_eq_u32 s26, 1
    s_cbranch_scc0 LP_noperm
    s_movk_i32 s29, 1639
    v_mul_u32_u24 v3, s29, v2
    v_lshrrev_b32 v3, 16, v3
    v_mul_u32_u24 v4, 40, v3
    v_sub_u32 v5, v2, v4
    v_mov_b32 v6, v5
    v_add_u32 v7, 4, v5
    v_cmp_le_u32 vcc, 16, v5
    s_nop 1
    v_cndmask_b32 v6, v6, v7, vcc
    v_subrev_u32 v7, 16, v5
    v_cmp_le_u32 vcc, 32, v5
    s_nop 1
    v_cndmask_b32 v6, v6, v7, vcc
    v_cmp_le_u32 vcc, 36, v5
    s_nop 1
    v_cndmask_b32 v6, v6, v5, vcc
    v_add_u32 v2, v4, v6
    LP_noperm:
    v_mul_lo_u32 v2, v2, s21
    v_and_b32 v3, 7, v0
    v_lshl_add_u32 v2, v3, 4, v2
    s_lshl_b32 s29, s23, 7
    s_lshl_b32 s30, s3, 10
    s_mov_b32 m0, s30
    s_nop 0
    buffer_load_dwordx4 v2, s[12:15], s29 offen lds
    s_waitcnt vmcnt(0)
    s_barrier
    v_lshrrev_b32 v3, 4, v0
    v_bfe_u32 v4, v0, 2, 2
    v_and_b32 v5, 3, v0
    v_lshl_add_u32 v6, v3, 3, v4
    v_lshlrev_b32 v6, 7, v6
    v_lshl_add_u32 v6, v5, 3, v6
    s_lshl_b32 s30, s3, 5
    v_add_u32 v6, s30, v6
    ds_read_b64_tr_b16 v[8:9], v6
    ds_read_b64_tr_b16 v[10:11], v6 offset:512
    s_waitcnt lgkmcnt(0)
    v_lshlrev_b32 v7, 4, v0
    buffer_store_dwordx4 v[8:11], v7, s[16:19], s27 offen
    s_endpgm
    LP_rowstat:
    s_sub_u32 s24, s2, {NU}
    s_mov_b32 s12, s40
    s_mov_b32 s13, s41
    s_mov_b32 s14, 2621440
    s_mov_b32 s15, 0x20000
    v_lshrrev_b32 v2, 4, v20
    v_and_b32 v3, 15, v20
    v_mul_u32_u24 v4, 1280, v2
    v_mul_u32_u24 v5, 80, v3
    v_add_u32 v4, v4, v5
    s_mul_i32 s25, s24, {16*1280}
    """)
    for i in range(5):
        a.e(f'buffer_load_dwordx4 v[{24+4*i}:{27+4*i}], v4, s[12:15], s25 offen offset:{16*i}')
    a.e("""
    v_mov_b32 v8, 0
    v_mov_b32 v9, 0
    s_mov_b32 s26, 0x3f803f80
    s_waitcnt vmcnt(0)
    """)
    for i in range(20):
        a.e(f'v_dot2_f32_bf16 v8, v{24+i}, s26, v8')
        a.e(f'v_dot2_f32_bf16 v9, v{24+i}, v{24+i}, v9')
    a.e('s_nop 4')
    for sh in (8, 4, 2, 1):
        a.e(f"""
        v_add_f32_dpp v8, v8, v8 row_ror:{sh}
        v_add_f32_dpp v9, v9, v9 row_ror:{sh}
        s_nop 1
        """)
    a.e(f"""
    v_cmp_eq_u32 vcc, 0, v3
    s_nop 1
    v_cndmask_b32 v8, 0, v8, vcc
    v_cndmask_b32 v9, 0, v9, vcc
    v_lshlrev_b32 v6, 7, v3
    v_lshl_add_u32 v6, v2, 3, v6
    s_lshl_b32 s25, s24, 10
    s_add_u32 s25, s25, {ST0}
    v_cmp_gt_u32 vcc, 8, v3
    s_and_saveexec_b64 s[30:31], vcc
    buffer_store_dwordx2 v[8:9], v6, s[16:19], s25 offen
    s_endpgm
    LP_colsum:
    s_sub_u32 s24, s2, {NU + NS}
    s_cmp_lt_u32 s24, 30
    s_cbranch_scc0 LP_cs_gu
    s_mov_b32 s12, s42
    s_mov_b32 s13, s43
    s_mov_b32 s14, 2457600
    s_mov_b32 s21, 3840
    s_lshl_b32 s25, s24, 7
    s_lshl_b32 s27, s24, 8
    s_add_u32 s27, s27, {CS_QKV}
    s_mov_b32 s28, 0
    s_branch LP_cs_go
    LP_cs_gu:
    s_sub_u32 s24, s24, 30
    s_mov_b32 s28, 1
    s_mov_b32 s29, 0
    s_cmp_lt_u32 s24, 24
    s_cbranch_scc1 LP_cs_g
    s_sub_u32 s24, s24, 24
    s_mov_b32 s12, s10
    s_mov_b32 s13, s11
    s_mov_b32 s29, 384
    s_branch LP_cs_g2
    LP_cs_g:
    s_mov_b32 s12, s8
    s_mov_b32 s13, s9
    LP_cs_g2:
    s_mov_b32 s14, 1966080
    s_mov_b32 s21, 3072
    s_lshl_b32 s25, s24, 7
    LP_cs_go:
    s_mov_b32 s15, 0x20000
    v_lshrrev_b32 v2, 3, v20
    v_and_b32 v3, 7, v20
    v_mul_u32_u24 v4, 20, v2
    v_mul_lo_u32 v4, v4, s21
    v_lshl_add_u32 v4, v3, 4, v4
    """)
    for i in range(8):
        a.e(f'v_mov_b32 v{8+i}, 0')
    for k0 in range(0, 20, 5):
        for i in range(5):
            a.e(f'buffer_load_dwordx4 v[{24+4*i}:{27+4*i}], v4, s[12:15], s25 offen')
            a.e(f'v_add_u32 v4, s21, v4')
        a.e('s_waitcnt vmcnt(0)')
        for i in range(5):
            for d in range(4):
                x = 24 + 4*i + d
                a.e(f"""
                v_lshlrev_b32 v5, 16, v{x}
                v_and_b32 v6, 0xffff0000, v{x}
                v_add_f32 v{8+2*d}, v{8+2*d}, v5
                v_add_f32 v{9+2*d}, v{9+2*d}, v6
                """)
    a.e(f"""
    v_lshlrev_b32 v5, 8, v2
    v_lshl_add_u32 v5, v3, 5, v5
    ds_write_b128 v5, v[8:11]
    ds_write_b128 v5, v[12:15] offset:16
    s_waitcnt lgkmcnt(0)
    s_barrier
    v_cmp_gt_u32 vcc, 64, v20
    s_and_saveexec_b64 s[30:31], vcc
    s_cbranch_execz LP_done
    v_lshlrev_b32 v5, 2, v20
    v_mov_b32 v8, 0
    """)
    for kg in range(32):
        a.e(f'ds_read_b32 v{24+(kg%8)}, v5 offset:{kg*256}')
        if kg % 8 == 7:
            a.e('s_waitcnt lgkmcnt(0)')
            for i in range(8): a.e(f'v_add_f32 v8, v8, v{24+i}')
    a.e(f"""
    s_cmp_eq_u32 s28, 0
    s_cbranch_scc0 LP_cs_gud
    buffer_store_dword v8, v5, s[16:19], s27 offen
    s_endpgm
    LP_cs_gud:
    ; col f = 64*s24 + t ; ft = f>>4 ; fb = ft/6 ; q = ft%6 ; dest = CS_GU + fb*768 + isU*384 + q*64 + (f&15)*4
    s_lshl_b32 s25, s24, 6
    v_add_u32 v6, s25, v20
    v_lshrrev_b32 v7, 4, v6
    s_movk_i32 s26, 10923
    v_mul_u32_u24 v9, s26, v7
    v_lshrrev_b32 v9, 16, v9
    v_mul_u32_u24 v10, 6, v9
    v_sub_u32 v10, v7, v10
    v_mul_u32_u24 v9, 768, v9
    v_lshl_add_u32 v9, v10, 6, v9
    v_and_b32 v6, 15, v6
    v_lshl_add_u32 v9, v6, 2, v9
    s_add_u32 s29, s29, {CS_GU}
    buffer_store_dword v8, v9, s[16:19], s29 offen
    LP_done:
    s_endpgm
    """)
    a.end_kernel(name, 48, 48)
    a.launch(name, (NT, 1, 1), (256, 1, 1), 8192)

def flag_store(a, ph):
    a.e(f"""
    s_lshl_b32 {s('t0')}, {s('j')}, 2
    s_add_u32 {s('t0')}, {s('t0')}, {s('flb')}
    s_add_u32 {s('t0')}, {s('t0')}, {ph*8192}
    v_mov_b32 v4, {s('t0')}
    v_mov_b32 v5, {s('tag')}
    s_mov_b64 exec, 1
    buffer_store_dword v5, v4, {s('WS',4)}, 0 offen offset:128
    buffer_store_dword v5, v4, {s('WS',4)}, 0 offen sc1
    s_mov_b64 exec, -1
    """)

POLL_SLEEP = 0
def emit_sync(a, L, ph, ncl=1, pre=None):
    if pre: pre()
    a.e('s_barrier')
    skip = a.newlabel('Lnp')
    a.e(f's_cmp_lg_u32 {s("lw")}, 0\ns_cbranch_scc1 {skip}')
    flag_store(a, ph)
    if ncl == 1:
        a.e(f"""
        s_add_u32 {s('t0')}, {s('flb')}, {ph*8192}
        v_lshl_add_u32 v48, v0, 2, {s('t0')}
        s_mov_b64 exec, 0xffff
        """)
    else:
        a.e(f"""
        v_add_u32 v5, {s('r')}, v3
        v_subrev_u32 v5, 2, v5
        v_max_i32 v5, 0, v5
        v_sub_u32 v5, v5, {s('r')}
        v_lshlrev_b32 v5, 9, v5
        v_lshl_add_u32 v5, v2, 2, v5
        s_add_u32 {s('t0')}, {s('flb')}, {ph*8192}
        v_add_u32 v48, {s('t0')}, v5
        s_mov_b32 exec_lo, -1
        s_mov_b32 exec_hi, 0xffff
        """)
    lp = a.newlabel('Lpoll'); ld = a.newlabel('Lpolled')
    a.label(lp)
    if ncl == 1:
        for i in range(3):
            a.e(f"""
            buffer_load_dword v24, v48, {s('WS',4)}, 0 offen offset:128 sc1
            s_waitcnt vmcnt(0)
            v_cmp_ne_u32 vcc, {s('tag')}, v24
            s_cmp_eq_u64 vcc, 0
            s_cbranch_scc1 {ld}
            """)
        a.e(f"""
        buffer_load_dword v24, v48, {s('WS',4)}, 0 offen sc1
        s_waitcnt vmcnt(0)
        v_cmp_ne_u32 vcc, {s('tag')}, v24
        s_cmp_eq_u64 vcc, 0
        s_cbranch_scc0 {lp}
        """)
    else:
        a.e(f"""
        buffer_load_dword v24, v48, {s('WS',4)}, 0 offen offset:128 sc1
        buffer_load_dword v25, v48, {s('WS',4)}, 0 offen sc1
        s_waitcnt vmcnt(0)
        v_cmp_ne_u32 vcc, {s('tag')}, v24
        v_cmp_ne_u32 s[64:65], {s('tag')}, v25
        s_and_b64 vcc, vcc, s[64:65]
        s_cmp_eq_u64 vcc, 0
        s_cbranch_scc0 {lp}
        """)
    a.label(ld)
    a.e('s_mov_b64 exec, -1')
    a.label(skip)
    a.e('s_barrier')
    a.stamp('L', f'polled{ph}')

def adv(a, reg, stride, end):
    a.e(f"""
    s_add_u32 {reg}, {reg}, {stride}
    s_cmp_eq_u32 {reg}, {end}
    s_cselect_b32 {reg}, 0, {reg}
    """)

def issue_W(a, L, ph, t):
    c = GE[ph]
    lds = WPOOL + (t % c['CW']) * c['Wb']
    if ph == 'P1':
        a.e(f's_add_u32 m0, {s("wlds")}, {lds}')
        a.e(f's_add_u32 {s("t0")}, {s("wsrc")}, {s("wk")}')
        for p in range(4):
            o = f' offset:{p*1024}' if p else ''
            a.e(f'buffer_load_dwordx4 v{8+p}, {s("WQKV",4)}, {s("t0")} offen{o} lds')
        L.issued(('W', ph, t), 4)
        adv(a, s('wk'), 64*3840, c['T']*64*3840)
    else:
        a.e(f's_add_u32 {s("t5")}, {s("wsrc")}, {s("wk")}')
        dma_linear(a, L, ('W', ph, t), s('WS', 4), s('t5'), 0, s('wlds'), lds, c['Wb'] // 4096)
        adv(a, s('wk'), c['Wb'], c['T']*c['Wb'])

def issue_X(a, L, ph, t):
    c = GE[ph]
    lds = XPOOL + (t % c['CX']) * c['Xb']
    if ph == 'P1':
        a.e(f's_add_u32 m0, {s("xlds")}, {lds}')
        a.e(f's_add_u32 {s("t0")}, {s("xsrc")}, {s("xk")}')
        for p in range(4):
            o = f' offset:{p*1024}' if p else ''
            a.e(f'buffer_load_dwordx4 v{12+p}, {s("XCUR",4)}, {s("t0")} offen{o} {SC1} lds')
        L.issued(('X', ph, t), 4)
        adv(a, s('xk'), s('xstride'), s('xend'))
    else:
        a.e(f's_add_u32 {s("t5")}, {s("xsrc")}, {s("xk")}')
        dma_linear(a, L, ('X', ph, t), s('WS', 4), s('t5'), 0, s('xlds'), lds, 4, flags=SC1)
        adv(a, s('xk'), c['Xb'], c['T']*c['Xb'])

ROT = False
def setup_rot(a, ph):
    T = GE[ph]['T']
    if not ROT or 'norot' in DBG:
        a.e(f's_mov_b32 {s("rot")}, 0'); return
    if ph in ('P1', 'P4'):
        a.e(f"""
        s_and_b32 {s('rot')}, {s('r')}, 1
        s_mul_i32 {s('rot')}, {s('rot')}, 5
        s_add_u32 {s('rot')}, {s('rot')}, {s('j')}
        """)
        n = 2
    elif ph == 'P3':
        a.e(f"""
        s_and_b32 {s('rot')}, {s('rb64')}, 3
        s_add_u32 {s('rot')}, {s('rot')}, {s('cb')}
        """)
        n = 2
    else:
        a.e(f"""
        s_and_b32 {s('rot')}, {s('rb64')}, 3
        s_mul_i32 {s('rot')}, {s('rot')}, 3
        s_add_u32 {s('rot')}, {s('rot')}, {s('cb')}
        """)
        n = 1
    for _ in range(n):
        a.e(f"""
        s_sub_u32 {s('t1')}, {s('rot')}, {T}
        s_cmp_ge_u32 {s('rot')}, {T}
        s_cselect_b32 {s('rot')}, {s('t1')}, {s('rot')}
        """)

def setup_W(a, ph):
    c = GE[ph]
    per = c['Wb'] // 4
    setup_rot(a, ph)
    a.e(f's_mul_i32 {s("wk")}, {s("rot")}, {64*3840 if ph == "P1" else c["Wb"]}')
    a.e(f's_mul_i32 {s("wlds")}, {s("lw")}, {per}')
    if ph == 'P1':
        a.e(f"""
        s_min_u32 {s('t1')}, {s('j')}, 14
        s_lshl_b32 {s('t1')}, {s('t1')}, 8
        s_mul_i32 {s('wsrc')}, {s('lw')}, {16*3840}
        s_add_u32 {s('wsrc')}, {s('wsrc')}, {s('t1')}
        """)
        for p in range(4):
            a.e(f"""
            v_or_b32 v4, {((p >> 1) & 1) << 2}, v3
            v_lshlrev_b32 v4, 1, v4
            v_xor_b32 v4, v4, v2
            v_add_u32 v5, {4*p}, v3
            v_mul_u32_u24 v5, 3840, v5
            v_lshl_add_u32 v5, v4, 4, v5
            v_subrev_u32 v{8+p}, {1024*p}, v5
            """)
    else:
        base, idx, stride = {'P3': (WO_P, 'cb', 5*20480), 'P4': (WGU_P, 'j', 245760), 'P5': (WD_P, 'cb', 245760)}[ph]
        a.e(f"""
        s_mul_i32 {s('wsrc')}, {s(idx)}, {stride}
        s_add_u32 {s('wsrc')}, {s('wsrc')}, {base}
        s_add_u32 {s('wsrc')}, {s('wsrc')}, {s('wlds')}
        """)

def setup_X(a, ph, layer1=False):
    a.e(f's_lshl_b32 {s("xlds")}, {s("lw")}, 12')
    setup_rot(a, ph)
    xs_ = (16384 if layer1 else 128) if ph == 'P1' else GE[ph]['Xb']
    a.e(f's_mul_i32 {s("xk")}, {s("rot")}, {xs_}')
    a.e(f's_mov_b32 {s("xend")}, {xs_*GE[ph]["T"]}')
    if ph == 'P1' and not layer1:
        a.e(f"""
        s_lshl_b32 {s('t1')}, {s('r')}, 2
        s_add_u32 {s('t1')}, {s('t1')}, {s('lw')}
        s_mul_i32 {s('xsrc')}, {s('t1')}, {32*1280}
        s_movk_i32 {s('xstride')}, 128
        s_mov_b32 {s('stsrc')}, {ST0}
        """)
        for p in range(4):
            a.e(f"""
            v_add_u32 v4, {4*p}, v3
            v_and_b32 v4, 7, v4
            v_and_b32 v5, 7, v0
            v_xor_b32 v4, v4, v5
            v_lshrrev_b32 v5, 3, v0
            v_add_u32 v5, {8*p}, v5
            v_mul_u32_u24 v5, 1280, v5
            v_lshl_add_u32 v5, v4, 4, v5
            v_subrev_u32 v{12+p}, {1024*p}, v5
            """)
    elif ph == 'P1':
        a.e(f"""
        s_mov_b32 s{S['XCUR']}, s{S['WS']}
        s_mov_b32 s{S['XCUR']+1}, s{S['WS']+1}
        s_mov_b32 s{S['XCUR']+2}, s{S['WS']+2}
        s_mul_i32 {s('xsrc')}, {s('r')}, 163840
        s_add_u32 {s('xsrc')}, {s('xsrc')}, {LB0 + oX2}
        s_add_u32 {s('xsrc')}, {s('xsrc')}, {s('xlds')}
        s_movk_i32 {s('xstride')}, 16384
        s_mov_b32 {s('stsrc')}, {LB0 + oST2}
        v_mov_b32 v12, v1
        v_mov_b32 v13, v1
        v_mov_b32 v14, v1
        v_mov_b32 v15, v1
        """)
    else:
        idx, stride, off = {'P3': ('rb64', 81920, oO), 'P4': ('r', 163840, oX1), 'P5': ('rb64', 196608, oH)}[ph]
        a.e(f"""
        s_mul_i32 {s('xsrc')}, {s(idx)}, {stride}
        s_add_u32 {s('xsrc')}, {s('xsrc')}, {s('lb')}
        s_add_u32 {s('xsrc')}, {s('xsrc')}, {off}
        s_add_u32 {s('xsrc')}, {s('xsrc')}, {s('xlds')}
        """)
        if ph == 'P4':
            a.e(f's_add_u32 {s("stsrc")}, {s("lb")}, {oST1}')

def loader_gemm(a, L, ph, first=False):
    c = GE[ph]
    T, CW, CX = c['T'], c['CW'], c['CX']
    stats = ph in ('P1', 'P4')
    a.c(f'---- loader {ph}')
    if first:
        issue_X(a, L, ph, 0); issue_W(a, L, ph, 0)
        issue_X(a, L, ph, 1); issue_W(a, L, ph, 1)
        pend = []
        for t in range(2, max(CW, CX)):
            if t < CX: pend.append(('X', t))
            if t < CW: pend.append(('W', t))
    else:
        issue_X(a, L, ph, 0); issue_X(a, L, ph, 1)
        pend = [('X', t) for t in range(2, min(CX, T))]
    if stats:
        a.e(f"""
        v_lshrrev_b32 v4, 1, v3
        v_lshlrev_b32 v4, 10, v4
        v_and_b32 v5, 1, v3
        v_lshl_add_u32 v4, v5, 9, v4
        v_lshl_add_u32 v4, v2, 3, v4
        s_lshl_b32 {s('t1')}, {s('r')}, 13
        s_add_u32 {s('t1')}, {s('t1')}, {s('stsrc')}
        s_lshl_b32 {s('t2')}, {s('lw')}, 11
        s_add_u32 {s('t1')}, {s('t1')}, {s('t2')}
        """)
        for i in range(4):
            a.e(f'buffer_load_dwordx2 {vr(16+2*i,2)}, v4, {s("WS",4)}, {s("t1")} offen offset:{i*128} {SC1}')
        L.issued('ST', 4)
    a.stamp('L', f'{ph} Xissued')
    for t in range(T):
        L.wait({('W', ph, t), ('X', ph, t)})
        a.e('s_barrier')
        if t == 0:
            a.stamp('L', f'{ph} B0')
            for k, tt in pend:
                (issue_X if k == 'X' else issue_W)(a, L, ph, tt)
        else:
            if t - 1 + CW < T: issue_W(a, L, ph, t - 1 + CW)
            if t - 1 + CX < T: issue_X(a, L, ph, t - 1 + CX)
        if stats and t == 3:
            L.wait({'ST'})
            a.e(f"""
            v_add_f32 v16, v16, v18
            v_add_f32 v17, v17, v19
            v_add_f32 v20, v20, v22
            v_add_f32 v21, v21, v23
            v_add_f32 v16, v16, v20
            v_add_f32 v17, v17, v21
            v_mov_b32 v18, v16
            v_mov_b32 v19, v17
            s_nop 1
            v_permlane16_swap_b32 v16, v18
            v_permlane16_swap_b32 v17, v19
            s_nop 1
            v_add_f32 v16, v16, v18
            v_add_f32 v17, v17, v19
            s_mov_b32 {s('c1')}, {f32(1.0/640.0)}
            s_mov_b32 {s('c2')}, {f32(1e-5)}
            v_mul_f32 v16, {s('c1')}, v16
            v_mul_f32 v17, {s('c1')}, v17
            v_fma_f32 v17, -v16, v16, v17
            v_max_f32 v17, 0, v17
            """)
            bf16_round(a, 'v16', 'v4')
            bf16_round(a, 'v17', 'v4')
            a.e(f'v_add_f32 v17, {s("c2")}, v17')
            bf16_round(a, 'v17', 'v4')
            a.e('v_sqrt_f32 v17, v17\ns_nop 0')
            bf16_round(a, 'v17', 'v4')
            a.e(f"""
            v_rcp_f32 v17, v17
            v_lshrrev_b32 v4, 1, v3
            v_lshlrev_b32 v4, 6, v4
            v_lshl_add_u32 v4, v2, 2, v4
            s_lshl_b32 {s('t1')}, {s('lw')}, 7
            v_add_u32 v4, {s('t1')}, v4
            s_mov_b32 exec_lo, 0xffff
            s_mov_b32 exec_hi, 0xffff
            ds_write_b32 v4, v16 offset:{M_ROWM}
            ds_write_b32 v4, v17 offset:{M_ROWR}
            s_mov_b64 exec, -1
            """)
    a.e('s_waitcnt lgkmcnt(0)')
    a.e('s_barrier')
    a.stamp('L', f'{ph} E')

ACC = 24
RESID = 246
def compute_gemm(a, ph):
    c = GE[ph]
    T, KS, CW, CX, Wb, Xb = c['T'], c['KS'], c['CW'], c['CX'], c['Wb'], c['Xb']
    a.c(f'---- compute {ph}')
    ntt, nct, MS = {'P1': (4, 4, 1), 'P4': (4, 6, 1), 'P3': (1, 5, 2), 'P5': (1, 5, 2)}[ph]
    nacc = ntt * nct * 4
    FR = ACC + nacc
    fsz = (ntt + nct) * 4 * MS
    def xf(st, ms, tt): return FR + st*fsz + ms*(ntt+nct)*4 + tt*4
    def wf(st, ms, q): return FR + st*fsz + ms*(ntt+nct)*4 + ntt*4 + q*4
    def acc(tt, q): return ACC + (tt*nct + q)*4
    CSR = FR + 2*fsz
    if ph == 'P1':
        l1 = a.newlabel('Lxa1'); l2 = a.newlabel('Lxa2')
        a.e(f"""
        s_cmp_eq_u32 {s('layer')}, 0
        s_cbranch_scc0 {l1}
        v_lshrrev_b32 v4, 1, v2
        v_xor_b32 v4, v4, v3
        v_lshlrev_b32 v5, 7, v2
        v_lshl_add_u32 v8, v4, 4, v5
        v_xor_b32 v9, 64, v8
        s_branch {l2}
        {l1}:
        v_mov_b32 v8, v1
        v_add_u32 v9, 1024, v1
        {l2}:
        """)
    elif ph == 'P4':
        a.e('v_mov_b32 v8, v1\nv_add_u32 v9, 1024, v1')
    if ph in ('P1', 'P4'):
        a.e(f"""
        s_and_b32 {s('t1')}, {s('lw')}, 1
        s_lshl_b32 {s('t1')}, {s('t1')}, 13
        s_add_u32 {s('t1')}, {s('t1')}, {XPOOL}
        v_add_u32 v8, {s('t1')}, v8
        v_add_u32 v9, {s('t1')}, v9
        s_lshr_b32 {s('t2')}, {s('lw')}, 1          ; wn
        """)
    if ph == 'P1':
        for q in range(4):
            a.e(f"""
            s_lshl_b32 {s('t1')}, {s('t2')}, 2
            s_add_u32 {s('t1')}, {s('t1')}, {q}
            v_bfe_u32 v4, v0, 2, 2
            v_and_b32 v5, 1, v3
            v_lshl_or_b32 v5, v5, 2, v4
            v_xor_b32 v5, {s('t1')}, v5
            v_lshl_add_u32 v4, v3, 3, v4
            v_lshlrev_b32 v4, 8, v4
            v_lshl_add_u32 v4, v5, 5, v4
            v_and_b32 v5, 3, v0
            v_lshl_add_u32 v{10+q}, v5, 3, v4
            v_add_u32 v{14+q}, 0x10000, v{10+q}
            """)
        a.e(f"""
        s_min_u32 {s('t1')}, {s('j')}, 14
        s_lshl_b32 {s('t1')}, {s('t1')}, 9
        s_lshl_b32 {s('t3')}, {s('t2')}, 8
        s_add_u32 {s('t1')}, {s('t1')}, {s('t3')}
        s_add_u32 {s('t1')}, {s('t1')}, {CS_QKV}
        v_lshlrev_b32 v4, 2, v2
        """)
        for q in range(4):
            a.e(f'buffer_load_dword v{CSR+2*q}, v4, {s("WS",4)}, {s("t1")} offen offset:{q*64}')
    elif ph == 'P4':
        a.e(f"""
        s_mul_i32 {s('t1')}, {s('t2')}, 3072
        v_add_u32 v10, {s('t1')}, v1
        v_add_u32 v11, 0x10000, v10
        s_mul_i32 {s('t1')}, {s('j')}, 768
        s_mul_i32 {s('t3')}, {s('t2')}, 192
        s_add_u32 {s('t1')}, {s('t1')}, {s('t3')}
        s_add_u32 {s('t1')}, {s('t1')}, {CS_GU}
        v_lshlrev_b32 v4, 4, v3
        """)
        for q in range(3):
            a.e(f'buffer_load_dwordx4 {vr(CSR+4*q,4)}, v4, {s("WS",4)}, {s("t1")} offen offset:{q*64}')
            a.e(f'buffer_load_dwordx4 {vr(CSR+12+4*q,4)}, v4, {s("WS",4)}, {s("t1")} offen offset:{384+q*64}')
    else:
        a.e(f"""
        s_lshl_b32 {s('t1')}, {s('lw')}, 10
        s_add_u32 {s('t1')}, {s('t1')}, {XPOOL}
        v_add_u32 v8, {s('t1')}, v1
        v_mov_b32 v10, v1
        v_add_u32 v11, 0x10000, v1
        """)
    for i in range(nacc):
        a.e(f'v_mov_b32 v{ACC+i}, 0')
    def wa(lo, hi, off):
        return (f'v{hi}', off - 0x10000) if off >= 0x10000 else (f'v{lo}', off)
    def reads(st, t, m):
        xo = (t % CX) * Xb
        wo = WPOOL + (t % CW) * Wb
        xs, ws = [], []
        for ms in range(MS):
            sx = m*MS + ms
            if ph in ('P1', 'P4'):
                for tt in range(4):
                    xs.append(f'ds_read_b128 {vr(xf(st,ms,tt),4)}, v{8+sx} offset:{xo + tt*2048}')
            else:
                xs.append(f'ds_read_b128 {vr(xf(st,ms,0),4)}, v8 offset:{xo + sx*4096}')
            if ph == 'P1':
                for q in range(4):
                    for h in range(2):
                        r_, o_ = wa(10+q, 14+q, wo + sx*8192 + h*1024)
                        ws.append(f'ds_read_b64_tr_b16 {vr(wf(st,ms,q)+2*h,2)}, {r_} offset:{o_}')
            elif ph == 'P4':
                for q in range(6):
                    ct = q if q < 3 else 6 + (q - 3)
                    r_, o_ = wa(10, 11, wo + (sx*12 + ct)*1024)
                    ws.append(f'ds_read_b128 {vr(wf(st,ms,q),4)}, {r_} offset:{o_}')
            else:
                for q in range(5):
                    r_, o_ = wa(10, 11, wo + (sx*5 + q)*1024)
                    ws.append(f'ds_read_b128 {vr(wf(st,ms,q),4)}, {r_} offset:{o_}')
        out = []
        if 'noreads' in DBG: return []
        while xs or ws:
            if xs: out.append(xs.pop(0))
            if ws: out.append(ws.pop(0))
            if ws and ph == 'P1': out.append(ws.pop(0))
        return out
    def mfmas(st):
        m = []
        if 'nomfma' in DBG: return ['s_nop 0'] * (MS*ntt*nct)
        for ms in range(MS):
            for tt in range(ntt):
                for q in range(nct):
                    A, B = (xf(st,ms,tt), wf(st,ms,q)) if ph == 'P1' else (wf(st,ms,q), xf(st,ms,tt))
                    m.append(f'v_mfma_f32_16x16x32_bf16 {vr(acc(tt,q),4)}, {vr(A,4)}, {vr(B,4)}, {vr(acc(tt,q),4)}')
        return m
    def interleave(ms_, rs, start=0):
        i = 0
        span = max(1, (len(ms_) - start) * 2 // 3)
        per = max(1, -(-len(rs) // span))
        for k, m in enumerate(ms_):
            a.e(m)
            if k >= start:
                for _ in range(per):
                    if i < len(rs):
                        a.e(rs[i]); i += 1
        while i < len(rs):
            a.e(rs[i]); i += 1
    NM = KS // MS
    a.e('s_barrier')
    a.stamp('C', f'{ph} B0')
    for r_ in reads(0, 0, 0): a.e(r_)
    st = 0
    for t in range(T):
        for m in range(NM):
            a.e('s_waitcnt lgkmcnt(0)')
            ms_ = mfmas(st)
            if m < NM - 1:
                interleave(ms_, reads(st ^ 1, t, m + 1))
            elif t < T - 1:
                nb = 2
                for x in ms_[:nb]: a.e(x)
                a.e('s_barrier')
                interleave(ms_[nb:], reads(st ^ 1, t + 1, 0))
            else:
                for x in ms_: a.e(x)
            st ^= 1
    a.stamp('C', f'{ph} loopend')
    a.e('s_barrier')
    a.nop(8)
    return dict(acc=acc, FR=FR, CSR=CSR)

def epilogue_P1(a, m, ph_idx):
    acc, FR, CSR = m['acc'], m['FR'], m['CSR']
    a.c('---- epilogue P1')
    M4, R4 = FR, FR + 16
    a.e(f"""
    s_and_b32 {s('t1')}, {s('lw')}, 1        ; wm
    s_lshr_b32 {s('t2')}, {s('lw')}, 1       ; wn
    s_lshl_b32 {s('t3')}, {s('t1')}, 8
    v_lshl_add_u32 v4, v3, 4, {s('t3')}
    """)
    for tt in range(4):
        a.e(f'ds_read_b128 {vr(M4+tt*4,4)}, v4 offset:{M_ROWM + tt*64}')
        a.e(f'ds_read_b128 {vr(R4+tt*4,4)}, v4 offset:{M_ROWR + tt*64}')
    a.e(f"""
    s_min_u32 {s('t3')}, {s('j')}, 14
    s_mul_i32 {s('t4')}, {s('t3')}, 13108
    s_lshr_b32 {s('t4')}, {s('t4')}, 16          ; typ
    s_mul_i32 {s('t5')}, {s('t4')}, 5
    s_sub_u32 {s('t3')}, {s('t3')}, {s('t5')}    ; cbt
    s_mov_b32 {s('c0')}, 1.0
    s_cmp_eq_u32 {s('t4')}, 0
    s_cselect_b32 {s('c0')}, {f32(QSCALE)}, {s('c0')}
    s_mov_b32 s{S['c0']+1}, {s('c0')}
    s_lshl_b32 {s('t3')}, {s('t3')}, 7
    s_lshl_b32 {s('t5')}, {s('t2')}, 6
    s_add_u32 {s('t3')}, {s('t3')}, {s('t5')}
    s_mul_i32 {s('t5')}, {s('t4')}, 2621440
    s_add_u32 {s('t5')}, {s('t5')}, {s('lb')}
    s_lshl_b32 {s('c2')}, {s('r')}, 2
    s_lshl_b32 {s('c3')}, {s('t1')}, 1
    s_add_u32 {s('c2')}, {s('c2')}, {s('c3')}
    s_mul_i32 {s('c2')}, {s('c2')}, 1280
    s_add_u32 {s('t5')}, {s('t5')}, {s('c2')}
    s_movk_i32 {s('c2')}, 3277
    s_mov_b32 {s('c3')}, 81920
    """)
    AD = 8
    for q in range(4):
        a.e(f"""
        v_add_u32 v4, {s('t3')}, v2
        v_add_u32 v4, {16*q}, v4
        v_mul_u32_u24 v5, {s('c2')}, v4
        v_lshrrev_b32 v5, 16, v5
        v_mul_u32_u24 v6, 20, v5
        v_sub_u32 v{AD+4+q}, v4, v6
        v_mul_lo_u32 v{AD+q}, v5, {s('c3')}
        """)
    lv = a.newlabel('LepV'); le = a.newlabel('LepE'); lv2 = a.newlabel('LepV2'); le2 = a.newlabel('LepE2')
    a.e(f"""
    s_cmp_eq_u32 {s('t4')}, 2
    s_cbranch_scc1 {lv}
    v_and_b32 v4, 1, v3
    v_lshlrev_b32 v4, 5, v4
    v_lshrrev_b32 v5, 1, v3
    v_lshl_add_u32 v4, v5, 4, v4
    """)
    for q in range(4):
        a.e(f'v_lshl_add_u32 v5, v{AD+4+q}, 6, v4\nv_add_u32 v{AD+q}, v{AD+q}, v5')
    a.e(f"""
    s_branch {le}
    {lv}:
    v_mul_u32_u24 v4, 320, v3
    """)
    for q in range(4):
        a.e(f'v_lshl_add_u32 v5, v{AD+4+q}, 4, v4\nv_add_u32 v{AD+q}, v{AD+q}, v5')
    a.label(le)
    a.e('s_waitcnt vmcnt(0) lgkmcnt(0)')
    for i in range(0, 16, 2):
        a.e(f'v_pk_mul_f32 {vr(R4+i,2)}, {vr(R4+i,2)}, {s("c0",2)}')
    for i in range(0, 16, 2):
        a.e(f'v_pk_mul_f32 {vr(M4+i,2)}, {vr(M4+i,2)}, {vr(R4+i,2)}')
    PK = FR + 32
    def pk(u, q): return PK + (u*4 + q)*4
    TMP = FR + 72
    for tt in range(4):
        for q in range(4):
            A = acc(tt, q)
            for i in (0, 2):
                a.e(f'v_pk_mul_f32 {vr(TMP+i,2)}, {vr(M4+tt*4+i,2)}, {vr(CSR+2*q,2)} op_sel_hi:[1,0]')
            for i in (0, 2):
                a.e(f'v_pk_fma_f32 {vr(A+i,2)}, {vr(R4+tt*4+i,2)}, {vr(A+i,2)}, {vr(TMP+i,2)} neg_lo:[0,0,1] neg_hi:[0,0,1]')
            p = pk(tt >> 1, q) + 2*(tt & 1)
            a.e(f'v_cvt_pk_bf16_f32 v{p}, v{A}, v{A+1}')
            a.e(f'v_cvt_pk_bf16_f32 v{p+1}, v{A+2}, v{A+3}')
    a.e(f"""
    s_cmp_eq_u32 {s('t4')}, 2
    s_cbranch_scc1 {lv2}
    """)
    for u in range(2):
        for q in range(4):
            p = pk(u, q)
            a.e(f'v_permlane16_swap_b32 v{p}, v{p+2}\nv_permlane16_swap_b32 v{p+1}, v{p+3}')
            o = f' offset:{u*1280}' if u else ''
            a.e(f's_nop 1\nbuffer_store_dwordx4 {vr(p,4)}, v{AD+q}, {s("WS",4)}, {s("t5")} offen{o} {SC1}')
    a.e(f's_branch {le2}\n{lv2}:')
    for u in range(2):
        for q in range(4):
            p = pk(u, q)
            a.e(f'v_permlane32_swap_b32 v{p}, v{p+2}\nv_permlane32_swap_b32 v{p+1}, v{p+3}')
            o = f' offset:{u*1280}' if u else ''
            a.e(f's_nop 1\nbuffer_store_dwordx4 {vr(p,4)}, v{AD+q}, {s("WS",4)}, {s("t5")} offen{o} {SC1}')
    a.label(le2)

def epilogue_P4(a, m):
    acc, FR, CSR = m['acc'], m['FR'], m['CSR']
    a.c('---- epilogue P4')
    MM, RR = FR, FR + 8
    CG, CU = CSR, CSR + 12
    a.e(f"""
    s_and_b32 {s('t1')}, {s('lw')}, 1
    s_lshr_b32 {s('t2')}, {s('lw')}, 1
    s_lshl_b32 {s('t3')}, {s('t1')}, 8
    v_lshl_add_u32 v4, v2, 2, {s('t3')}
    """)
    for tt in range(4):
        a.e(f'ds_read_b32 v{MM+2*tt}, v4 offset:{M_ROWM + tt*64}')
        a.e(f'ds_read_b32 v{RR+2*tt}, v4 offset:{M_ROWR + tt*64}')
    a.e(f"""
    s_lshl_b32 {s('t3')}, {s('r')}, 1
    s_add_u32 {s('t3')}, {s('t3')}, {s('t1')}
    s_mul_i32 {s('t3')}, {s('t3')}, 196608
    s_add_u32 {s('t3')}, {s('t3')}, {s('lb')}
    s_add_u32 {s('t3')}, {s('t3')}, {oH}
    s_mul_i32 {s('t4')}, {s('j')}, 12
    s_mul_i32 {s('t5')}, {s('t2')}, 6
    s_add_u32 {s('t4')}, {s('t4')}, {s('t5')}
    v_lshrrev_b32 v4, 1, v3
    v_add_u32 v4, {s('t4')}, v4
    v_and_b32 v5, 1, v3
    v_lshlrev_b32 v5, 10, v5
    v_lshl_add_u32 v5, v2, 4, v5
    """)
    AD = 8
    for q in range(3):
        a.e(f"""
        v_add_u32 v6, {2*q}, v4
        v_lshrrev_b32 v7, 2, v6
        v_lshlrev_b32 v7, 12, v7
        v_and_b32 v6, 3, v6
        v_lshl_add_u32 v7, v6, 8, v7
        v_add_u32 v{AD+q}, v7, v5
        """)
    a.e('s_waitcnt vmcnt(0) lgkmcnt(0)')
    for tt in range(4):
        a.e(f'v_mul_f32 v{RR+2*tt}, v{RR+2*tt}, v{RR+2*tt}')
    PK = FR + 16
    def pk(u, q): return PK + (u*3 + q)*4
    for u in range(2):
        for q in range(3):
            for tt in (2*u, 2*u+1):
                G, U = acc(tt, q), acc(tt, 3+q)
                for i in (0, 2):
                    a.e(f'v_pk_fma_f32 {vr(G+i,2)}, {vr(MM+2*tt,2)}, {vr(CG+q*4+i,2)}, {vr(G+i,2)} op_sel_hi:[0,1,1] neg_lo:[1,0,0] neg_hi:[1,0,0]')
                    a.e(f'v_pk_fma_f32 {vr(U+i,2)}, {vr(MM+2*tt,2)}, {vr(CU+q*4+i,2)}, {vr(U+i,2)} op_sel_hi:[0,1,1] neg_lo:[1,0,0] neg_hi:[1,0,0]')
                for i in (0, 2):
                    a.e(f'v_pk_mul_f32 {vr(G+i,2)}, {vr(G+i,2)}, {vr(U+i,2)}')
                for i in (0, 2):
                    a.e(f'v_pk_mul_f32 {vr(G+i,2)}, {vr(G+i,2)}, {vr(RR+2*tt,2)} op_sel_hi:[1,0]')
                p = pk(u, q) + 2*(tt & 1)
                a.e(f'v_cvt_pk_bf16_f32 v{p}, v{G}, v{G+1}')
                a.e(f'v_cvt_pk_bf16_f32 v{p+1}, v{G+2}, v{G+3}')
            p = pk(u, q)
            o = f' offset:{u*2048}' if u else ''
            a.e(f"""
            s_nop 1
            v_permlane16_swap_b32 v{p}, v{p+2}
            v_permlane16_swap_b32 v{p+1}, v{p+3}
            s_nop 1
            buffer_store_dwordx4 {vr(p,4)}, v{AD+q}, {s("WS",4)}, {s("t3")} offen{o} {SC1}
            """)

def epilogue_P35(a, m, ph):
    acc, FR = m['acc'], m['FR']
    a.c(f'---- epilogue {ph}')
    if ph == 'P3':
        a.e('s_waitcnt vmcnt(0)')
    for ct in range(5):
        A = acc(0, ct)
        R = RESID + 2*ct
        a.e(f"""
        v_lshlrev_b32 v4, 16, v{R}
        v_and_b32 v5, 0xffff0000, v{R}
        v_lshlrev_b32 v6, 16, v{R+1}
        v_and_b32 v7, 0xffff0000, v{R+1}
        v_pk_add_f32 {vr(A,2)}, {vr(A,2)}, v[4:5]
        v_pk_add_f32 {vr(A+2,2)}, {vr(A+2,2)}, v[6:7]
        v_cvt_pk_bf16_f32 v{R}, v{A}, v{A+1}
        v_cvt_pk_bf16_f32 v{R+1}, v{A+2}, v{A+3}
        """)
    PK = FR
    for pr in range(2):
        for i in range(4):
            a.e(f'v_mov_b32 v{PK+pr*4+i}, v{RESID+pr*4+i}')
    AD = FR + 8
    lo = a.newlabel('Lout'); le = a.newlabel('Le35')
    if ph == 'P5':
        a.e(f's_cmp_eq_u32 {s("layer")}, 1\ns_cbranch_scc1 {lo}')
    xo = oX1 if ph == 'P3' else oX2
    sto = oST1 if ph == 'P3' else oST2
    a.e(f"""
    s_mul_i32 {s('t3')}, {s('r')}, 163840
    s_add_u32 {s('t3')}, {s('t3')}, {s('lb')}
    s_add_u32 {s('t3')}, {s('t3')}, {xo}
    s_and_b32 {s('t4')}, {s('rb64')}, 1
    s_lshl_b32 {s('t4')}, {s('t4')}, 2
    s_add_u32 {s('t4')}, {s('t4')}, {s('lw')}
    s_lshl_b32 {s('t4')}, {s('t4')}, 11
    s_add_u32 {s('t3')}, {s('t3')}, {s('t4')}
    s_mul_i32 {s('t4')}, {s('cb')}, 10
    v_and_b32 v4, 1, v3
    v_lshrrev_b32 v5, 1, v3
    v_lshl_add_u32 v6, v4, 1, v5
    v_add_u32 v6, {s('t4')}, v6
    v_add_u32 v7, {s('t4')}, v5
    v_permlane16_swap_b32 v{PK}, v{PK+2}
    v_permlane16_swap_b32 v{PK+1}, v{PK+3}
    v_permlane16_swap_b32 v{PK+4}, v{PK+6}
    v_permlane16_swap_b32 v{PK+5}, v{PK+7}
    """)
    for pr in range(2):
        a.e(f"""
        v_add_u32 v8, {4*pr}, v6
        v_lshrrev_b32 v9, 3, v8
        v_lshlrev_b32 v9, 14, v9
        v_and_b32 v8, 7, v8
        v_lshl_add_u32 v9, v8, 8, v9
        v_lshl_add_u32 v{AD+pr}, v2, 4, v9
        buffer_store_dwordx4 {vr(PK+pr*4,4)}, v{AD+pr}, {s("WS",4)}, {s("t3")} offen {SC1}
        """)
    a.e(f"""
    v_add_u32 v8, 8, v7
    v_lshrrev_b32 v9, 3, v8
    v_lshlrev_b32 v9, 14, v9
    v_and_b32 v8, 7, v8
    v_lshl_add_u32 v9, v8, 8, v9
    v_lshl_add_u32 v9, v2, 4, v9
    v_lshl_add_u32 v{AD+2}, v4, 3, v9
    buffer_store_dwordx2 {vr(RESID+8,2)}, v{AD+2}, {s("WS",4)}, {s("t3")} offen {SC1}
    s_mov_b32 {s('c0')}, 0x3f803f80
    v_mov_b32 v12, 0
    v_mov_b32 v13, 0
    """)
    for i in range(10):
        a.e(f'v_dot2_f32_bf16 v12, v{RESID+i}, {s("c0")}, v12')
        a.e(f'v_dot2_f32_bf16 v13, v{RESID+i}, v{RESID+i}, v13')
    a.e(f"""
    s_nop 2
    v_mov_b32 v14, v12
    v_mov_b32 v15, v13
    s_nop 1
    v_permlane16_swap_b32 v12, v14
    v_permlane16_swap_b32 v13, v15
    s_nop 1
    v_add_f32 v12, v12, v14
    v_add_f32 v13, v13, v15
    v_mov_b32 v14, v12
    v_mov_b32 v15, v13
    s_nop 1
    v_permlane32_swap_b32 v12, v14
    v_permlane32_swap_b32 v13, v15
    s_nop 1
    v_add_f32 v12, v12, v14
    v_add_f32 v13, v13, v15
    s_lshl_b32 {s('t3')}, {s('rb64')}, 2
    s_add_u32 {s('t3')}, {s('t3')}, {s('lw')}
    s_lshl_b32 {s('t3')}, {s('t3')}, 3
    s_add_u32 {s('t3')}, {s('t3')}, {s('cb')}
    s_lshl_b32 {s('t3')}, {s('t3')}, 7
    s_add_u32 {s('t3')}, {s('t3')}, {s('lb')}
    s_add_u32 {s('t3')}, {s('t3')}, {sto}
    v_lshlrev_b32 v4, 3, v2
    s_mov_b64 exec, 0xffff
    buffer_store_dwordx2 v[12:13], v4, {s("WS",4)}, {s("t3")} offen {SC1}
    s_mov_b64 exec, -1
    """)
    if ph == 'P5':
        a.e(f"""
        s_branch {le}
        {lo}:
        s_lshl_b32 {s('t3')}, {s('rb64')}, 2
        s_add_u32 {s('t3')}, {s('t3')}, {s('lw')}
        s_mul_i32 {s('t3')}, {s('t3')}, {16*1280}
        s_mul_i32 {s('t4')}, {s('cb')}, 160
        s_add_u32 {s('t3')}, {s('t3')}, {s('t4')}
        v_mul_u32_u24 v6, 1280, v2
        v_and_b32 v4, 1, v3
        v_lshrrev_b32 v5, 1, v3
        v_lshl_add_u32 v7, v4, 5, v6
        v_lshl_add_u32 v7, v5, 4, v7
        v_lshl_add_u32 v8, v3, 3, v6
        v_permlane16_swap_b32 v{PK}, v{PK+2}
        v_permlane16_swap_b32 v{PK+1}, v{PK+3}
        v_permlane16_swap_b32 v{PK+4}, v{PK+6}
        v_permlane16_swap_b32 v{PK+5}, v{PK+7}
        s_nop 1
        buffer_store_dwordx4 {vr(PK,4)}, v7, {s('OUT',4)}, {s('t3')} offen
        buffer_store_dwordx4 {vr(PK+4,4)}, v7, {s('OUT',4)}, {s('t3')} offen offset:64
        buffer_store_dwordx2 {vr(RESID+8,2)}, v8, {s('OUT',4)}, {s('t3')} offen offset:128
        {le}:
        """)

def attention_phase(a, role):
    a.c('---- attention')
    SA, SBt = 16, 32
    CM = 48
    C0, C8 = 64, 80
    OB = 96
    KF = 112
    VF = 168
    QF = 184
    PB = 192
    vKa, vKb, vVa, vq, vneg, vzero, vm = 'v8', 'v9', 'v10', 'v11', 'v12', 'v13', 'v14'
    lq = a.newlabel('Laq'); lk = a.newlabel('Lak')
    La = Loader(a)
    a.e(f"""
    s_lshl_b32 {s('t3')}, {s('j')}, 1
    s_mul_i32 {s('t4')}, {s('r')}, 5120
    s_add_u32 {s('t4')}, {s('t4')}, {s('lb')}
    s_cmp_ge_u32 {s('wave')}, 6
    s_cbranch_scc1 {lq}
    s_cmp_ge_u32 {s('wave')}, 3
    s_cselect_b32 {s('t1')}, 1, 0
    s_mul_i32 {s('t2')}, {s('t1')}, 3
    s_sub_u32 {s('t2')}, {s('wave')}, {s('t2')}       ; part
    s_add_u32 {s('t3')}, {s('t3')}, {s('t1')}
    s_mul_i32 {s('t3')}, {s('t3')}, 81920
    s_add_u32 {s('t4')}, {s('t4')}, {s('t3')}
    s_mul_i32 {s('t2')}, {s('t2')}, 5120
    s_add_u32 {s('t4')}, {s('t4')}, {s('t2')}
    s_mul_i32 {s('t1')}, {s('t1')}, 15360
    s_add_u32 {s('t1')}, {s('t1')}, {s('t2')}
    """)
    dma_linear(a, La, 'K', s('WS', 4), s('t4'), oK - 10240, s('t1'), XPOOL, 5, flags=SC1)
    dma_linear(a, La, 'V', s('WS', 4), s('t4'), oV - 10240, s('t1'), XPOOL + 30720, 5, flags=SC1)
    a.e(f"""
    s_branch {lk}
    {lq}:
    s_sub_u32 {s('t1')}, {s('wave')}, 6
    s_add_u32 {s('t3')}, {s('t3')}, {s('t1')}
    s_mul_i32 {s('t3')}, {s('t3')}, 81920
    s_add_u32 {s('t4')}, {s('t4')}, {s('t3')}
    s_mul_i32 {s('t1')}, {s('t1')}, 5120
    """)
    dma_linear(a, La, 'Q', s('WS', 4), s('t4'), oQ, s('t1'), QLDS, 5, flags=SC1)
    a.label(lk)
    a.e(f"""
    s_lshr_b32 {s('t1')}, {s('wave')}, 2      ; hh
    s_and_b32 {s('t2')}, {s('wave')}, 3       ; qt
    s_mul_i32 {s('t3')}, {s('t1')}, 15360
    s_mul_i32 {s('t4')}, {s('t2')}, 1280
    s_add_u32 {s('t3')}, {s('t3')}, {s('t4')}
    s_add_u32 {s('t3')}, {s('t3')}, {XPOOL}
    v_lshrrev_b32 v4, 1, v3                   ; hf
    v_bfe_u32 v5, v0, 2, 2
    v_and_b32 v6, 3, v0
    v_and_b32 v7, 1, v3
    v_lshlrev_b32 v7, 5, v7
    v_lshl_add_u32 v7, v6, 3, v7
    v_lshl_add_u32 v6, v4, 3, v5
    v_lshl_add_u32 {vKa}, v6, 6, v7
    v_add_u32 v6, 16, v5
    v_lshl_add_u32 {vKb}, v6, 6, v7
    s_mul_i32 {s('t5')}, {s('wave')}, 1280
    s_add_u32 {s('t5')}, {s('t5')}, {QLDS}
    v_add_u32 v208, {s('t5')}, {vKa}
    v_add_u32 v209, {s('t5')}, {vKb}
    v_add_u32 {vKa}, {s('t3')}, {vKa}
    v_add_u32 {vKb}, {s('t3')}, {vKb}
    v_and_b32 v6, 31, v0
    v_mul_u32_u24 v7, 320, v4
    v_lshl_add_u32 {vVa}, v6, 4, v7
    s_add_u32 {s('t3')}, {s('t3')}, 30720
    v_add_u32 {vVa}, {s('t3')}, {vVa}
    v_lshlrev_b32 v7, 2, v4
    v_sub_u32 {vq}, v6, v7
    v_mov_b32 {vneg}, {f32(NEG)}
    v_mov_b32 {vzero}, 0
    s_lshl_b32 {s('t4')}, {s('r')}, 2
    s_add_u32 {s('t4')}, {s('t4')}, {s('t2')}
    s_sub_i32 {s('c3')}, 8, {s('t4')}
    v_mov_b32 v7, 0x3f803f80
    v_cmp_eq_u32 vcc, 20, v6
    s_nop 1
    v_cndmask_b32 v7, 0, v7, vcc
    s_mov_b32 {s('m0a')}, 0xfffff
    s_mov_b32 s{S['m0a']+1}, 0xfffff
    """)
    for i in range(16):
        a.e(f'v_mov_b32 v{VF+i}, v7')
    for i in range(16):
        a.e(f'v_mov_b32 v{OB+i}, 0')
    for b in range(4):
        for i in range(4):
            reg = b*4 + i
            creg = 8*(reg >> 2) + (reg & 3)
            a.e(f'v_cmp_gt_i32 s[{64+2*i}:{65+2*i}], {creg}, {vq}')
        a.e('s_nop 1')
        for i in range(4):
            reg = b*4 + i
            a.e(f'v_cndmask_b32 v{C0+reg}, {vneg}, {vzero}, s[{64+2*i}:{65+2*i}]')
            a.e(f'v_cndmask_b32 v{C8+reg}, {vzero}, {vneg}, s[{64+2*i}:{65+2*i}]')
    lw6 = a.newlabel('Law6'); lw7 = a.newlabel('Law7')
    a.e(f"""
    s_cmp_ge_u32 {s('wave')}, 6
    s_cbranch_scc1 {lw6}
    s_waitcnt vmcnt(5)
    s_branch {lw7}
    {lw6}:
    s_waitcnt vmcnt(0)
    {lw7}:
    s_barrier
    """)
    a.stamp(role, 'attn A0')
    a.e(f"""
    ds_read_b64_tr_b16 {vr(QF,2)}, v208
    ds_read_b64_tr_b16 {vr(QF+2,2)}, v208 offset:256
    ds_read_b64_tr_b16 {vr(QF+4,2)}, v209
    """)
    def kf(t): return KF + t*6
    def kreads(t):
        k = kf(t)
        return [f'ds_read_b64_tr_b16 {vr(k,2)}, {vKa} offset:{t*1280}',
                f'ds_read_b64_tr_b16 {vr(k+2,2)}, {vKa} offset:{t*1280+256}',
                f'ds_read_b64_tr_b16 {vr(k+4,2)}, {vKb} offset:{t*1280}']
    def vreads(t, st):
        v = VF + st*8
        return [f's_mov_b64 exec, {s("m0a",2)}',
                f'ds_read_b128 {vr(v,4)}, {vVa} offset:{t*1280}',
                f'ds_read_b128 {vr(v+4,4)}, {vVa} offset:{t*1280+640}',
                's_mov_b64 exec, -1']
    def qk(t, D, C):
        k = kf(t)
        return [f'v_mfma_f32_32x32x16_bf16 {vr(D,16)}, {vr(k,4)}, {vr(QF,4)}, {C}',
                f'v_mfma_f32_32x32x8_bf16 {vr(D,16)}, {vr(k+4,2)}, {vr(QF+4,2)}, {vr(D,16)}']
    for t in range(3):
        for r_ in kreads(t): a.e(r_)
    a.e(f"""
    s_waitcnt lgkmcnt(9)
    s_mov_b32 exec_lo, 0
    v_mov_b32 v{QF+4}, 0
    v_mov_b32 v{QF+5}, 0
    s_mov_b32 exec_lo, -1
    v_mov_b32 v4, {vneg}
    v_mov_b32 v5, {vneg}
    v_mov_b32 v6, {vneg}
    v_mov_b32 v7, {vneg}
    """)
    lslow = a.newlabel('Lslow'); ljoin = a.newlabel('Ljoin')
    a.e(f's_cmp_gt_i32 {s("c3")}, 0\ns_cbranch_scc1 {lslow}')
    ch = ['v4', 'v5', 'v6', 'v7']
    def maxes(D):
        out = []
        for i in range(8):
            c_ = ch[i & 3]
            out.append(f'v_max3_f32 {c_}, {c_}, v{D+2*i}, v{D+2*i+1}')
        return out
    def Cop(t):
        return vr(C0, 16) if t == 0 else (vr(C8, 16) if t == 8 else '0')
    def Cop2(t):
        return vr(C0, 16) if t == 0 else (vr(C8, 16) if t == 8 else vr(CM, 16))
    def body(slow):
        buf = [SA, SBt]
        def valid_guard(t):
            if slow and t < 8:
                lab = a.newlabel('Lsk')
                a.e(f's_cmp_gt_i32 {s("c3")}, {t}\ns_cbranch_scc1 {lab}')
                return lab
            return None
        for t in range(9):
            a.e(f's_waitcnt lgkmcnt({min(6, (8 - t) * 3)})')
            g = valid_guard(t)
            D = buf[t & 1]
            for x in qk(t, D, Cop(t)): a.e(x)
            if g: a.label(g)
            if t + 3 < 9:
                for r_ in kreads(t + 3): a.e(r_)
            if t >= 1:
                g = valid_guard(t - 1)
                if t == 1 or slow: a.nop(8 if slow else 0)
                for x in maxes(buf[(t-1) & 1]): a.e(x)
                if g: a.label(g)
        a.nop(12)
        for x in maxes(buf[0]): a.e(x)
        a.e(f"""
        v_max3_f32 v4, v4, v5, v6
        v_max_f32 {vm}, v4, v7
        v_mov_b32 v4, {vm}
        s_nop 1
        v_permlane32_swap_b32 {vm}, v4
        s_nop 1
        v_max_f32 {vm}, {vm}, v4
        """)
        for i in range(16):
            a.e(f'v_sub_f32 v{CM+i}, 0, {vm}')
        for i in range(16):
            a.e(f'v_sub_f32 v{C0+i}, v{C0+i}, {vm}')
            a.e(f'v_sub_f32 v{C8+i}, v{C8+i}, {vm}')
        a.e('s_waitcnt vmcnt(0)')
        a.e('s_barrier')
        a.stamp(role, 'attn A1')
        for r_ in vreads(0, 0): a.e(r_)
        g = valid_guard(0)
        for x in qk(0, buf[0], Cop2(0)): a.e(x)
        if g: a.label(g)
        for t in range(9):
            D = buf[t & 1]
            P = PB + (t & 1)*8
            if t < 8:
                g = valid_guard(t + 1)
                for x in qk(t + 1, buf[(t+1) & 1], Cop2(t + 1)): a.e(x)
                if g: a.label(g)
                for r_ in vreads(t + 1, (t + 1) & 1): a.e(r_)
            g = valid_guard(t)
            if t == 8 or slow: a.nop(10)
            elif t == 0: a.nop(4)
            for i in range(16):
                a.e(f'v_exp_f32 v{D+i}, v{D+i}')
                if i % 2 == 1 and i >= 3:
                    a.e(f'v_cvt_pk_bf16_f32 v{P+(i-3)//2}, v{D+i-3}, v{D+i-2}')
            a.e('s_nop 0')
            a.e(f'v_cvt_pk_bf16_f32 v{P+7}, v{D+14}, v{D+15}')
            v = VF + (t & 1)*8
            w = 'lgkmcnt(0)' if t == 8 else 'lgkmcnt(2)'
            a.e(f"""
            s_waitcnt {w}
            s_nop 0
            v_mfma_f32_32x32x16_bf16 {vr(OB,16)}, {vr(v,4)}, {vr(P,4)}, {vr(OB,16)}
            v_mfma_f32_32x32x16_bf16 {vr(OB,16)}, {vr(v+4,4)}, {vr(P+4,4)}, {vr(OB,16)}
            """)
            if g: a.label(g)
    body(False)
    a.e(f's_branch {ljoin}')
    a.label(lslow)
    body(True)
    a.label(ljoin)
    a.nop(14)
    a.e(f"""
    v_mov_b32 v4, v{OB+8}
    v_mov_b32 v5, v{OB+8}
    s_nop 1
    v_permlane32_swap_b32 v4, v5
    s_nop 1
    v_rcp_f32 v5, v5
    s_nop 0
    """)
    for i in range(12):
        a.e(f'v_mul_f32 v{OB+i}, v{OB+i}, v5')
    P = PB
    for i in range(6):
        a.e(f'v_cvt_pk_bf16_f32 v{P+i}, v{OB+2*i}, v{OB+2*i+1}')
    a.e(f"""
    s_lshl_b32 {s('t3')}, {s('r')}, 1
    s_lshr_b32 {s('t4')}, {s('t2')}, 1
    s_add_u32 {s('t3')}, {s('t3')}, {s('t4')}
    s_mul_i32 {s('t3')}, {s('t3')}, 81920
    s_add_u32 {s('t3')}, {s('t3')}, {s('lb')}
    s_add_u32 {s('t3')}, {s('t3')}, {oO}
    s_and_b32 {s('t4')}, {s('t2')}, 1
    s_lshl_b32 {s('t4')}, {s('t4')}, 11
    s_add_u32 {s('t3')}, {s('t3')}, {s('t4')}
    v_permlane32_swap_b32 v{P}, v{P+2}
    v_permlane32_swap_b32 v{P+1}, v{P+3}
    s_mul_i32 {s('t4')}, {s('j')}, 5
    s_lshl_b32 {s('t5')}, {s('t1')}, 1
    s_add_u32 {s('t5')}, {s('t5')}, {s('t4')}
    v_and_b32 v4, 1, v3
    v_lshlrev_b32 v4, 10, v4
    v_lshl_add_u32 v4, v2, 4, v4
    v_lshrrev_b32 v5, 1, v3
    v_add_u32 v5, {s('t5')}, v5
    v_lshrrev_b32 v6, 2, v5
    v_lshlrev_b32 v6, 12, v6
    v_and_b32 v5, 3, v5
    v_lshl_add_u32 v6, v5, 8, v6
    v_add_u32 v6, v6, v4
    buffer_store_dwordx4 {vr(P,4)}, v6, {s('WS',4)}, {s('t3')} offen {SC1}
    s_add_u32 {s('t4')}, {s('t4')}, 4
    s_lshr_b32 {s('t5')}, {s('t4')}, 2
    s_lshl_b32 {s('t5')}, {s('t5')}, 12
    s_and_b32 {s('t4')}, {s('t4')}, 3
    s_lshl_b32 {s('t4')}, {s('t4')}, 8
    s_add_u32 {s('t5')}, {s('t5')}, {s('t4')}
    s_lshl_b32 {s('t4')}, {s('t1')}, 3
    s_add_u32 {s('t5')}, {s('t5')}, {s('t4')}
    v_add_u32 v7, {s('t5')}, v4
    s_mov_b32 exec_hi, 0
    buffer_store_dwordx2 {vr(P+4,2)}, v7, {s('WS',4)}, {s('t3')} offen {SC1}
    s_mov_b32 exec_hi, -1
    """)
    a.stamp(role, 'attn stores')
    a.e('s_waitcnt vmcnt(0)')
    a.stamp(role, 'attn drained')

def gen_main(a, stop_after=None, name='main_kernel'):
    a.begin_kernel(name)
    a.e(f"""
    s_cmp_ge_u32 s2, 256
    s_cbranch_scc1 LM_exit
    s_load_dwordx4 s[4:7], s[0:1], 0
    s_load_dwordx2 s[34:35], s[0:1], 56
    s_load_dwordx2 s[36:37], s[0:1], 72
    v_lshrrev_b32 v1, 6, v0
    s_nop 0
    v_readfirstlane_b32 {s('wave')}, v1
    v_and_b32 v0, 63, v0
    v_lshlrev_b32 v1, 4, v0
    v_and_b32 v2, 15, v0
    v_lshrrev_b32 v3, 4, v0
    s_waitcnt lgkmcnt(0)
    s_mov_b32 s8, s4
    s_mov_b32 s9, s5
    s_mov_b32 s10, 2621440
    s_mov_b32 s11, 0x20000
    s_mov_b32 s12, s6
    s_mov_b32 s13, s7
    s_mov_b32 s14, 2457600
    s_mov_b32 s15, 0x20000
    s_mov_b32 s16, s36
    s_mov_b32 s17, s37
    s_mov_b32 s18, {WS_BYTES}
    s_mov_b32 s19, 0x20000
    s_mov_b32 s20, s34
    s_mov_b32 s21, s35
    s_mov_b32 s22, 2621440
    s_mov_b32 s23, 0x20000
    s_mov_b32 s24, s4
    s_mov_b32 s25, s5
    s_mov_b32 s26, 2621440
    s_mov_b32 s27, 0x20000
    s_and_b32 {s('t0')}, s2, 7
    s_lshr_b32 {s('t1')}, s2, 3
    s_lshl_b32 {s('t2')}, {s('t0')}, 1
    s_lshr_b32 {s('t3')}, {s('t1')}, 4
    s_add_u32 {s('r')}, {s('t2')}, {s('t3')}
    s_and_b32 {s('j')}, {s('t1')}, 15
    s_and_b32 {s('t2')}, {s('j')}, 1
    s_lshl_b32 {s('rb64')}, {s('r')}, 1
    s_add_u32 {s('rb64')}, {s('rb64')}, {s('t2')}
    s_lshr_b32 {s('cb')}, {s('j')}, 1
    s_and_b32 {s('lw')}, {s('wave')}, 3
    s_mov_b32 {s('layer')}, 0
    s_mov_b32 {s('tag')}, 1
    s_mov_b32 {s('lb')}, {LB0}
    s_lshl_b32 {s('flb')}, {s('r')}, 9
    s_add_u32 {s('flb')}, {s('flb')}, {FLAGS}
    s_mov_b32 s72, 0
    v_mov_b32 v245, 0
    """)
    a.stamp('C', 'start'); a.stampnames['L'].append('start')
    a.e(f"""
    s_cmp_ge_u32 {s('wave')}, 4
    s_cbranch_scc1 LM_loader
    """)
    def stop(p):
        return stop_after is not None and stop_after == p
    a.e(f"""
    s_lshl_b32 {s('t0')}, {s('rb64')}, 2
    s_add_u32 {s('t0')}, {s('t0')}, {s('lw')}
    s_mul_i32 {s('t0')}, {s('t0')}, {16*1280}
    s_mul_i32 {s('t1')}, {s('cb')}, 160
    s_add_u32 {s('t0')}, {s('t0')}, {s('t1')}
    v_mul_u32_u24 v4, 1280, v2
    v_lshl_add_u32 v4, v3, 3, v4
    """)
    for ct in range(5):
        a.e(f'buffer_load_dwordx2 {vr(RESID+2*ct,2)}, v4, {s("XIN",4)}, {s("t0")} offen offset:{32*ct}')
    a.label('LC_layer')
    def cfin(ph_idx):
        a.stamp('C', 'stores issued')
        a.e('s_waitcnt vmcnt(0)')
        a.stamp('C', 'drained')
        if stop(ph_idx): a.e('s_branch LM_done')
        if ph_idx == 4:
            a.e(f's_cmp_eq_u32 {s("layer")}, 1\ns_cbranch_scc1 LM_done')
        a.e('s_barrier\ns_barrier')
    m = compute_gemm(a, 'P1'); epilogue_P1(a, m, 0); cfin(0)
    attention_phase(a, 'C')
    if stop(1): a.e('s_branch LM_done')
    a.e('s_barrier\ns_barrier')
    m = compute_gemm(a, 'P3'); epilogue_P35(a, m, 'P3'); cfin(2)
    m = compute_gemm(a, 'P4'); epilogue_P4(a, m); cfin(3)
    m = compute_gemm(a, 'P5'); epilogue_P35(a, m, 'P5'); cfin(4)
    a.e(f"""
    s_mov_b32 {s('layer')}, 1
    s_add_u32 {s('lb')}, {s('lb')}, {LSTRIDE}
    s_add_u32 {s('flb')}, {s('flb')}, {5*8192}
    s_branch LC_layer
    """)
    a.label('LM_loader')
    L = Loader(a)
    setup_W(a, 'P1')
    setup_X(a, 'P1')
    loader_gemm(a, L, 'P1', first=True)
    a.e('s_branch LL_afterP1')
    a.label('LL_layer')
    L2 = Loader(a)
    n0 = len(a.stampnames['L'])
    loader_gemm(a, L2, 'P1', first=False)
    a.l2names = a.stampnames['L'][n0:]
    del a.stampnames['L'][n0:]
    a.label('LL_afterP1')
    L = Loader(a)
    def prefetch(nxt):
        setup_W(a, nxt)
        for t in range(min(GE[nxt]['CW'], GE[nxt]['T'])):
            issue_W(a, L, nxt, t)
    prefetch('P3')
    if stop(0): a.e('s_waitcnt vmcnt(0)\ns_branch LM_done')
    emit_sync(a, L, 0, 3)
    attention_phase(a, 'L')
    if stop(1): a.e('s_branch LM_done')
    L.drained()
    emit_sync(a, L, 1, pre=lambda: setup_X(a, 'P3'))
    loader_gemm(a, L, 'P3')
    prefetch('P4')
    if stop(2): a.e('s_waitcnt vmcnt(0)\ns_branch LM_done')
    emit_sync(a, L, 2, pre=lambda: setup_X(a, 'P4'))
    loader_gemm(a, L, 'P4')
    prefetch('P5')
    if stop(3): a.e('s_waitcnt vmcnt(0)\ns_branch LM_done')
    emit_sync(a, L, 3, pre=lambda: setup_X(a, 'P5'))
    loader_gemm(a, L, 'P5')
    a.e(f's_cmp_eq_u32 {s("layer")}, 1\ns_cbranch_scc1 LM_done')
    prefetch('P1')
    if stop(4): a.e('s_waitcnt vmcnt(0)\ns_branch LM_done')
    emit_sync(a, L, 4, pre=lambda: setup_X(a, 'P1', layer1=True))
    a.e(f"""
    s_mov_b32 {s('layer')}, 1
    s_add_u32 {s('lb')}, {s('lb')}, {LSTRIDE}
    s_add_u32 {s('flb')}, {s('flb')}, {5*8192}
    s_branch LL_layer
    LM_done:
    """)
    if a.stamps:
        a.stamp('X', 'end');
        a.e(f"""
        s_lshl_b32 {s('t0')}, s2, 3
        s_add_u32 {s('t0')}, {s('t0')}, {s('wave')}
        s_lshl_b32 {s('t0')}, {s('t0')}, 8
        s_add_u32 {s('t0')}, {s('t0')}, {TSB}
        v_lshlrev_b32 v4, 2, v0
        buffer_store_dword v245, v4, {s('WS',4)}, {s('t0')} offen
        """)
    a.e('LM_exit:\ns_endpgm')
    a.end_kernel(name, 256, 102, 256)
    a.launch(name, (256, 1, 1), (512, 1, 1), LDS_TOTAL)

if __name__ == '__main__':
    stop = int(sys.argv[1]) if len(sys.argv) > 1 and sys.argv[1] != 'none' else None
    out = sys.argv[2] if len(sys.argv) > 2 else 'main.s'
    a = Gen()
    a.stampnames['X'] = []
    if len(sys.argv) > 3 and sys.argv[3] == 'stamps':
        a.stamps = True
    if len(sys.argv) > 4:
        DBG.update(sys.argv[4].split(','))
    gen_prep(a)
    gen_main(a, stop_after=stop)
    open(out, 'w').write(a.text())
    if a.stamps:
        C = a.stampnames['C']; Ln = a.stampnames['L']
        cn = [C[0]] + C[1:] + C[1:] + ['end']
        k = 1 + len(a.l2names)
        rest = Ln[k:]
        ln = Ln[:k] + rest + a.l2names + rest[:-1] + ['end']
        json.dump({'C': cn, 'L': ln}, open('stampnames.json', 'w'))
    print('lines', len(a.lines))
```

```python
KNAME = "interleave_layers__sliding_block__glu_gated_bilinear__prompt_kernel"

HEADER = """; Kernarg layout for this problem (80 bytes, ptrs only, base s[0:1]):
"""

class Asm:
    def __init__(self):
        self.lines = []
        self.launches = []
        self.kernels = []
        self._lbl = 0

    def e(self, s):
        for ln in s.strip('\n').split('\n'):
            self.lines.append('  ' + ln.strip())

    def c(self, s):
        self.lines.append('  ; ' + s)

    def label(self, name):
        self.lines.append(name + ':')

    def newlabel(self, prefix='L'):
        self._lbl += 1
        return f'{prefix}_{self._lbl}'

    def begin_kernel(self, name):
        self.lines.append(f'.globl {name}')
        self.lines.append('.p2align 8')
        self.lines.append(f'.type {name},@function')
        self.lines.append(f'{name}:')

    def end_kernel(self, name, vgpr, sgpr=102, accum=None):
        if accum is None:
            accum = min(256, (vgpr + 3) // 4 * 4)
        self.kernels.append((name, vgpr, sgpr, accum))

    def launch(self, name, grid, block, lds):
        self.launches.append((name, grid, block, lds))

    def text(self, single=False):
        import re
        for ln in self.lines:
            if 'buffer_' in ln:
                m = re.search(r'offset:(\d+)', ln)
                assert not m or int(m.group(1)) <= 4095, ln
        out = [HEADER.rstrip('\n')]
        if single:
            name, g, b, lds = self.launches[0]
            out.append(f'; @launch grid=({g[0]},{g[1]},{g[2]}) block=({b[0]},{b[1]},{b[2]}) lds={lds}')
        else:
            for name, g, b, lds in self.launches:
                out.append(f'; @launch kernel={name} grid=({g[0]},{g[1]},{g[2]}) block=({b[0]},{b[1]},{b[2]}) lds={lds}')
        out.append('.amdgcn_target "amdgcn-amd-amdhsa--gfx950"')
        out.append('.text')
        out += self.lines
        out.append('.section .rodata,"a"')
        for name, vgpr, sgpr, accum in self.kernels:
            out.append('.p2align 6')
            out.append(f'.amdhsa_kernel {name}')
            out.append(f'  .amdhsa_next_free_vgpr {vgpr}')
            out.append(f'  .amdhsa_next_free_sgpr {sgpr}')
            out.append(f'  .amdhsa_accum_offset {accum}')
            out.append('  .amdhsa_group_segment_fixed_size 0')
            out.append('  .amdhsa_kernarg_size 80')
            out.append('  .amdhsa_user_sgpr_count 2')
            out.append('  .amdhsa_user_sgpr_kernarg_segment_ptr 1')
            out.append('  .amdhsa_system_sgpr_workgroup_id_x 1')
            out.append('.end_amdhsa_kernel')
        return '\n'.join(out) + '\n'
```

```python
import sys, struct, json
sys.path.insert(0, 'gen')
from asmlib import *

FLAGS = 0
CS_QKV = 0x20000
CS_GU = 0x22000
ST0 = 0x30000
WO_P = 0x60000
WGU_P = WO_P + 819200
WD_P = WGU_P + 3932160
WQ_P = 0x700000
LB0 = 12 << 20
LSTRIDE = 24 << 20
oQ, oK, oV, oO, oX1, oH, oX2 = 0, 2621440, 5242880, 7864320, 10485760, 13107200, 19398656
oST1, oST2 = 22020096, 22151168
oKV = 0
WS_BYTES = 268435456
TSB = 200 << 20

MISC = 0
M_ROWM = MISC
M_ROWR = MISC + 1024
WPOOL, WPOOL_SZ = 4096, 81920
XPOOL, XPOOL_SZ = 86016, 77824
LDS_TOTAL = 163840
AD = 86016
KB, VB, QB_ = AD, AD + 20480, AD + 40960

LOG2E = 1.4426950408889634
QSCALE = LOG2E / (20 ** 0.5)
NEG = -1.0e30
SC1 = 'sc1'

def f32(x):
    return '0x%08x' % struct.unpack('<I', struct.pack('<f', x))[0]

S = dict(
    wg=2, wave=3,
    XIN=8, WQKV=12, WS=16, OUT=20, XCUR=24,
    r=28, j=29, layer=30, tag=31, lb=32, lw=33,
    t0=34, t1=35, t2=36, t3=37, t4=38, t5=39,
    wsrc=40, xsrc=41, wlds=42, xlds=43, xstride=44,
    stsrc=45, flb=46, xg2=47, blk=48, head=49, qt=50,
    rb64=52, cb=53,
    m0a=56, c0=60, c1=61, c2=62, c3=63,
)
def s(n, k=1):
    b = S[n]
    return f's{b}' if k == 1 else f's[{b}:{b+k-1}]'
def vr(b, n=1):
    return f'v{b}' if n == 1 else f'v[{b}:{b+n-1}]'

class Gen(Asm):
    stamps = False
    def __init__(self):
        super().__init__()
        self.stampnames = {'C': [], 'L': []}
    def nop(self, n):
        while n > 0:
            k = min(n, 16)
            self.e(f's_nop {k-1}')
            n -= k
    def stamp(self, role, name):
        if not self.stamps: return
        self.e("""
        s_memtime s[70:71]
        s_waitcnt lgkmcnt(0)
        s_mov_b32 m0, s72
        s_nop 0
        v_writelane_b32 v245, s70, m0
        s_add_u32 s72, s72, 1
        """)
        self.stampnames[role].append(name)

DBG = set()
class Loader:
    def __init__(self, a):
        self.a = a; self.q = []
    def issued(self, tag, n=1):
        self.q += [tag] * n
    def wait(self, tags):
        idx = -1
        for i, t in enumerate(self.q):
            if t in tags: idx = i
        if idx < 0: return
        n = len(self.q) - 1 - idx
        assert n <= 63, n
        if 'nowait' not in DBG: self.a.e(f's_waitcnt vmcnt({n})')
        self.q = self.q[idx+1:]
    def drained(self):
        self.q = []

GE = dict(
    P1=dict(T=10, KS=2, Wb=8192, CW=6, Xb=32768, CX=3, WP=4096, XP=53248),
    P3=dict(T=5, KS=4, Wb=20480, CW=4, Xb=16384, CX=4, WP=4096, XP=86016),
    P4=dict(T=10, KS=2, Wb=24576, CW=3, Xb=16384, CX=4, WP=4096, XP=86016),
    P5=dict(T=12, KS=4, Wb=20480, CW=4, Xb=16384, CX=4, WP=4096, XP=86016),
)

def dma_linear(a, L, tag, srd, sbase, goff, ldsbase_s, ldsoff, npieces, voff='v1', flags=''):
    p = 0
    while p < npieces:
        n = min(4, npieces - p)
        a.e(f's_add_u32 m0, {ldsbase_s}, {ldsoff + p*1024}')
        a.e(f's_add_u32 {s("t0")}, {sbase}, {goff + p*1024}')
        for i in range(n):
            o = f' offset:{i*1024}' if i else ''
            a.e(f'buffer_load_dwordx4 {voff}, {srd}, {s("t0")} offen{o} {flags} lds')
        L.issued(tag, n)
        p += n

def bf16_round(a, v, t):
    a.e(f'v_cvt_pk_bf16_f32 {t}, {v}, {v}\nv_lshlrev_b32 {v}, 16, {t}')

def gen_prep(a):
    name = 'prep_kernel'
    a.begin_kernel(name)
    NU = 1640
    NS = 128
    NC = 78
    NQ = 160
    NT = NU + NS + NC + NQ
    a.e(f"""
    s_cmp_ge_u32 s2, {NT}
    s_cbranch_scc1 LP_done
    s_load_dwordx4 s[40:43], s[0:1], 0     ; x, wqkv
    s_load_dwordx2 s[4:5], s[0:1], 16      ; wo
    s_load_dwordx4 s[8:11], s[0:1], 32
    s_load_dwordx2 s[6:7], s[0:1], 48      ; wd
    s_load_dwordx2 s[36:37], s[0:1], 72    ; ws
    v_mov_b32 v20, v0
    v_lshrrev_b32 v1, 6, v0
    s_nop 0
    v_readfirstlane_b32 s3, v1
    v_and_b32 v0, 63, v0
    s_waitcnt lgkmcnt(0)
    s_mov_b32 s16, s36
    s_mov_b32 s17, s37
    s_mov_b32 s18, {WS_BYTES}
    s_mov_b32 s19, 0x20000
    s_cmp_ge_u32 s2, {NU + NS + NC}
    s_cbranch_scc1 LP_wq
    s_cmp_ge_u32 s2, {NU + NS}
    s_cbranch_scc1 LP_colsum
    s_cmp_ge_u32 s2, {NU}
    s_cbranch_scc1 LP_rowstat
    s_cmp_lt_u32 s2, 80
    s_cbranch_scc0 LP_noz
    s_cmp_eq_u32 s3, 0
    s_cbranch_scc0 LP_noz
    v_lshlrev_b32 v2, 4, v0
    s_lshl_b32 s20, s2, 10
    v_mov_b32 v4, 0
    v_mov_b32 v5, 0
    v_mov_b32 v6, 0
    v_mov_b32 v7, 0
    buffer_store_dwordx4 v[4:7], v2, s[16:19], s20 offen
    LP_noz:
    s_cmp_lt_u32 s2, 480
    s_cbranch_scc1 LP_wg
    s_cmp_lt_u32 s2, 960
    s_cbranch_scc1 LP_wu
    s_cmp_lt_u32 s2, 1440
    s_cbranch_scc1 LP_wd
    s_sub_u32 s24, s2, 1440
    s_mul_i32 s22, s24, 6554
    s_lshr_b32 s22, s22, 16
    s_mul_i32 s25, s22, 10
    s_sub_u32 s23, s24, s25
    s_mov_b32 s12, s4
    s_mov_b32 s13, s5
    s_mov_b32 s14, 819200
    s_mov_b32 s21, 1280
    s_mov_b32 s26, 1
    s_mov_b32 s27, {WO_P}
    s_mov_b32 s28, {20*5*1024}
    s_branch LP_go5
    LP_wd:
    s_sub_u32 s24, s2, 960
    s_mul_i32 s22, s24, 6554
    s_lshr_b32 s22, s22, 16
    s_mul_i32 s25, s22, 10
    s_sub_u32 s23, s24, s25
    s_mov_b32 s12, s6
    s_mov_b32 s13, s7
    s_mov_b32 s14, 1966080
    s_mov_b32 s21, 1280
    s_mov_b32 s26, 0
    s_mov_b32 s27, {WD_P}
    s_mov_b32 s28, {48*5*1024}
    LP_go5:
    s_lshl_b32 s29, s23, 2
    s_add_u32 s29, s29, s3
    s_mul_i32 s30, s29, 13108
    s_lshr_b32 s30, s30, 16
    s_mul_i32 s31, s30, 5
    s_sub_u32 s31, s29, s31
    s_mul_i32 s30, s30, s28
    s_add_u32 s27, s27, s30
    s_mul_i32 s30, s22, 5120
    s_add_u32 s27, s27, s30
    s_lshl_b32 s31, s31, 10
    s_add_u32 s27, s27, s31
    s_branch LP_load
    LP_wg:
    s_mov_b32 s24, s2
    s_mov_b32 s12, s8
    s_mov_b32 s13, s9
    s_mov_b32 s32, 0
    s_branch LP_gu
    LP_wu:
    s_sub_u32 s24, s2, 480
    s_mov_b32 s12, s10
    s_mov_b32 s13, s11
    s_mov_b32 s32, 6144
    LP_gu:
    s_mov_b32 s14, 1966080
    s_mov_b32 s21, 3072
    s_mov_b32 s26, 0
    s_mul_i32 s22, s24, 2731
    s_lshr_b32 s22, s22, 16
    s_mul_i32 s25, s22, 24
    s_sub_u32 s23, s24, s25
    s_lshl_b32 s29, s23, 2
    s_add_u32 s29, s29, s3
    s_mul_i32 s30, s29, 10923
    s_lshr_b32 s30, s30, 16
    s_mul_i32 s31, s30, 6
    s_sub_u32 s31, s29, s31
    s_mul_i32 s27, s30, 245760
    s_add_u32 s27, s27, {WGU_P}
    s_mul_i32 s30, s22, 12288
    s_add_u32 s27, s27, s30
    s_add_u32 s27, s27, s32
    s_lshl_b32 s31, s31, 10
    s_add_u32 s27, s27, s31
    LP_load:
    s_mov_b32 s15, 0x20000
    v_lshrrev_b32 v2, 3, v0
    s_lshl_b32 s29, s3, 3
    v_add_u32 v2, s29, v2
    s_lshl_b32 s29, s22, 5
    v_add_u32 v2, s29, v2
    s_cmp_eq_u32 s26, 1
    s_cbranch_scc0 LP_noperm
    s_movk_i32 s29, 1639
    v_mul_u32_u24 v3, s29, v2
    v_lshrrev_b32 v3, 16, v3
    v_mul_u32_u24 v4, 40, v3
    v_sub_u32 v5, v2, v4
    v_mov_b32 v6, v5
    v_add_u32 v7, 4, v5
    v_cmp_le_u32 vcc, 16, v5
    s_nop 1
    v_cndmask_b32 v6, v6, v7, vcc
    v_subrev_u32 v7, 16, v5
    v_cmp_le_u32 vcc, 32, v5
    s_nop 1
    v_cndmask_b32 v6, v6, v7, vcc
    v_cmp_le_u32 vcc, 36, v5
    s_nop 1
    v_cndmask_b32 v6, v6, v5, vcc
    v_add_u32 v2, v4, v6
    LP_noperm:
    v_mul_lo_u32 v2, v2, s21
    v_and_b32 v3, 7, v0
    v_lshl_add_u32 v2, v3, 4, v2
    s_lshl_b32 s29, s23, 7
    s_lshl_b32 s30, s3, 10
    s_mov_b32 m0, s30
    s_nop 0
    buffer_load_dwordx4 v2, s[12:15], s29 offen lds
    s_waitcnt vmcnt(0)
    s_barrier
    v_lshrrev_b32 v3, 4, v0
    v_bfe_u32 v4, v0, 2, 2
    v_and_b32 v5, 3, v0
    v_lshl_add_u32 v6, v3, 3, v4
    v_lshlrev_b32 v6, 7, v6
    v_lshl_add_u32 v6, v5, 3, v6
    s_lshl_b32 s30, s3, 5
    v_add_u32 v6, s30, v6
    ds_read_b64_tr_b16 v[8:9], v6
    ds_read_b64_tr_b16 v[10:11], v6 offset:512
    s_waitcnt lgkmcnt(0)
    v_lshlrev_b32 v7, 4, v0
    buffer_store_dwordx4 v[8:11], v7, s[16:19], s27 offen
    s_endpgm
    ; ---------------- wqkv relayout: unit u = (wg-base)*4 + wave ; s = u/32, h = u%32
    LP_wq:
    s_sub_u32 s24, s2, {NU + NS + NC}
    s_lshl_b32 s24, s24, 2
    s_add_u32 s24, s24, s3
    s_lshr_b32 s22, s24, 5            ; s
    s_and_b32 s23, s24, 31            ; h
    s_mov_b32 s12, s42
    s_mov_b32 s13, s43
    s_mov_b32 s14, 2457600
    s_mov_b32 s15, 0x20000
    s_mul_i32 s25, s23, 40
    s_and_b32 s26, s25, 15            ; off0
    s_andn2_b32 s25, s25, 15
    s_mul_i32 s27, s22, {32*3840}
    s_add_u32 s27, s27, s25
    v_lshrrev_b32 v2, 2, v0
    v_mul_u32_u24 v2, 3840, v2
    v_and_b32 v3, 3, v0
    v_lshl_add_u32 v2, v3, 4, v2
    s_mul_i32 s28, s3, 6144
    """)
    for part in range(3):
        for p in range(2):
            a.e(f"""
            s_add_u32 m0, s28, {part*2048 + p*1024}
            s_add_u32 s29, s27, {part*1280 + p*16*3840}
            buffer_load_dwordx4 v2, s[12:15], s29 offen lds
            """)
    a.e(f"""
    s_waitcnt vmcnt(0)
    v_lshrrev_b32 v3, 4, v0
    v_bfe_u32 v4, v0, 2, 2
    v_and_b32 v5, 3, v0
    v_lshl_add_u32 v6, v3, 3, v4
    v_lshlrev_b32 v6, 6, v6
    s_add_u32 s28, s28, s26
    v_add_u32 v6, s28, v6
    v_lshl_add_u32 v7, v5, 3, v6       ; tiles 0..2
    v_min_u32 v5, 2, v5
    v_lshl_add_u32 v9, v5, 11, v6
    ds_read_b64_tr_b16 v[12:13], v7
    ds_read_b64_tr_b16 v[14:15], v7 offset:256
    ds_read_b64_tr_b16 v[16:17], v7 offset:2048
    ds_read_b64_tr_b16 v[18:19], v7 offset:2304
    ds_read_b64_tr_b16 v[20:21], v7 offset:4096
    ds_read_b64_tr_b16 v[22:23], v7 offset:4352
    ds_read_b64_tr_b16 v[24:25], v9 offset:32
    ds_read_b64_tr_b16 v[26:27], v9 offset:288
    s_waitcnt lgkmcnt(0)
    s_mul_i32 s27, s23, 81920
    s_lshl_b32 s29, s22, 12
    s_add_u32 s27, s27, s29
    s_add_u32 s27, s27, {WQ_P}
    v_lshlrev_b32 v7, 4, v0
    buffer_store_dwordx4 v[12:15], v7, s[16:19], s27 offen
    buffer_store_dwordx4 v[16:19], v7, s[16:19], s27 offen offset:1024
    buffer_store_dwordx4 v[20:23], v7, s[16:19], s27 offen offset:2048
    buffer_store_dwordx4 v[24:27], v7, s[16:19], s27 offen offset:3072
    s_endpgm
    LP_rowstat:
    s_sub_u32 s24, s2, {NU}
    s_mov_b32 s12, s40
    s_mov_b32 s13, s41
    s_mov_b32 s14, 2621440
    s_mov_b32 s15, 0x20000
    v_lshrrev_b32 v2, 4, v20
    v_and_b32 v3, 15, v20
    v_mul_u32_u24 v4, 1280, v2
    v_mul_u32_u24 v5, 80, v3
    v_add_u32 v4, v4, v5
    s_mul_i32 s25, s24, {16*1280}
    """)
    for i in range(5):
        a.e(f'buffer_load_dwordx4 v[{24+4*i}:{27+4*i}], v4, s[12:15], s25 offen offset:{16*i}')
    a.e("""
    v_mov_b32 v8, 0
    v_mov_b32 v9, 0
    s_mov_b32 s26, 0x3f803f80
    s_waitcnt vmcnt(0)
    """)
    for i in range(20):
        a.e(f'v_dot2_f32_bf16 v8, v{24+i}, s26, v8')
        a.e(f'v_dot2_f32_bf16 v9, v{24+i}, v{24+i}, v9')
    a.e('s_nop 4')
    for sh in (8, 4, 2, 1):
        a.e(f"""
        v_add_f32_dpp v8, v8, v8 row_ror:{sh}
        v_add_f32_dpp v9, v9, v9 row_ror:{sh}
        s_nop 1
        """)
    a.e(f"""
    v_cmp_eq_u32 vcc, 0, v3
    s_nop 1
    v_cndmask_b32 v8, 0, v8, vcc
    v_cndmask_b32 v9, 0, v9, vcc
    v_lshlrev_b32 v6, 7, v3
    v_lshl_add_u32 v6, v2, 3, v6
    s_lshl_b32 s25, s24, 10
    s_add_u32 s25, s25, {ST0}
    v_cmp_gt_u32 vcc, 8, v3
    s_and_saveexec_b64 s[30:31], vcc
    buffer_store_dwordx2 v[8:9], v6, s[16:19], s25 offen
    s_endpgm
    LP_colsum:
    s_sub_u32 s24, s2, {NU + NS}
    s_cmp_lt_u32 s24, 30
    s_cbranch_scc0 LP_cs_gu
    s_mov_b32 s12, s42
    s_mov_b32 s13, s43
    s_mov_b32 s14, 2457600
    s_mov_b32 s21, 3840
    s_lshl_b32 s25, s24, 7
    s_lshl_b32 s27, s24, 8
    s_add_u32 s27, s27, {CS_QKV}
    s_mov_b32 s28, 0
    s_branch LP_cs_go
    LP_cs_gu:
    s_sub_u32 s24, s24, 30
    s_mov_b32 s28, 1
    s_mov_b32 s29, 0
    s_cmp_lt_u32 s24, 24
    s_cbranch_scc1 LP_cs_g
    s_sub_u32 s24, s24, 24
    s_mov_b32 s12, s10
    s_mov_b32 s13, s11
    s_mov_b32 s29, 384
    s_branch LP_cs_g2
    LP_cs_g:
    s_mov_b32 s12, s8
    s_mov_b32 s13, s9
    LP_cs_g2:
    s_mov_b32 s14, 1966080
    s_mov_b32 s21, 3072
    s_lshl_b32 s25, s24, 7
    LP_cs_go:
    s_mov_b32 s15, 0x20000
    v_lshrrev_b32 v2, 3, v20
    v_and_b32 v3, 7, v20
    v_mul_u32_u24 v4, 20, v2
    v_mul_lo_u32 v4, v4, s21
    v_lshl_add_u32 v4, v3, 4, v4
    """)
    for i in range(8):
        a.e(f'v_mov_b32 v{8+i}, 0')
    for k0 in range(0, 20, 5):
        for i in range(5):
            a.e(f'buffer_load_dwordx4 v[{24+4*i}:{27+4*i}], v4, s[12:15], s25 offen')
            a.e(f'v_add_u32 v4, s21, v4')
        a.e('s_waitcnt vmcnt(0)')
        for i in range(5):
            for d in range(4):
                x = 24 + 4*i + d
                a.e(f"""
                v_lshlrev_b32 v5, 16, v{x}
                v_and_b32 v6, 0xffff0000, v{x}
                v_add_f32 v{8+2*d}, v{8+2*d}, v5
                v_add_f32 v{9+2*d}, v{9+2*d}, v6
                """)
    a.e(f"""
    v_lshlrev_b32 v5, 8, v2
    v_lshl_add_u32 v5, v3, 5, v5
    ds_write_b128 v5, v[8:11]
    ds_write_b128 v5, v[12:15] offset:16
    s_waitcnt lgkmcnt(0)
    s_barrier
    v_cmp_gt_u32 vcc, 64, v20
    s_and_saveexec_b64 s[30:31], vcc
    s_cbranch_execz LP_done
    v_lshlrev_b32 v5, 2, v20
    v_mov_b32 v8, 0
    """)
    for kg in range(32):
        a.e(f'ds_read_b32 v{24+(kg%8)}, v5 offset:{kg*256}')
        if kg % 8 == 7:
            a.e('s_waitcnt lgkmcnt(0)')
            for i in range(8): a.e(f'v_add_f32 v8, v8, v{24+i}')
    a.e(f"""
    s_cmp_eq_u32 s28, 0
    s_cbranch_scc0 LP_cs_gud
    buffer_store_dword v8, v5, s[16:19], s27 offen
    s_endpgm
    LP_cs_gud:
    ; col f = 64*s24 + t ; ft = f>>4 ; fb = ft/6 ; q = ft%6 ; dest = CS_GU + fb*768 + isU*384 + q*64 + (f&15)*4
    s_lshl_b32 s25, s24, 6
    v_add_u32 v6, s25, v20
    v_lshrrev_b32 v7, 4, v6
    s_movk_i32 s26, 10923
    v_mul_u32_u24 v9, s26, v7
    v_lshrrev_b32 v9, 16, v9
    v_mul_u32_u24 v10, 6, v9
    v_sub_u32 v10, v7, v10
    v_mul_u32_u24 v9, 768, v9
    v_lshl_add_u32 v9, v10, 6, v9
    v_and_b32 v6, 15, v6
    v_lshl_add_u32 v9, v6, 2, v9
    s_add_u32 s29, s29, {CS_GU}
    buffer_store_dword v8, v9, s[16:19], s29 offen
    LP_done:
    s_endpgm
    """)
    a.end_kernel(name, 48, 48)
    a.launch(name, (NT, 1, 1), (256, 1, 1), 24576)

def flag_store(a, ph):
    a.e(f"""
    s_lshl_b32 {s('t0')}, {s('j')}, 2
    s_add_u32 {s('t0')}, {s('t0')}, {s('flb')}
    s_add_u32 {s('t0')}, {s('t0')}, {ph*8192}
    v_mov_b32 v4, {s('t0')}
    v_mov_b32 v5, {s('tag')}
    s_mov_b64 exec, 1
    buffer_store_dword v5, v4, {s('WS',4)}, 0 offen offset:128
    buffer_store_dword v5, v4, {s('WS',4)}, 0 offen sc1
    s_mov_b64 exec, -1
    """)

def emit_sync(a, L, ph, kind='own', pre=None, mid=None):
    if pre: pre()
    a.e('s_barrier')
    skip = a.newlabel('Lnp')
    if mid is None:
        a.e(f's_cmp_lg_u32 {s("lw")}, 0\ns_cbranch_scc1 {skip}')
        flag_store(a, ph)
    else:
        nf = a.newlabel('Lnf')
        a.e(f's_cmp_lg_u32 {s("lw")}, 0\ns_cbranch_scc1 {nf}')
        flag_store(a, ph)
        a.label(nf)
        mid()
        a.e(f's_cmp_lg_u32 {s("lw")}, 0\ns_cbranch_scc1 {skip}')
    ld = a.newlabel('Lpolled')
    if kind == 'own':
        a.e(f"""
        s_add_u32 {s('t0')}, {s('flb')}, {ph*8192}
        v_lshl_add_u32 v48, v0, 2, {s('t0')}
        s_mov_b64 exec, 0xffff
        """)
    elif kind == 'pair':
        a.e(f"""
        s_and_b32 {s('t1')}, {s('r')}, 1
        s_lshl_b32 {s('t1')}, {s('t1')}, 9
        s_sub_u32 {s('t0')}, {s('flb')}, {s('t1')}
        s_add_u32 {s('t0')}, {s('t0')}, {ph*8192}
        v_lshlrev_b32 v5, 9, v3
        v_lshl_add_u32 v5, v2, 2, v5
        v_add_u32 v48, {s('t0')}, v5
        s_mov_b32 exec_lo, -1
        s_mov_b32 exec_hi, 0
        """)
    else:
        a.e(f"""
        s_cmp_lt_u32 {s('r')}, 2
        s_cbranch_scc1 {ld}
        s_lshl_b32 {s('t0')}, {s('j')}, 2
        s_add_u32 {s('t0')}, {s('t0')}, {s('flb')}
        s_add_u32 {s('t0')}, {s('t0')}, {ph*8192 - 1024}
        v_mov_b32 v48, {s('t0')}
        s_mov_b64 exec, 1
        """)
    lp = a.newlabel('Lpoll')
    a.label(lp)
    if kind != 'prev':
        for i in range(3):
            a.e(f"""
            buffer_load_dword v24, v48, {s('WS',4)}, 0 offen offset:128 sc1
            s_waitcnt vmcnt(0)
            v_cmp_ne_u32 vcc, {s('tag')}, v24
            s_cmp_eq_u64 vcc, 0
            s_cbranch_scc1 {ld}
            """)
    a.e(f"""
    buffer_load_dword v24, v48, {s('WS',4)}, 0 offen sc1
    s_waitcnt vmcnt(0)
    v_cmp_ne_u32 vcc, {s('tag')}, v24
    s_cmp_eq_u64 vcc, 0
    s_cbranch_scc0 {lp}
    """)
    a.label(ld)
    a.e('s_mov_b64 exec, -1')
    a.label(skip)
    a.e('s_barrier')
    a.stamp('L', f'polled{ph}')

def issue_W(a, L, ph, t):
    c = GE[ph]
    lds = c['WP'] + (t % c['CW']) * c['Wb']
    dma_linear(a, L, ('W', ph, t), s('WS', 4), s('wsrc'), t * c['Wb'], s('wlds'), lds, c['Wb'] // 4096)

def issue_X(a, L, ph, t):
    c = GE[ph]
    lds = c['XP'] + (t % c['CX']) * c['Xb']
    if ph == 'P1':
        a.e(f's_mul_i32 {s("t5")}, {s("xstride")}, {t}')
        a.e(f's_add_u32 {s("t5")}, {s("t5")}, {s("xsrc")}')
        for gq in range(2):
            a.e(f's_add_u32 m0, {s("xlds")}, {lds + gq*4096}')
            if gq: a.e(f's_add_u32 {s("t5")}, {s("t5")}, {s("xg2")}')
            else: a.e('s_nop 0')
            for p in range(4):
                o = f' offset:{p*1024}' if p else ''
                a.e(f'buffer_load_dwordx4 v{12+p}, {s("XCUR",4)}, {s("t5")} offen{o} {SC1} lds')
        L.issued(('X', ph, t), 8)
    else:
        dma_linear(a, L, ('X', ph, t), s('WS', 4), s('xsrc'), t * c['Xb'], s('xlds'), lds, 4, flags=SC1)

def setup_W(a, ph):
    c = GE[ph]
    per = c['Wb'] // 4
    a.e(f's_mul_i32 {s("wlds")}, {s("lw")}, {per}')
    base, idx, stride = {'P1': (WQ_P, 'head', 81920), 'P3': (WO_P, 'cb', 5*20480), 'P4': (WGU_P, 'j', 245760), 'P5': (WD_P, 'cb', 245760)}[ph]
    a.e(f"""
    s_mul_i32 {s('wsrc')}, {s(idx)}, {stride}
    s_add_u32 {s('wsrc')}, {s('wsrc')}, {base}
    s_add_u32 {s('wsrc')}, {s('wsrc')}, {s('wlds')}
    """)

def setup_X(a, ph, layer1=False):
    if ph == 'P1':
        a.e(f's_lshl_b32 {s("xlds")}, {s("lw")}, 13')
    else:
        a.e(f's_lshl_b32 {s("xlds")}, {s("lw")}, 12')
    if ph == 'P1' and not layer1:
        a.e(f"""
        s_lshl_b32 {s('t1')}, {s('blk')}, 2
        s_add_u32 {s('t1')}, {s('t1')}, {s('lw')}
        s_mul_i32 {s('xsrc')}, {s('t1')}, {64*1280}
        s_movk_i32 {s('xstride')}, 128
        s_mov_b32 {s('xg2')}, {32*1280}
        s_mov_b32 {s('stsrc')}, {ST0}
        """)
        for p in range(4):
            a.e(f"""
            v_add_u32 v4, {4*p}, v3
            v_and_b32 v4, 7, v4
            v_and_b32 v5, 7, v0
            v_xor_b32 v4, v4, v5
            v_lshrrev_b32 v5, 3, v0
            v_add_u32 v5, {8*p}, v5
            v_mul_u32_u24 v5, 1280, v5
            v_lshl_add_u32 v5, v4, 4, v5
            v_subrev_u32 v{12+p}, {1024*p}, v5
            """)
    elif ph == 'P1':
        a.e(f"""
        s_mov_b32 s{S['XCUR']}, s{S['WS']}
        s_mov_b32 s{S['XCUR']+1}, s{S['WS']+1}
        s_mov_b32 s{S['XCUR']+2}, s{S['WS']+2}
        s_lshl_b32 {s('t1')}, {s('blk')}, 1
        s_lshr_b32 {s('t2')}, {s('lw')}, 1
        s_add_u32 {s('t1')}, {s('t1')}, {s('t2')}
        s_mul_i32 {s('xsrc')}, {s('t1')}, 163840
        s_and_b32 {s('t2')}, {s('lw')}, 1
        s_lshl_b32 {s('t2')}, {s('t2')}, 13
        s_add_u32 {s('xsrc')}, {s('xsrc')}, {s('t2')}
        s_add_u32 {s('xsrc')}, {s('xsrc')}, {LB0 + oX2}
        s_movk_i32 {s('xstride')}, 16384
        s_movk_i32 {s('xg2')}, 4096
        s_mov_b32 {s('stsrc')}, {LB0 + oST2}
        v_mov_b32 v12, v1
        v_mov_b32 v13, v1
        v_mov_b32 v14, v1
        v_mov_b32 v15, v1
        """)
    else:
        idx, stride, off = {'P3': ('rb64', 81920, oO), 'P4': ('r', 163840, oX1), 'P5': ('rb64', 196608, oH)}[ph]
        a.e(f"""
        s_mul_i32 {s('xsrc')}, {s(idx)}, {stride}
        s_add_u32 {s('xsrc')}, {s('xsrc')}, {s('lb')}
        s_add_u32 {s('xsrc')}, {s('xsrc')}, {off}
        s_add_u32 {s('xsrc')}, {s('xsrc')}, {s('xlds')}
        """)
        if ph == 'P4':
            a.e(f's_add_u32 {s("stsrc")}, {s("lb")}, {oST1}')

def loader_gemm(a, L, ph, first=False):
    c = GE[ph]
    T, CW, CX = c['T'], c['CW'], c['CX']
    stats = ph in ('P1', 'P4')
    a.c(f'---- loader {ph}')
    if first:
        issue_X(a, L, ph, 0); issue_W(a, L, ph, 0)
        issue_X(a, L, ph, 1); issue_W(a, L, ph, 1)
        pend = []
        for t in range(2, max(CW, CX)):
            if t < CX: pend.append(('X', t))
            if t < CW: pend.append(('W', t))
    else:
        issue_X(a, L, ph, 0); issue_X(a, L, ph, 1)
        pend = [('X', t) for t in range(2, min(CX, T))]
    if ph == 'P4':
        a.e(f"""
        v_lshrrev_b32 v4, 1, v3
        v_lshlrev_b32 v4, 10, v4
        v_and_b32 v5, 1, v3
        v_lshl_add_u32 v4, v5, 9, v4
        v_lshl_add_u32 v4, v2, 3, v4
        s_lshl_b32 {s('t1')}, {s('r')}, 13
        s_add_u32 {s('t1')}, {s('t1')}, {s('stsrc')}
        s_lshl_b32 {s('t2')}, {s('lw')}, 11
        s_add_u32 {s('t1')}, {s('t1')}, {s('t2')}
        """)
        for i in range(4):
            a.e(f'buffer_load_dwordx2 {vr(16+2*i,2)}, v4, {s("WS",4)}, {s("t1")} offen offset:{i*128} {SC1}')
        L.issued('ST', 4)
    elif ph == 'P1':
        a.e(f"""
        v_lshlrev_b32 v4, 10, v3
        v_lshl_add_u32 v4, v2, 3, v4
        s_lshl_b32 {s('t1')}, {s('blk')}, 14
        s_add_u32 {s('t1')}, {s('t1')}, {s('stsrc')}
        s_lshl_b32 {s('t2')}, {s('lw')}, 12
        s_add_u32 {s('t1')}, {s('t1')}, {s('t2')}
        """)
        for i in range(8):
            a.e(f'buffer_load_dwordx2 {vr(28+2*i,2)}, v4, {s("WS",4)}, {s("t1")} offen offset:{i*128} {SC1}')
        L.issued('ST', 8)
    a.stamp('L', f'{ph} Xissued')
    for t in range(T):
        L.wait({('W', ph, t), ('X', ph, t)})
        a.e('s_barrier')
        if t == 0:
            a.stamp('L', f'{ph} B0')
            for k, tt in pend:
                (issue_X if k == 'X' else issue_W)(a, L, ph, tt)
        else:
            if t - 1 + CW < T: issue_W(a, L, ph, t - 1 + CW)
            if t - 1 + CX < T: issue_X(a, L, ph, t - 1 + CX)
        if stats and t == 3:
            L.wait({'ST'})
            if ph == 'P4':
                a.e(f"""
                v_add_f32 v16, v16, v18
                v_add_f32 v17, v17, v19
                v_add_f32 v20, v20, v22
                v_add_f32 v21, v21, v23
                v_add_f32 v16, v16, v20
                v_add_f32 v17, v17, v21
                v_mov_b32 v18, v16
                v_mov_b32 v19, v17
                s_nop 1
                v_permlane16_swap_b32 v16, v18
                v_permlane16_swap_b32 v17, v19
                s_nop 1
                v_add_f32 v16, v16, v18
                v_add_f32 v17, v17, v19
                """)
            else:
                a.e('v_add_f32 v16, v28, v30\nv_add_f32 v17, v29, v31')
                for i in range(2, 8):
                    a.e(f'v_add_f32 v16, v16, v{28+2*i}\nv_add_f32 v17, v17, v{29+2*i}')
            a.e(f"""
            s_mov_b32 {s('c1')}, {f32(1.0/640.0)}
            s_mov_b32 {s('c2')}, {f32(1e-5)}
            v_mul_f32 v16, {s('c1')}, v16
            v_mul_f32 v17, {s('c1')}, v17
            v_fma_f32 v17, -v16, v16, v17
            v_max_f32 v17, 0, v17
            """)
            bf16_round(a, 'v16', 'v4')
            bf16_round(a, 'v17', 'v4')
            a.e(f'v_add_f32 v17, {s("c2")}, v17')
            bf16_round(a, 'v17', 'v4')
            a.e('v_sqrt_f32 v17, v17\ns_nop 0')
            bf16_round(a, 'v17', 'v4')
            a.e('v_rcp_f32 v17, v17')
            if ph == 'P4':
                a.e(f"""
                v_lshrrev_b32 v4, 1, v3
                v_lshlrev_b32 v4, 6, v4
                v_lshl_add_u32 v4, v2, 2, v4
                s_lshl_b32 {s('t1')}, {s('lw')}, 7
                v_add_u32 v4, {s('t1')}, v4
                s_mov_b32 exec_lo, 0xffff
                s_mov_b32 exec_hi, 0xffff
                """)
            else:
                a.e(f"""
                v_lshlrev_b32 v4, 2, v0
                s_lshl_b32 {s('t1')}, {s('lw')}, 8
                v_add_u32 v4, {s('t1')}, v4
                """)
            a.e(f"""
            ds_write_b32 v4, v16 offset:{M_ROWM}
            ds_write_b32 v4, v17 offset:{M_ROWR}
            s_mov_b64 exec, -1
            """)
    a.e('s_waitcnt lgkmcnt(0)')
    a.e('s_barrier')
    a.stamp('L', f'{ph} E')

ACC = 24
RESID = 246
def compute_gemm(a, ph):
    c = GE[ph]
    T, KS, CW, CX, Wb, Xb = c['T'], c['KS'], c['CW'], c['CX'], c['Wb'], c['Xb']
    XPOOL, WPOOL = c['XP'], c['WP']
    a.c(f'---- compute {ph}')
    ntt, nct, MS = {'P1': (4, 4, 1), 'P4': (4, 6, 1), 'P3': (1, 5, 2), 'P5': (1, 5, 2)}[ph]
    nacc = ntt * nct * 4
    FR = ACC + nacc
    fsz = (ntt + nct) * 4 * MS
    def xf(st, ms, tt): return FR + st*fsz + ms*(ntt+nct)*4 + tt*4
    def wf(st, ms, q): return FR + st*fsz + ms*(ntt+nct)*4 + ntt*4 + q*4
    def acc(tt, q): return ACC + (tt*nct + q)*4
    CSR = FR + 2*fsz
    if ph == 'P1':
        l1 = a.newlabel('Lxa1'); l2 = a.newlabel('Lxa2')
        a.e(f"""
        s_cmp_eq_u32 {s('layer')}, 0
        s_cbranch_scc0 {l1}
        v_lshrrev_b32 v4, 1, v2
        v_xor_b32 v4, v4, v3
        v_lshlrev_b32 v5, 7, v2
        v_lshl_add_u32 v8, v4, 4, v5
        v_xor_b32 v9, 64, v8
        s_branch {l2}
        {l1}:
        v_mov_b32 v8, v1
        v_add_u32 v9, 1024, v1
        {l2}:
        """)
    elif ph == 'P4':
        a.e('v_mov_b32 v8, v1\nv_add_u32 v9, 1024, v1')
    if ph == 'P4':
        a.e(f"""
        s_and_b32 {s('t1')}, {s('lw')}, 1
        s_lshl_b32 {s('t1')}, {s('t1')}, 13
        s_add_u32 {s('t1')}, {s('t1')}, {XPOOL}
        v_add_u32 v8, {s('t1')}, v8
        v_add_u32 v9, {s('t1')}, v9
        v_add_u32 v22, 0x10000, v8
        v_add_u32 v23, 0x10000, v9
        s_lshr_b32 {s('t2')}, {s('lw')}, 1          ; wn
        """)
    if ph == 'P1':
        a.e(f"""
        s_lshl_b32 {s('t1')}, {s('lw')}, 13
        s_add_u32 {s('t1')}, {s('t1')}, {XPOOL}
        v_add_u32 v8, {s('t1')}, v8
        v_add_u32 v9, {s('t1')}, v9
        v_add_u32 v22, 0x10000, v8
        v_add_u32 v23, 0x10000, v9
        v_mov_b32 v10, v1
        v_add_u32 v11, 0x10000, v1
        s_mul_i32 {s('t1')}, {s('head')}, 80
        s_add_u32 {s('t1')}, {s('t1')}, {CS_QKV}
        v_lshlrev_b32 v4, 2, v2
        v_lshrrev_b32 v5, 2, v2
        v_min_u32 v5, 2, v5
        v_mul_u32_u24 v5, 2560, v5
        v_and_b32 v6, 3, v2
        v_lshl_add_u32 v5, v6, 2, v5
        """)
        for q in range(2):
            a.e(f'buffer_load_dword v{CSR+2*q}, v4, {s("WS",4)}, {s("t1")} offen offset:{q*2560}')
        a.e(f's_add_u32 {s("t3")}, {s("t1")}, 5120')
        a.e(f'buffer_load_dword v{CSR+4}, v4, {s("WS",4)}, {s("t3")} offen')
        a.e(f'buffer_load_dword v{CSR+6}, v5, {s("WS",4)}, {s("t1")} offen offset:64')
    elif ph == 'P4':
        a.e(f"""
        s_mul_i32 {s('t1')}, {s('t2')}, 3072
        v_add_u32 v10, {s('t1')}, v1
        v_add_u32 v11, 0x10000, v10
        s_mul_i32 {s('t1')}, {s('j')}, 768
        s_mul_i32 {s('t3')}, {s('t2')}, 192
        s_add_u32 {s('t1')}, {s('t1')}, {s('t3')}
        s_add_u32 {s('t1')}, {s('t1')}, {CS_GU}
        v_lshlrev_b32 v4, 4, v3
        """)
        for q in range(3):
            a.e(f'buffer_load_dwordx4 {vr(CSR+4*q,4)}, v4, {s("WS",4)}, {s("t1")} offen offset:{q*64}')
            a.e(f'buffer_load_dwordx4 {vr(CSR+12+4*q,4)}, v4, {s("WS",4)}, {s("t1")} offen offset:{384+q*64}')
    else:
        a.e(f"""
        s_lshl_b32 {s('t1')}, {s('lw')}, 10
        s_add_u32 {s('t1')}, {s('t1')}, {XPOOL}
        v_add_u32 v8, {s('t1')}, v1
        v_mov_b32 v10, v1
        v_add_u32 v11, 0x10000, v1
        """)
    for i in range(nacc):
        a.e(f'v_mov_b32 v{ACC+i}, 0')
    def wa(lo, hi, off):
        return (f'v{hi}', off - 0x10000) if off >= 0x10000 else (f'v{lo}', off)
    def reads(st, t, m):
        xo = (t % CX) * Xb
        wo = WPOOL + (t % CW) * Wb
        xs, ws = [], []
        for ms in range(MS):
            sx = m*MS + ms
            if ph in ('P1', 'P4'):
                for tt in range(4):
                    r_, o_ = wa(8+sx, 22+sx, xo + tt*2048)
                    xs.append(f'ds_read_b128 {vr(xf(st,ms,tt),4)}, {r_} offset:{o_}')
            else:
                xs.append(f'ds_read_b128 {vr(xf(st,ms,0),4)}, v8 offset:{xo + sx*4096}')
            if ph == 'P1':
                for q in range(4):
                    r_, o_ = wa(10, 11, wo + (sx*4 + q)*1024)
                    ws.append(f'ds_read_b128 {vr(wf(st,ms,q),4)}, {r_} offset:{o_}')
            elif ph == 'P4':
                for q in range(6):
                    ct = q if q < 3 else 6 + (q - 3)
                    r_, o_ = wa(10, 11, wo + (sx*12 + ct)*1024)
                    ws.append(f'ds_read_b128 {vr(wf(st,ms,q),4)}, {r_} offset:{o_}')
            else:
                for q in range(5):
                    r_, o_ = wa(10, 11, wo + (sx*5 + q)*1024)
                    ws.append(f'ds_read_b128 {vr(wf(st,ms,q),4)}, {r_} offset:{o_}')
        out = []
        if 'noreads' in DBG: return []
        while xs or ws:
            if xs: out.append(xs.pop(0))
            if ws: out.append(ws.pop(0))
        return out
    def mfmas(st):
        m = []
        if 'nomfma' in DBG: return ['s_nop 0'] * (MS*ntt*nct)
        for ms in range(MS):
            for tt in range(ntt):
                for q in range(nct):
                    A, B = (xf(st,ms,tt), wf(st,ms,q)) if ph == 'P1' else (wf(st,ms,q), xf(st,ms,tt))
                    m.append(f'v_mfma_f32_16x16x32_bf16 {vr(acc(tt,q),4)}, {vr(A,4)}, {vr(B,4)}, {vr(acc(tt,q),4)}')
        return m
    def interleave(ms_, rs, start=0):
        i = 0
        span = max(1, (len(ms_) - start) * 2 // 3)
        per = max(1, -(-len(rs) // span))
        for k, m in enumerate(ms_):
            a.e(m)
            if k >= start:
                for _ in range(per):
                    if i < len(rs):
                        a.e(rs[i]); i += 1
        while i < len(rs):
            a.e(rs[i]); i += 1
    NM = KS // MS
    a.e('s_barrier')
    a.stamp('C', f'{ph} B0')
    for r_ in reads(0, 0, 0): a.e(r_)
    st = 0
    for t in range(T):
        for m in range(NM):
            a.e('s_waitcnt lgkmcnt(0)')
            ms_ = mfmas(st)
            if m < NM - 1:
                interleave(ms_, reads(st ^ 1, t, m + 1))
            elif t < T - 1:
                nb = 2
                for x in ms_[:nb]: a.e(x)
                a.e('s_barrier')
                interleave(ms_[nb:], reads(st ^ 1, t + 1, 0))
            else:
                for x in ms_: a.e(x)
            st ^= 1
    a.stamp('C', f'{ph} loopend')
    a.e('s_barrier')
    a.nop(8)
    return dict(acc=acc, FR=FR, CSR=CSR)

def epilogue_P1(a, m):
    acc, FR, CSR = m['acc'], m['FR'], m['CSR']
    a.c('---- epilogue P1 (to LDS)')
    M4, R4 = FR, FR + 16
    a.e(f"""
    s_lshl_b32 {s('t3')}, {s('lw')}, 8
    v_lshl_add_u32 v4, v3, 4, {s('t3')}
    """)
    for tt in range(4):
        a.e(f'ds_read_b128 {vr(M4+tt*4,4)}, v4 offset:{M_ROWM + tt*64}')
        a.e(f'ds_read_b128 {vr(R4+tt*4,4)}, v4 offset:{M_ROWR + tt*64}')
    a.e(f"""
    s_mul_i32 {s('t3')}, {s('lw')}, 2560             ; 2w*1280
    v_and_b32 v5, 7, v2
    v_xor_b32 v5, v5, v3                             ; g ^ (j&7)
    v_lshlrev_b32 v5, 3, v5
    v_lshl_add_u32 v5, v2, 6, v5                     ; j*64 + phys*8
    s_add_u32 {s('t4')}, {s('t3')}, {QB_}
    v_add_u32 v8, {s('t4')}, v5
    v_xor_b32 v16, 32, v8
    s_add_u32 {s('t4')}, {s('t3')}, {KB + 10240}
    v_add_u32 v9, {s('t4')}, v5
    v_xor_b32 v17, 32, v9
    v_and_b32 v6, 1, v3
    v_mul_u32_u24 v6, 320, v6
    v_lshrrev_b32 v7, 1, v3
    v_lshl_add_u32 v6, v7, 3, v6                     ; (g&1)*320 + (g>>1)*8
    v_lshl_add_u32 v7, v2, 4, v6                     ; + j*16
    s_add_u32 {s('t4')}, {s('t3')}, {VB + 10240}
    v_add_u32 v10, {s('t4')}, v7
    ; tile3: d = 16 + (j&3) ; d&7 = j&3
    v_and_b32 v5, 3, v2
    v_add_u32 v7, 16, v5
    v_lshl_add_u32 v12, v7, 4, v6
    v_add_u32 v12, {s('t4')}, v12                    ; V lanes
    v_xor_b32 v5, v5, v3
    v_lshlrev_b32 v5, 3, v5
    v_lshl_add_u32 v11, v7, 6, v5                    ; d*64 + phys*8
    v_mov_b32 v5, {QB_}
    v_mov_b32 v6, {KB + 10240}
    v_cmp_gt_u32 vcc, 4, v2
    s_nop 1
    v_cndmask_b32 v5, v6, v5, vcc
    v_add_u32 v11, v11, v5
    v_add_u32 v11, {s('t3')}, v11
    v_xor_b32 v18, 32, v11
    v_mov_b32 v14, 1.0
    v_mov_b32 v15, {f32(QSCALE)}
    v_cndmask_b32 v14, v14, v15, vcc
    s_mov_b32 {s('c0')}, {f32(QSCALE)}
    s_mov_b32 s{S['c0']+1}, {f32(QSCALE)}
    s_mov_b32 {s('m0a')}, 0x00ff00ff
    s_mov_b32 s{S['m0a']+1}, 0x00ff00ff
    s_mov_b32 s58, 0x0f000f00
    s_mov_b32 s59, 0x0f000f00
    s_waitcnt vmcnt(0) lgkmcnt(0)
    """)
    for i in range(0, 16, 2):
        a.e(f'v_pk_mul_f32 {vr(M4+i,2)}, {vr(M4+i,2)}, {vr(R4+i,2)}')
    PK = FR + 32
    TMP = FR + 72
    units = [(tt, q) for tt in range(4) for q in range(4)]
    def st1(k):
        tt, q = units[k]; T = TMP + (k & 1)*4
        return [f'v_pk_mul_f32 {vr(T+i,2)}, {vr(M4+tt*4+i,2)}, {vr(CSR+2*q,2)} op_sel_hi:[1,0]' for i in (0, 2)]
    def st2(k):
        tt, q = units[k]; T = TMP + (k & 1)*4; A = acc(tt, q)
        return [f'v_pk_fma_f32 {vr(A+i,2)}, {vr(R4+tt*4+i,2)}, {vr(A+i,2)}, {vr(T+i,2)} neg_lo:[0,0,1] neg_hi:[0,0,1]' for i in (0, 2)]
    def st3(k):
        tt, q = units[k]; A = acc(tt, q)
        if q == 0: return [f'v_pk_mul_f32 {vr(A+i,2)}, {vr(A+i,2)}, {s("c0",2)}' for i in (0, 2)]
        if q == 3: return [f'v_pk_mul_f32 {vr(A+i,2)}, {vr(A+i,2)}, v[14:15] op_sel_hi:[1,0]' for i in (0, 2)]
        return []
    def st4(k):
        tt, q = units[k]; A = acc(tt, q); p = PK + (k % 8)*2
        return [f'v_cvt_pk_bf16_f32 v{p}, v{A}, v{A+1}', f'v_cvt_pk_bf16_f32 v{p+1}, v{A+2}, v{A+3}']
    def st5(k):
        tt, q = units[k]; p = PK + (k % 8)*2
        oqk = (tt >> 1)*1280
        ov = (tt >> 1)*1280 + (tt & 1)*640
        m_ = tt & 1
        if q == 0: return [f'ds_write_b64 v{16 if m_ else 8}, {vr(p,2)} offset:{oqk}']
        if q == 1: return [f'ds_write_b64 v{17 if m_ else 9}, {vr(p,2)} offset:{oqk}']
        if q == 2: return [f'ds_write_b64 v10, {vr(p,2)} offset:{ov}']
        return [f's_mov_b64 exec, {s("m0a",2)}', f'ds_write_b64 v{18 if m_ else 11}, {vr(p,2)} offset:{oqk}',
                's_mov_b64 exec, s[58:59]', f'ds_write_b64 v12, {vr(p,2)} offset:{ov}', 's_mov_b64 exec, -1']
    n = len(units)
    a.stamp('C', 'epi setup')
    for k in range(n + 4):
        for f_, d in ((st1, 0), (st2, 1), (st3, 2), (st4, 3), (st5, 4)):
            kk = k - d
            if 'nodsw' in DBG and f_ is st5: continue
            if 'nomath' in DBG and f_ is not st5: continue
            if 0 <= kk < n:
                for x in f_(kk): a.e(x)
    a.stamp('C', 'epi issued')
    a.e('s_waitcnt lgkmcnt(0)')

def kv_copy_out(a):
    a.c('---- kv copy out')
    a.e(f"""
    s_lshl_b32 {s('t1')}, {s('blk')}, 5
    s_add_u32 {s('t1')}, {s('t1')}, {s('head')}
    s_mul_i32 {s('t1')}, {s('t1')}, 20480
    s_add_u32 {s('t1')}, {s('t1')}, {s('lb')}
    s_add_u32 {s('t1')}, {s('t1')}, {oKV}
    s_lshl_b32 {s('t2')}, {s('wave')}, 10
    s_add_u32 {s('t1')}, {s('t1')}, {s('t2')}
    s_add_u32 {s('t3')}, {s('t2')}, {KB + 10240}       ; i=0: p = wave (<8) -> K
    v_add_u32 v4, {s('t3')}, v1
    ds_read_b128 v[16:19], v4
    s_add_u32 {s('t3')}, {s('t2')}, {KB + 10240 + 8192}
    s_add_u32 {s('t4')}, {s('t2')}, {VB + 10240 - 2048}
    s_cmp_lt_u32 {s('wave')}, 2
    s_cselect_b32 {s('t3')}, {s('t3')}, {s('t4')}
    v_add_u32 v5, {s('t3')}, v1
    ds_read_b128 v[20:23], v5
    s_add_u32 {s('t3')}, {s('t2')}, {VB + 10240 + 6144}
    v_add_u32 v6, {s('t3')}, v1
    ds_read_b128 v[24:27], v6
    s_waitcnt lgkmcnt(2)
    buffer_store_dwordx4 v[16:19], v1, {s('WS',4)}, {s('t1')} offen {SC1}
    s_add_u32 {s('t1')}, {s('t1')}, 8192
    s_waitcnt lgkmcnt(1)
    buffer_store_dwordx4 v[20:23], v1, {s('WS',4)}, {s('t1')} offen {SC1}
    s_add_u32 {s('t1')}, {s('t1')}, 8192
    s_waitcnt lgkmcnt(0)
    """)
    lab = a.newlabel('Lkv')
    a.e(f"""
    s_cmp_ge_u32 {s('wave')}, 4
    s_cbranch_scc1 {lab}
    buffer_store_dwordx4 v[24:27], v1, {s('WS',4)}, {s('t1')} offen {SC1}
    {lab}:
    s_waitcnt vmcnt(0)
    """)

def epilogue_P4(a, m):
    acc, FR, CSR = m['acc'], m['FR'], m['CSR']
    a.c('---- epilogue P4')
    MM, RR = FR, FR + 8
    CG, CU = CSR, CSR + 12
    a.e(f"""
    s_and_b32 {s('t1')}, {s('lw')}, 1
    s_lshr_b32 {s('t2')}, {s('lw')}, 1
    s_lshl_b32 {s('t3')}, {s('t1')}, 8
    v_lshl_add_u32 v4, v2, 2, {s('t3')}
    """)
    for tt in range(4):
        a.e(f'ds_read_b32 v{MM+2*tt}, v4 offset:{M_ROWM + tt*64}')
        a.e(f'ds_read_b32 v{RR+2*tt}, v4 offset:{M_ROWR + tt*64}')
    a.e(f"""
    s_lshl_b32 {s('t3')}, {s('r')}, 1
    s_add_u32 {s('t3')}, {s('t3')}, {s('t1')}
    s_mul_i32 {s('t3')}, {s('t3')}, 196608
    s_add_u32 {s('t3')}, {s('t3')}, {s('lb')}
    s_add_u32 {s('t3')}, {s('t3')}, {oH}
    s_mul_i32 {s('t4')}, {s('j')}, 12
    s_mul_i32 {s('t5')}, {s('t2')}, 6
    s_add_u32 {s('t4')}, {s('t4')}, {s('t5')}
    v_lshrrev_b32 v4, 1, v3
    v_add_u32 v4, {s('t4')}, v4
    v_and_b32 v5, 1, v3
    v_lshlrev_b32 v5, 10, v5
    v_lshl_add_u32 v5, v2, 4, v5
    """)
    AD = 8
    for q in range(3):
        a.e(f"""
        v_add_u32 v6, {2*q}, v4
        v_lshrrev_b32 v7, 2, v6
        v_lshlrev_b32 v7, 12, v7
        v_and_b32 v6, 3, v6
        v_lshl_add_u32 v7, v6, 8, v7
        v_add_u32 v{AD+q}, v7, v5
        """)
    a.e('s_waitcnt vmcnt(0) lgkmcnt(0)')
    for tt in range(4):
        a.e(f'v_mul_f32 v{RR+2*tt}, v{RR+2*tt}, v{RR+2*tt}')
    PK = FR + 16
    def pk(u, q): return PK + (u*3 + q)*4
    for u in range(2):
        for q in range(3):
            for tt in (2*u, 2*u+1):
                G, U = acc(tt, q), acc(tt, 3+q)
                for i in (0, 2):
                    a.e(f'v_pk_fma_f32 {vr(G+i,2)}, {vr(MM+2*tt,2)}, {vr(CG+q*4+i,2)}, {vr(G+i,2)} op_sel_hi:[0,1,1] neg_lo:[1,0,0] neg_hi:[1,0,0]')
                    a.e(f'v_pk_fma_f32 {vr(U+i,2)}, {vr(MM+2*tt,2)}, {vr(CU+q*4+i,2)}, {vr(U+i,2)} op_sel_hi:[0,1,1] neg_lo:[1,0,0] neg_hi:[1,0,0]')
                for i in (0, 2):
                    a.e(f'v_pk_mul_f32 {vr(G+i,2)}, {vr(G+i,2)}, {vr(U+i,2)}')
                for i in (0, 2):
                    a.e(f'v_pk_mul_f32 {vr(G+i,2)}, {vr(G+i,2)}, {vr(RR+2*tt,2)} op_sel_hi:[1,0]')
                p = pk(u, q) + 2*(tt & 1)
                a.e(f'v_cvt_pk_bf16_f32 v{p}, v{G}, v{G+1}')
                a.e(f'v_cvt_pk_bf16_f32 v{p+1}, v{G+2}, v{G+3}')
            p = pk(u, q)
            o = f' offset:{u*2048}' if u else ''
            a.e(f"""
            s_nop 1
            v_permlane16_swap_b32 v{p}, v{p+2}
            v_permlane16_swap_b32 v{p+1}, v{p+3}
            s_nop 1
            buffer_store_dwordx4 {vr(p,4)}, v{AD+q}, {s("WS",4)}, {s("t3")} offen{o} {SC1}
            """)

def epilogue_P35(a, m, ph):
    acc, FR = m['acc'], m['FR']
    a.c(f'---- epilogue {ph}')
    if ph == 'P3':
        a.e('s_waitcnt vmcnt(0)')
    for ct in range(5):
        A = acc(0, ct)
        R = RESID + 2*ct
        a.e(f"""
        v_lshlrev_b32 v4, 16, v{R}
        v_and_b32 v5, 0xffff0000, v{R}
        v_lshlrev_b32 v6, 16, v{R+1}
        v_and_b32 v7, 0xffff0000, v{R+1}
        v_pk_add_f32 {vr(A,2)}, {vr(A,2)}, v[4:5]
        v_pk_add_f32 {vr(A+2,2)}, {vr(A+2,2)}, v[6:7]
        v_cvt_pk_bf16_f32 v{R}, v{A}, v{A+1}
        v_cvt_pk_bf16_f32 v{R+1}, v{A+2}, v{A+3}
        """)
    PK = FR
    for pr in range(2):
        for i in range(4):
            a.e(f'v_mov_b32 v{PK+pr*4+i}, v{RESID+pr*4+i}')
    AD = FR + 8
    lo = a.newlabel('Lout'); le = a.newlabel('Le35')
    if ph == 'P5':
        a.e(f's_cmp_eq_u32 {s("layer")}, 1\ns_cbranch_scc1 {lo}')
    xo = oX1 if ph == 'P3' else oX2
    sto = oST1 if ph == 'P3' else oST2
    a.e(f"""
    s_mul_i32 {s('t3')}, {s('r')}, 163840
    s_add_u32 {s('t3')}, {s('t3')}, {s('lb')}
    s_add_u32 {s('t3')}, {s('t3')}, {xo}
    s_and_b32 {s('t4')}, {s('rb64')}, 1
    s_lshl_b32 {s('t4')}, {s('t4')}, 2
    s_add_u32 {s('t4')}, {s('t4')}, {s('lw')}
    s_lshl_b32 {s('t4')}, {s('t4')}, 11
    s_add_u32 {s('t3')}, {s('t3')}, {s('t4')}
    s_mul_i32 {s('t4')}, {s('cb')}, 10
    v_and_b32 v4, 1, v3
    v_lshrrev_b32 v5, 1, v3
    v_lshl_add_u32 v6, v4, 1, v5
    v_add_u32 v6, {s('t4')}, v6
    v_add_u32 v7, {s('t4')}, v5
    v_permlane16_swap_b32 v{PK}, v{PK+2}
    v_permlane16_swap_b32 v{PK+1}, v{PK+3}
    v_permlane16_swap_b32 v{PK+4}, v{PK+6}
    v_permlane16_swap_b32 v{PK+5}, v{PK+7}
    """)
    for pr in range(2):
        a.e(f"""
        v_add_u32 v8, {4*pr}, v6
        v_lshrrev_b32 v9, 3, v8
        v_lshlrev_b32 v9, 14, v9
        v_and_b32 v8, 7, v8
        v_lshl_add_u32 v9, v8, 8, v9
        v_lshl_add_u32 v{AD+pr}, v2, 4, v9
        buffer_store_dwordx4 {vr(PK+pr*4,4)}, v{AD+pr}, {s("WS",4)}, {s("t3")} offen {SC1}
        """)
    a.e(f"""
    v_add_u32 v8, 8, v7
    v_lshrrev_b32 v9, 3, v8
    v_lshlrev_b32 v9, 14, v9
    v_and_b32 v8, 7, v8
    v_lshl_add_u32 v9, v8, 8, v9
    v_lshl_add_u32 v9, v2, 4, v9
    v_lshl_add_u32 v{AD+2}, v4, 3, v9
    buffer_store_dwordx2 {vr(RESID+8,2)}, v{AD+2}, {s("WS",4)}, {s("t3")} offen {SC1}
    s_mov_b32 {s('c0')}, 0x3f803f80
    v_mov_b32 v12, 0
    v_mov_b32 v13, 0
    """)
    for i in range(10):
        a.e(f'v_dot2_f32_bf16 v12, v{RESID+i}, {s("c0")}, v12')
        a.e(f'v_dot2_f32_bf16 v13, v{RESID+i}, v{RESID+i}, v13')
    a.e(f"""
    s_nop 2
    v_mov_b32 v14, v12
    v_mov_b32 v15, v13
    s_nop 1
    v_permlane16_swap_b32 v12, v14
    v_permlane16_swap_b32 v13, v15
    s_nop 1
    v_add_f32 v12, v12, v14
    v_add_f32 v13, v13, v15
    v_mov_b32 v14, v12
    v_mov_b32 v15, v13
    s_nop 1
    v_permlane32_swap_b32 v12, v14
    v_permlane32_swap_b32 v13, v15
    s_nop 1
    v_add_f32 v12, v12, v14
    v_add_f32 v13, v13, v15
    s_lshl_b32 {s('t3')}, {s('rb64')}, 2
    s_add_u32 {s('t3')}, {s('t3')}, {s('lw')}
    s_lshl_b32 {s('t3')}, {s('t3')}, 3
    s_add_u32 {s('t3')}, {s('t3')}, {s('cb')}
    s_lshl_b32 {s('t3')}, {s('t3')}, 7
    s_add_u32 {s('t3')}, {s('t3')}, {s('lb')}
    s_add_u32 {s('t3')}, {s('t3')}, {sto}
    v_lshlrev_b32 v4, 3, v2
    s_mov_b64 exec, 0xffff
    buffer_store_dwordx2 v[12:13], v4, {s("WS",4)}, {s("t3")} offen {SC1}
    s_mov_b64 exec, -1
    """)
    if ph == 'P5':
        a.e(f"""
        s_branch {le}
        {lo}:
        s_lshl_b32 {s('t3')}, {s('rb64')}, 2
        s_add_u32 {s('t3')}, {s('t3')}, {s('lw')}
        s_mul_i32 {s('t3')}, {s('t3')}, {16*1280}
        s_mul_i32 {s('t4')}, {s('cb')}, 160
        s_add_u32 {s('t3')}, {s('t3')}, {s('t4')}
        v_mul_u32_u24 v6, 1280, v2
        v_and_b32 v4, 1, v3
        v_lshrrev_b32 v5, 1, v3
        v_lshl_add_u32 v7, v4, 5, v6
        v_lshl_add_u32 v7, v5, 4, v7
        v_lshl_add_u32 v8, v3, 3, v6
        v_permlane16_swap_b32 v{PK}, v{PK+2}
        v_permlane16_swap_b32 v{PK+1}, v{PK+3}
        v_permlane16_swap_b32 v{PK+4}, v{PK+6}
        v_permlane16_swap_b32 v{PK+5}, v{PK+7}
        s_nop 1
        buffer_store_dwordx4 {vr(PK,4)}, v7, {s('OUT',4)}, {s('t3')} offen
        buffer_store_dwordx4 {vr(PK+4,4)}, v7, {s('OUT',4)}, {s('t3')} offen offset:64
        buffer_store_dwordx2 {vr(RESID+8,2)}, v8, {s('OUT',4)}, {s('t3')} offen offset:128
        {le}:
        """)

M_SIG = MISC + 2048
def lds_spin(a, addr_off, val_s):
    lp = a.newlabel('Lspin')
    a.e(f"""
    v_mov_b32 v4, {addr_off}
    {lp}:
    ds_read_b32 v5, v4
    s_waitcnt lgkmcnt(0)
    v_readfirstlane_b32 {s('t0')}, v5
    s_cmp_lg_u32 {s('t0')}, {val_s}
    s_cbranch_scc1 {lp}
    """)

def attention_phase(a, role, prefetch_cb=None):
    a.c('---- attention')
    SA, SBt = 16, 32
    CM = 48
    C0, C8 = 64, 80
    OB = 96
    KF = 112
    VF = 168
    QF = 184
    PB = 192
    vKa, vKb, vVa, vq, vneg, vzero, vm = 'v8', 'v9', 'v10', 'v11', 'v12', 'v13', 'v14'
    if role == 'C':
        ls = a.newlabel('Lsa')
        a.e(f"""
        s_cmp_ge_u32 {s('wave')}, 2
        s_cbranch_scc1 {ls}
        s_lshl_b32 {s('t1')}, {s('blk')}, 5
        s_add_u32 {s('t1')}, {s('t1')}, {s('head')}
        s_mul_i32 {s('t1')}, {s('t1')}, 20480
        s_add_u32 {s('t1')}, {s('t1')}, {s('lb')}
        s_add_u32 {s('t1')}, {s('t1')}, {oKV}
        s_mul_i32 {s('t2')}, {s('wave')}, 10240
        s_add_u32 {s('t1')}, {s('t1')}, {s('t2')}
        s_mul_i32 {s('t3')}, {s('wave')}, 20480
        s_add_u32 {s('t3')}, {s('t3')}, {KB + 10240}
        v_add_u32 v4, {s('t3')}, v1
        """)
        for p in range(10):
            a.e(f'ds_read_b128 {vr(16+4*p,4)}, v4 offset:{p*1024}')
        for p in range(10):
            if p % 4 == 0 and p: a.e(f's_add_u32 {s("t1")}, {s("t1")}, 4096')
            a.e(f's_waitcnt lgkmcnt({9-p})')
            o = f' offset:{(p%4)*1024}' if p % 4 else ''
            a.e(f'buffer_store_dwordx4 {vr(16+4*p,4)}, v1, {s("WS",4)}, {s("t1")} offen{o} {SC1}')
        a.e('s_nop 1')
        a.label(ls)
    a.e(f"""
    s_sub_u32 {s('t2')}, 11, {s('wave')}
    s_cmp_lt_u32 {s('wave')}, 4
    s_cselect_b32 {s('qt')}, {s('wave')}, {s('t2')}
    s_mul_i32 {s('t4')}, {s('qt')}, 1280
    s_add_u32 {s('t3')}, {s('t4')}, {KB}
    v_lshrrev_b32 v4, 1, v3
    v_bfe_u32 v5, v0, 2, 2
    v_and_b32 v6, 3, v0
    v_and_b32 v7, 1, v3
    v_lshl_add_u32 v7, v7, 2, v6
    v_xor_b32 v7, v7, v5
    v_lshlrev_b32 v7, 3, v7
    v_lshl_add_u32 v6, v4, 3, v5
    v_lshl_add_u32 {vKa}, v6, 6, v7
    v_add_u32 v6, 16, v5
    v_lshl_add_u32 {vKb}, v6, 6, v7
    s_add_u32 {s('t5')}, {s('t4')}, {QB_}
    v_add_u32 v208, {s('t5')}, {vKa}
    v_add_u32 v209, {s('t5')}, {vKb}
    v_xor_b32 v210, 32, v208
    v_add_u32 {vKa}, {s('t3')}, {vKa}
    v_add_u32 {vKb}, {s('t3')}, {vKb}
    v_xor_b32 v15, 32, {vKa}
    ds_read_b64_tr_b16 {vr(QF,2)}, v208
    ds_read_b64_tr_b16 {vr(QF+2,2)}, v210 offset:256
    ds_read_b64_tr_b16 {vr(QF+4,2)}, v209
    v_and_b32 v6, 31, v0
    v_mul_u32_u24 v7, 320, v4
    v_lshl_add_u32 {vVa}, v6, 4, v7
    s_add_u32 {s('t3')}, {s('t3')}, 20480
    v_add_u32 {vVa}, {s('t3')}, {vVa}
    v_lshlrev_b32 v7, 2, v4
    v_sub_u32 {vq}, v6, v7
    v_mov_b32 {vneg}, {f32(NEG)}
    v_mov_b32 {vzero}, 0
    s_sub_u32 {s('c2')}, 8, {s('qt')}
    s_sub_u32 {s('c3')}, 7, {s('qt')}
    v_mov_b32 v7, 0x3f803f80
    v_cmp_eq_u32 vcc, 20, v6
    s_nop 1
    v_cndmask_b32 v7, 0, v7, vcc
    s_mov_b32 {s('m0a')}, 0xfffff
    s_mov_b32 s{S['m0a']+1}, 0xfffff
    """)
    def kf(t): return KF + t*6
    def kreads(t):
        k = kf(t)
        return [f'ds_read_b64_tr_b16 {vr(k,2)}, {vKa} offset:{t*1280}',
                f'ds_read_b64_tr_b16 {vr(k+2,2)}, v15 offset:{t*1280+256}',
                f'ds_read_b64_tr_b16 {vr(k+4,2)}, {vKb} offset:{t*1280}']
    def vreads(t, st):
        v = VF + st*8
        return [f's_mov_b64 exec, {s("m0a",2)}',
                f'ds_read_b128 {vr(v,4)}, {vVa} offset:{t*1280}',
                f'ds_read_b128 {vr(v+4,4)}, {vVa} offset:{t*1280+640}',
                's_mov_b64 exec, -1']
    def qk(t, D, C):
        k = kf(t)
        return [f'v_mfma_f32_32x32x16_bf16 {vr(D,16)}, {vr(k,4)}, {vr(QF,4)}, {C}',
                f'v_mfma_f32_32x32x8_bf16 {vr(D,16)}, {vr(k+4,2)}, {vr(QF+4,2)}, {vr(D,16)}']
    seqA = [8, 7, 6, 5, 4, 3, 2, 1]
    seqB = [0, 1, 2, 3, 4, 5, 6, 7]
    for t in seqA[:3]:
        for r_ in kreads(t): a.e(r_)
    for i in range(16):
        a.e(f'v_mov_b32 v{VF+i}, v7')
    for i in range(16):
        a.e(f'v_mov_b32 v{OB+i}, 0')
    for b in range(4):
        for i in range(4):
            reg = b*4 + i
            creg = 8*(reg >> 2) + (reg & 3)
            a.e(f'v_cmp_gt_i32 s[{64+2*i}:{65+2*i}], {creg}, {vq}')
        a.e('s_nop 1')
        for i in range(4):
            reg = b*4 + i
            a.e(f'v_cndmask_b32 v{C0+reg}, {vneg}, {vzero}, s[{64+2*i}:{65+2*i}]')
            a.e(f'v_cndmask_b32 v{C8+reg}, {vzero}, {vneg}, s[{64+2*i}:{65+2*i}]')
    a.e(f"""
    s_waitcnt lgkmcnt(9)
    s_mov_b32 exec_lo, 0
    v_mov_b32 v{QF+4}, 0
    v_mov_b32 v{QF+5}, 0
    s_mov_b32 exec_lo, -1
    """)
    ch = ['v4', 'v5', 'v6', 'v7']
    buf = [SA, SBt]
    def maxes(D):
        return [f'v_max3_f32 {ch[i & 3]}, {ch[i & 3]}, v{D+2*i}, v{D+2*i+1}' for i in range(8)]
    def part(seq, lim, masked_t, Cmask, first_reads_done):
        n = len(seq)
        ex1 = a.newlabel('Lx1'); ex2 = a.newlabel('Lx2')
        if not first_reads_done:
            for t in seq[:3]:
                for r_ in kreads(t): a.e(r_)
        for c_ in ch: a.e(f'v_mov_b32 {c_}, {vneg}')
        for i in range(16): a.e(f'v_mov_b32 v{buf[1]+i}, {vneg}')
        for k, t in enumerate(seq):
            a.e(f's_waitcnt lgkmcnt({min(6, (n - 1 - k) * 3)})')
            D = buf[k & 1]
            C = vr(Cmask, 16) if t == masked_t else '0'
            q1, q2 = qk(t, D, C)
            mx = maxes(buf[(k - 1) & 1]) if k >= 1 else []
            a.e(q1)
            if k + 3 < n:
                for r_ in kreads(seq[k + 3]): a.e(r_)
                if mx: a.nop(1)
            elif mx: a.nop(4)
            for x in mx[:4]: a.e(x)
            a.e(q2)
            for x in mx[4:]: a.e(x)
            if k < n - 1:
                a.e(f's_cmp_eq_u32 {lim}, {t}\ns_cbranch_scc1 {ex1}')
        a.label(ex1)
        a.nop(14)
        for x in maxes(buf[0]): a.e(x)
        for x in maxes(buf[1]): a.e(x)
        a.e(f"""
        v_max3_f32 v4, v4, v5, v6
        v_max_f32 v4, v4, v7
        v_mov_b32 v5, v4
        s_nop 1
        v_permlane32_swap_b32 v4, v5
        s_nop 1
        v_max_f32 v4, v4, v5
        """)
        if masked_t == 8:
            a.e(f'v_mov_b32 {vm}, v4')
        else:
            a.e(f"""
            v_max_f32 v4, v4, {vm}
            v_sub_f32 v5, {vm}, v4
            v_exp_f32 v5, v5
            v_mov_b32 {vm}, v4
            s_nop 0
            """)
            for i in range(16):
                a.e(f'v_mul_f32 v{OB+i}, v{OB+i}, v5')
        for i in range(16):
            a.e(f'v_sub_f32 v{CM+i}, 0, {vm}')
        for i in range(16):
            a.e(f'v_sub_f32 v{Cmask+i}, v{Cmask+i}, {vm}')
        a.e('s_waitcnt lgkmcnt(0)')
        def C2(t): return vr(Cmask, 16) if t == masked_t else vr(CM, 16)
        def pv(k):
            v = VF + (k & 1)*8; P = PB + (k & 1)*8
            return [f'v_mfma_f32_32x32x16_bf16 {vr(OB,16)}, {vr(v,4)}, {vr(P,4)}, {vr(OB,16)}',
                    f'v_mfma_f32_32x32x16_bf16 {vr(OB,16)}, {vr(v+4,4)}, {vr(P+4,4)}, {vr(OB,16)}']
        for r_ in vreads(seq[0], 0): a.e(r_)
        for x in qk(seq[0], buf[0], C2(seq[0])): a.e(x)
        stubs = []
        for k, t in enumerate(seq):
            D = buf[k & 1]
            P = PB + (k & 1)*8
            nq = qk(seq[k+1], buf[(k+1) & 1], C2(seq[k+1])) if k < n - 1 else []
            pp = pv(k - 1) if k >= 1 else []
            ml = []
            if nq: ml.append(nq[0])
            if pp: ml.append(('wait', pp[0]))
            if nq: ml.append(nq[1])
            if pp: ml.append(pp[1])
            if k == 0: a.nop(12)
            slots = {0: [], 4: [], 8: [], 12: []}
            for idx, m_ in enumerate(ml): slots[4*idx].append(m_)
            for i in range(16):
                for m_ in slots.get(i, []):
                    if isinstance(m_, tuple):
                        a.e('s_waitcnt lgkmcnt(2)')
                        a.e(m_[1])
                    else:
                        a.e(m_)
                if i == 9 and k < n - 1:
                    pass
                a.e(f'v_exp_f32 v{D+i}, v{D+i}')
                if i % 2 == 1 and i >= 3:
                    a.e(f'v_cvt_pk_bf16_f32 v{P+(i-3)//2}, v{D+i-3}, v{D+i-2}')
            a.e('s_nop 0')
            a.e(f'v_cvt_pk_bf16_f32 v{P+7}, v{D+14}, v{D+15}')
            if k < n - 1:
                for r_ in vreads(seq[k+1], (k+1) & 1): a.e(r_)
                st = a.newlabel('Lst')
                a.e(f's_cmp_eq_u32 {lim}, {t}\ns_cbranch_scc1 {st}')
                stubs.append((st, k))
            else:
                a.e('s_waitcnt lgkmcnt(0)\ns_nop 0')
                for x in pv(k): a.e(x)
        a.e(f's_branch {ex2}')
        for st, k in stubs:
            a.label(st)
            a.e('s_waitcnt lgkmcnt(0)\ns_nop 0')
            for x in pv(k): a.e(x)
            a.e(f's_branch {ex2}')
        a.label(ex2)
        a.e('s_waitcnt lgkmcnt(0)')
    part(seqA, s('c2'), 8, C8, True)
    a.stamp(role, 'attn partA')
    if role == 'C':
        ls = a.newlabel('Lsb'); l1 = a.newlabel('Lsb1'); lj = a.newlabel('Lsbj'); lnp = a.newlabel('Lsbn')
        a.e(f"""
        s_cmp_ge_u32 {s('wave')}, 2
        s_cbranch_scc1 {ls}
        s_waitcnt vmcnt(0)
        s_add_u32 {s('t5')}, {s('layer')}, 1
        s_cmp_eq_u32 {s('wave')}, 0
        s_cbranch_scc0 {l1}
        """)
        lds_spin(a, M_SIG, s('t5'))
        flag_store(a, 0)
        lp = a.newlabel('Lpp')
        a.e(f"""
        s_cmp_eq_u32 {s('blk')}, 0
        s_cbranch_scc1 {lnp}
        s_lshl_b32 {s('t0')}, {s('j')}, 2
        s_add_u32 {s('t0')}, {s('t0')}, {s('flb')}
        s_sub_u32 {s('t0')}, {s('t0')}, 1024
        v_mov_b32 v4, {s('t0')}
        s_mov_b64 exec, 1
        {lp}:
        buffer_load_dword v5, v4, {s('WS',4)}, 0 offen sc1
        s_waitcnt vmcnt(0)
        v_cmp_ne_u32 vcc, {s('tag')}, v5
        s_cmp_eq_u64 vcc, 0
        s_cbranch_scc0 {lp}
        s_mov_b64 exec, -1
        {lnp}:
        v_mov_b32 v4, {M_SIG + 4}
        v_mov_b32 v5, {s('t5')}
        ds_write_b32 v4, v5
        s_branch {lj}
        {l1}:
        v_mov_b32 v4, {M_SIG}
        v_mov_b32 v5, {s('t5')}
        ds_write_b32 v4, v5
        """)
        lds_spin(a, M_SIG + 4, s('t5'))
        a.label(lj)
        La = Loader(a)
        lnd = a.newlabel('Lsbd')
        a.e(f"""
        s_cmp_eq_u32 {s('blk')}, 0
        s_cbranch_scc1 {lnd}
        s_lshl_b32 {s('t1')}, {s('blk')}, 5
        s_add_u32 {s('t1')}, {s('t1')}, {s('head')}
        s_sub_u32 {s('t1')}, {s('t1')}, 32
        s_mul_i32 {s('t1')}, {s('t1')}, 20480
        s_add_u32 {s('t1')}, {s('t1')}, {s('lb')}
        s_add_u32 {s('t1')}, {s('t1')}, {oKV}
        s_mul_i32 {s('t2')}, {s('wave')}, 10240
        s_add_u32 {s('t1')}, {s('t1')}, {s('t2')}
        s_mul_i32 {s('t3')}, {s('wave')}, 20480
        """)
        dma_linear(a, La, 'PK', s('WS', 4), s('t1'), 0, s('t3'), KB, 10, flags=SC1)
        a.e(f"""
        s_waitcnt vmcnt(0)
        {lnd}:
        """)
        a.label(ls)
    a.e('s_waitcnt lgkmcnt(0)')
    a.e('s_barrier')
    a.stamp(role, 'attn A1')
    if role == 'L' and prefetch_cb:
        prefetch_cb()
    lfin = a.newlabel('Lafin')
    a.e(f's_cmp_eq_u32 {s("blk")}, 0\ns_cbranch_scc1 {lfin}')
    part(seqB, s('c3'), 0, C0, False)
    a.label(lfin)
    a.nop(14)
    a.e(f"""
    v_mov_b32 v4, v{OB+8}
    v_mov_b32 v5, v{OB+8}
    s_nop 1
    v_permlane32_swap_b32 v4, v5
    s_nop 1
    v_rcp_f32 v5, v5
    s_nop 0
    """)
    for i in range(12):
        a.e(f'v_mul_f32 v{OB+i}, v{OB+i}, v5')
    P = PB
    for i in range(6):
        a.e(f'v_cvt_pk_bf16_f32 v{P+i}, v{OB+2*i}, v{OB+2*i+1}')
    a.e(f"""
    s_and_b32 {s('t1')}, {s('head')}, 1
    s_lshl_b32 {s('t3')}, {s('blk')}, 2
    s_lshr_b32 {s('t4')}, {s('qt')}, 1
    s_add_u32 {s('t3')}, {s('t3')}, {s('t4')}
    s_mul_i32 {s('t3')}, {s('t3')}, 81920
    s_add_u32 {s('t3')}, {s('t3')}, {s('lb')}
    s_add_u32 {s('t3')}, {s('t3')}, {oO}
    s_and_b32 {s('t4')}, {s('qt')}, 1
    s_lshl_b32 {s('t4')}, {s('t4')}, 11
    s_add_u32 {s('t3')}, {s('t3')}, {s('t4')}
    v_permlane32_swap_b32 v{P}, v{P+2}
    v_permlane32_swap_b32 v{P+1}, v{P+3}
    s_lshr_b32 {s('t4')}, {s('head')}, 1
    s_mul_i32 {s('t4')}, {s('t4')}, 5
    s_lshl_b32 {s('t5')}, {s('t1')}, 1
    s_add_u32 {s('t5')}, {s('t5')}, {s('t4')}
    v_and_b32 v4, 1, v3
    v_lshlrev_b32 v4, 10, v4
    v_lshl_add_u32 v4, v2, 4, v4
    v_lshrrev_b32 v5, 1, v3
    v_add_u32 v5, {s('t5')}, v5
    v_lshrrev_b32 v6, 2, v5
    v_lshlrev_b32 v6, 12, v6
    v_and_b32 v5, 3, v5
    v_lshl_add_u32 v6, v5, 8, v6
    v_add_u32 v6, v6, v4
    buffer_store_dwordx4 {vr(P,4)}, v6, {s('WS',4)}, {s('t3')} offen {SC1}
    s_add_u32 {s('t4')}, {s('t4')}, 4
    s_lshr_b32 {s('t5')}, {s('t4')}, 2
    s_lshl_b32 {s('t5')}, {s('t5')}, 12
    s_and_b32 {s('t4')}, {s('t4')}, 3
    s_lshl_b32 {s('t4')}, {s('t4')}, 8
    s_add_u32 {s('t5')}, {s('t5')}, {s('t4')}
    s_lshl_b32 {s('t4')}, {s('t1')}, 3
    s_add_u32 {s('t5')}, {s('t5')}, {s('t4')}
    v_add_u32 v7, {s('t5')}, v4
    s_mov_b32 exec_hi, 0
    buffer_store_dwordx2 {vr(P+4,2)}, v7, {s('WS',4)}, {s('t3')} offen {SC1}
    s_mov_b32 exec_hi, -1
    """)
    a.stamp(role, 'attn stores')
    a.e('s_waitcnt vmcnt(0)')
    a.stamp(role, 'attn drained')

def gen_main(a, stop_after=None, name='main_kernel'):
    a.begin_kernel(name)
    a.e(f"""
    s_cmp_ge_u32 s2, 256
    s_cbranch_scc1 LM_exit
    s_load_dwordx4 s[4:7], s[0:1], 0
    s_load_dwordx2 s[34:35], s[0:1], 56
    s_load_dwordx2 s[36:37], s[0:1], 72
    v_lshrrev_b32 v1, 6, v0
    s_nop 0
    v_readfirstlane_b32 {s('wave')}, v1
    v_and_b32 v0, 63, v0
    v_lshlrev_b32 v1, 4, v0
    v_and_b32 v2, 15, v0
    v_lshrrev_b32 v3, 4, v0
    s_waitcnt lgkmcnt(0)
    s_mov_b32 s8, s4
    s_mov_b32 s9, s5
    s_mov_b32 s10, 2621440
    s_mov_b32 s11, 0x20000
    s_mov_b32 s12, s6
    s_mov_b32 s13, s7
    s_mov_b32 s14, 2457600
    s_mov_b32 s15, 0x20000
    s_mov_b32 s16, s36
    s_mov_b32 s17, s37
    s_mov_b32 s18, {WS_BYTES}
    s_mov_b32 s19, 0x20000
    s_mov_b32 s20, s34
    s_mov_b32 s21, s35
    s_mov_b32 s22, 2621440
    s_mov_b32 s23, 0x20000
    s_mov_b32 s24, s4
    s_mov_b32 s25, s5
    s_mov_b32 s26, 2621440
    s_mov_b32 s27, 0x20000
    s_and_b32 {s('t0')}, s2, 7
    s_lshr_b32 {s('t1')}, s2, 3
    s_lshl_b32 {s('t2')}, {s('t0')}, 1
    s_lshr_b32 {s('t3')}, {s('t1')}, 4
    s_add_u32 {s('r')}, {s('t2')}, {s('t3')}
    s_and_b32 {s('j')}, {s('t1')}, 15
    s_mov_b32 {s('blk')}, {s('t0')}
    s_mov_b32 {s('head')}, {s('t1')}
    s_and_b32 {s('t2')}, {s('j')}, 1
    s_lshl_b32 {s('rb64')}, {s('r')}, 1
    s_add_u32 {s('rb64')}, {s('rb64')}, {s('t2')}
    s_lshr_b32 {s('cb')}, {s('j')}, 1
    s_and_b32 {s('lw')}, {s('wave')}, 3
    s_mov_b32 {s('layer')}, 0
    s_mov_b32 {s('tag')}, 1
    s_mov_b32 {s('lb')}, {LB0}
    s_lshl_b32 {s('flb')}, {s('r')}, 9
    s_add_u32 {s('flb')}, {s('flb')}, {FLAGS}
    s_mov_b32 s72, 0
    v_mov_b32 v245, 0
    """)
    a.stamp('C', 'start'); a.stampnames['L'].append('start')
    a.e(f"""
    s_cmp_ge_u32 {s('wave')}, 4
    s_cbranch_scc1 LM_loader
    """)
    def stop(p):
        return stop_after is not None and stop_after == p
    a.e(f"""
    s_lshl_b32 {s('t0')}, {s('rb64')}, 2
    s_add_u32 {s('t0')}, {s('t0')}, {s('lw')}
    s_mul_i32 {s('t0')}, {s('t0')}, {16*1280}
    s_mul_i32 {s('t1')}, {s('cb')}, 160
    s_add_u32 {s('t0')}, {s('t0')}, {s('t1')}
    v_mul_u32_u24 v4, 1280, v2
    v_lshl_add_u32 v4, v3, 3, v4
    """)
    for ct in range(5):
        a.e(f'buffer_load_dwordx2 {vr(RESID+2*ct,2)}, v4, {s("XIN",4)}, {s("t0")} offen offset:{32*ct}')
    a.e(f"""
    v_mov_b32 v4, {M_SIG}
    v_mov_b32 v6, 0
    v_mov_b32 v7, 0
    ds_write_b64 v4, v[6:7]
    s_waitcnt lgkmcnt(0)
    """)
    a.label('LC_layer')
    def cfin(ph_idx):
        a.stamp('C', 'stores issued')
        a.e('s_waitcnt vmcnt(0)')
        a.stamp('C', 'drained')
        if stop(ph_idx): a.e('s_branch LM_done')
        if ph_idx == 4:
            a.e(f's_cmp_eq_u32 {s("layer")}, 1\ns_cbranch_scc1 LM_done')
        a.e('s_barrier\ns_barrier')
    m = compute_gemm(a, 'P1'); epilogue_P1(a, m)
    a.stamp('C', 'P1 epi done')
    a.e('s_barrier')
    attention_phase(a, 'C')
    if stop(1): a.e('s_branch LM_done')
    a.e('s_barrier\ns_barrier')
    m = compute_gemm(a, 'P3'); epilogue_P35(a, m, 'P3'); cfin(2)
    m = compute_gemm(a, 'P4'); epilogue_P4(a, m); cfin(3)
    m = compute_gemm(a, 'P5'); epilogue_P35(a, m, 'P5'); cfin(4)
    a.e(f"""
    s_mov_b32 {s('layer')}, 1
    s_add_u32 {s('lb')}, {s('lb')}, {LSTRIDE}
    s_add_u32 {s('flb')}, {s('flb')}, {5*8192}
    s_branch LC_layer
    """)
    a.label('LM_loader')
    L = Loader(a)
    setup_W(a, 'P1')
    setup_X(a, 'P1')
    loader_gemm(a, L, 'P1', first=True)
    a.e('s_branch LL_afterP1')
    a.label('LL_layer')
    L2 = Loader(a)
    n0 = len(a.stampnames['L'])
    loader_gemm(a, L2, 'P1', first=False)
    a.l2names = a.stampnames['L'][n0:]
    del a.stampnames['L'][n0:]
    a.label('LL_afterP1')
    L = Loader(a)
    def prefetch(nxt):
        setup_W(a, nxt)
        for t in range(min(GE[nxt]['CW'], GE[nxt]['T'])):
            issue_W(a, L, nxt, t)
    a.e('s_barrier')
    attention_phase(a, 'L', prefetch_cb=lambda: prefetch('P3'))
    if stop(1): a.e('s_branch LM_done')
    L.drained()
    emit_sync(a, L, 1, 'pair', pre=lambda: setup_X(a, 'P3'))
    loader_gemm(a, L, 'P3')
    prefetch('P4')
    if stop(2): a.e('s_waitcnt vmcnt(0)\ns_branch LM_done')
    emit_sync(a, L, 2, 'own', pre=lambda: setup_X(a, 'P4'))
    loader_gemm(a, L, 'P4')
    prefetch('P5')
    if stop(3): a.e('s_waitcnt vmcnt(0)\ns_branch LM_done')
    emit_sync(a, L, 3, 'own', pre=lambda: setup_X(a, 'P5'))
    loader_gemm(a, L, 'P5')
    a.e(f's_cmp_eq_u32 {s("layer")}, 1\ns_cbranch_scc1 LM_done')
    prefetch('P1')
    if stop(4): a.e('s_waitcnt vmcnt(0)\ns_branch LM_done')
    emit_sync(a, L, 4, 'pair', pre=lambda: setup_X(a, 'P1', layer1=True))
    a.e(f"""
    s_mov_b32 {s('layer')}, 1
    s_add_u32 {s('lb')}, {s('lb')}, {LSTRIDE}
    s_add_u32 {s('flb')}, {s('flb')}, {5*8192}
    s_branch LL_layer
    LM_done:
    """)
    if a.stamps:
        a.stamp('X', 'end');
        a.e(f"""
        s_lshl_b32 {s('t0')}, s2, 3
        s_add_u32 {s('t0')}, {s('t0')}, {s('wave')}
        s_lshl_b32 {s('t0')}, {s('t0')}, 8
        s_add_u32 {s('t0')}, {s('t0')}, {TSB}
        v_lshlrev_b32 v4, 2, v0
        buffer_store_dword v245, v4, {s('WS',4)}, {s('t0')} offen
        """)
    a.e('LM_exit:\ns_endpgm')
    a.end_kernel(name, 256, 102, 256)
    a.launch(name, (256, 1, 1), (512, 1, 1), LDS_TOTAL)

if __name__ == '__main__':
    stop = int(sys.argv[1]) if len(sys.argv) > 1 and sys.argv[1] != 'none' else None
    out = sys.argv[2] if len(sys.argv) > 2 else 'main.s'
    a = Gen()
    a.stampnames['X'] = []
    if len(sys.argv) > 3 and sys.argv[3] == 'stamps':
        a.stamps = True
    if len(sys.argv) > 4:
        DBG.update(sys.argv[4].split(','))
    gen_prep(a)
    gen_main(a, stop_after=stop)
    open(out, 'w').write(a.text())
    if a.stamps:
        C = a.stampnames['C']; Ln = a.stampnames['L']
        cn = [C[0]] + C[1:] + C[1:] + ['end']
        k = 1 + len(a.l2names)
        rest = Ln[k:]
        ln = Ln[:k] + rest + a.l2names + rest[:-1] + ['end']
        json.dump({'C': cn, 'L': ln}, open('stampnames.json', 'w'))
    print('lines', len(a.lines))
```

```python
import sys, struct, json
sys.path.insert(0, 'gen')
from asmlib import *

FLAGS = 0
CS_QKV = 0x20000
CS_GU = 0x22000
ST0 = 0x30000
CSP = 0xA00000
EPOCH = 0x1F000
WO_P = 0x60000
WGU_P = WO_P + 819200
WD_P = WGU_P + 3932160
WQ_P = 0x700000
LB0 = 12 << 20
LSTRIDE = 24 << 20
oQ, oK, oV, oO, oX1, oH, oX2 = 0, 2621440, 5242880, 7864320, 10485760, 13107200, 19398656
oST1, oST2 = 22020096, 22151168
oKV = 0
WS_BYTES = 268435456
TSB = 200 << 20

MISC = 0
M_ROWM = MISC
M_ROWR = MISC + 1024
WPOOL, WPOOL_SZ = 4096, 81920
XPOOL, XPOOL_SZ = 86016, 77824
LDS_TOTAL = 163840
AD = 86016
KB, VB, QB_ = AD, AD + 20480, AD + 40960

LOG2E = 1.4426950408889634
QSCALE = LOG2E / (20 ** 0.5)
NEG = -1.0e30
SC1 = 'sc1'

def f32(x):
    return '0x%08x' % struct.unpack('<I', struct.pack('<f', x))[0]

S = dict(
    wg=2, wave=3,
    XIN=8, WQKV=12, WS=16, OUT=20, XCUR=24,
    r=28, j=29, layer=30, tag=31, lb=32, lw=33,
    t0=34, t1=35, t2=36, t3=37, t4=38, t5=39,
    wsrc=40, xsrc=41, wlds=42, xlds=43, xstride=44,
    stsrc=45, flb=46, xg2=47, blk=48, head=49, qt=50,
    rb64=52, cb=53,
    m0a=56, c0=60, c1=61, c2=62, c3=63,
)
def s(n, k=1):
    b = S[n]
    return f's{b}' if k == 1 else f's[{b}:{b+k-1}]'
def vr(b, n=1):
    return f'v{b}' if n == 1 else f'v[{b}:{b+n-1}]'

class Gen(Asm):
    stamps = False
    def __init__(self):
        super().__init__()
        self.stampnames = {'C': [], 'L': []}
    def nop(self, n):
        while n > 0:
            k = min(n, 16)
            self.e(f's_nop {k-1}')
            n -= k
    def stamp(self, role, name):
        if not self.stamps: return
        self.e("""
        s_memtime s[70:71]
        s_waitcnt lgkmcnt(0)
        s_mov_b32 m0, s72
        s_nop 0
        v_writelane_b32 v245, s70, m0
        s_add_u32 s72, s72, 1
        """)
        self.stampnames[role].append(name)

DBG = set()
class Loader:
    def __init__(self, a):
        self.a = a; self.q = []
    def issued(self, tag, n=1):
        self.q += [tag] * n
    def wait(self, tags):
        idx = -1
        for i, t in enumerate(self.q):
            if t in tags: idx = i
        if idx < 0: return
        n = len(self.q) - 1 - idx
        assert n <= 63, n
        if 'nowait' not in DBG: self.a.e(f's_waitcnt vmcnt({n})')
        self.q = self.q[idx+1:]
    def drained(self):
        self.q = []

GE = dict(
    P1=dict(T=10, KS=2, Wb=8192, CW=6, Xb=32768, CX=3, WP=4096, XP=53248),
    P1R=dict(T=10, KS=2, Wb=12288, CW=4, Xb=32768, CX=3, WP=4096, XP=53248),
    P3=dict(T=5, KS=4, Wb=20480, CW=4, Xb=16384, CX=3, WP=4096, XP=86016),
    P4=dict(T=10, KS=2, Wb=24576, CW=3, Xb=16384, CX=4, WP=4096, XP=86016),
    P5=dict(T=12, KS=4, Wb=20480, CW=4, Xb=16384, CX=4, WP=4096, XP=86016),
)

def dma_linear(a, L, tag, srd, sbase, goff, ldsbase_s, ldsoff, npieces, voff='v1', flags=''):
    p = 0
    while p < npieces:
        n = min(4, npieces - p)
        a.e(f's_add_u32 m0, {ldsbase_s}, {ldsoff + p*1024}')
        a.e(f's_add_u32 {s("t0")}, {sbase}, {goff + p*1024}')
        for i in range(n):
            o = f' offset:{i*1024}' if i else ''
            a.e(f'buffer_load_dwordx4 {voff}, {srd}, {s("t0")} offen{o} {flags} lds')
        L.issued(tag, n)
        p += n

def bf16_round(a, v, t):
    a.e(f'v_cvt_pk_bf16_f32 {t}, {v}, {v}\nv_lshlrev_b32 {v}, 16, {t}')

def gen_prep(a):
    name = 'prep_kernel'
    a.begin_kernel(name)
    NU = 1640
    NS = 128
    NC = 78
    NQ = 160
    NT = NU + NS + NC + NQ
    a.e(f"""
    s_cmp_ge_u32 s2, {NT}
    s_cbranch_scc1 LP_done
    s_load_dwordx4 s[40:43], s[0:1], 0     ; x, wqkv
    s_load_dwordx2 s[4:5], s[0:1], 16      ; wo
    s_load_dwordx4 s[8:11], s[0:1], 32
    s_load_dwordx2 s[6:7], s[0:1], 48      ; wd
    s_load_dwordx2 s[36:37], s[0:1], 72    ; ws
    v_mov_b32 v20, v0
    v_lshrrev_b32 v1, 6, v0
    s_nop 0
    v_readfirstlane_b32 s3, v1
    v_and_b32 v0, 63, v0
    s_waitcnt lgkmcnt(0)
    s_mov_b32 s16, s36
    s_mov_b32 s17, s37
    s_mov_b32 s18, {WS_BYTES}
    s_mov_b32 s19, 0x20000
    s_cmp_ge_u32 s2, {NU + NS + NC}
    s_cbranch_scc1 LP_wq
    s_cmp_ge_u32 s2, {NU + NS}
    s_cbranch_scc1 LP_colsum
    s_cmp_ge_u32 s2, {NU}
    s_cbranch_scc1 LP_rowstat
    s_cmp_lt_u32 s2, 80
    s_cbranch_scc0 LP_noz
    s_cmp_eq_u32 s3, 0
    s_cbranch_scc0 LP_noz
    v_lshlrev_b32 v2, 4, v0
    s_lshl_b32 s20, s2, 10
    v_mov_b32 v4, 0
    v_mov_b32 v5, 0
    v_mov_b32 v6, 0
    v_mov_b32 v7, 0
    buffer_store_dwordx4 v[4:7], v2, s[16:19], s20 offen
    LP_noz:
    s_cmp_lt_u32 s2, 480
    s_cbranch_scc1 LP_wg
    s_cmp_lt_u32 s2, 960
    s_cbranch_scc1 LP_wu
    s_cmp_lt_u32 s2, 1440
    s_cbranch_scc1 LP_wd
    s_sub_u32 s24, s2, 1440
    s_mul_i32 s22, s24, 6554
    s_lshr_b32 s22, s22, 16
    s_mul_i32 s25, s22, 10
    s_sub_u32 s23, s24, s25
    s_mov_b32 s12, s4
    s_mov_b32 s13, s5
    s_mov_b32 s14, 819200
    s_mov_b32 s21, 1280
    s_mov_b32 s26, 1
    s_mov_b32 s27, {WO_P}
    s_mov_b32 s28, {20*5*1024}
    s_branch LP_go5
    LP_wd:
    s_sub_u32 s24, s2, 960
    s_mul_i32 s22, s24, 6554
    s_lshr_b32 s22, s22, 16
    s_mul_i32 s25, s22, 10
    s_sub_u32 s23, s24, s25
    s_mov_b32 s12, s6
    s_mov_b32 s13, s7
    s_mov_b32 s14, 1966080
    s_mov_b32 s21, 1280
    s_mov_b32 s26, 0
    s_mov_b32 s27, {WD_P}
    s_mov_b32 s28, {48*5*1024}
    LP_go5:
    s_lshl_b32 s29, s23, 2
    s_add_u32 s29, s29, s3
    s_mul_i32 s30, s29, 13108
    s_lshr_b32 s30, s30, 16
    s_mul_i32 s31, s30, 5
    s_sub_u32 s31, s29, s31
    s_mul_i32 s30, s30, s28
    s_add_u32 s27, s27, s30
    s_mul_i32 s30, s22, 5120
    s_add_u32 s27, s27, s30
    s_lshl_b32 s31, s31, 10
    s_add_u32 s27, s27, s31
    s_branch LP_load
    LP_wg:
    s_mov_b32 s24, s2
    s_mov_b32 s12, s8
    s_mov_b32 s13, s9
    s_mov_b32 s32, 0
    s_branch LP_gu
    LP_wu:
    s_sub_u32 s24, s2, 480
    s_mov_b32 s12, s10
    s_mov_b32 s13, s11
    s_mov_b32 s32, 6144
    LP_gu:
    s_mov_b32 s14, 1966080
    s_mov_b32 s21, 3072
    s_mov_b32 s26, 0
    s_mul_i32 s22, s24, 2731
    s_lshr_b32 s22, s22, 16
    s_mul_i32 s25, s22, 24
    s_sub_u32 s23, s24, s25
    s_lshl_b32 s29, s23, 2
    s_add_u32 s29, s29, s3
    s_mul_i32 s30, s29, 10923
    s_lshr_b32 s30, s30, 16
    s_mul_i32 s31, s30, 6
    s_sub_u32 s31, s29, s31
    s_mul_i32 s27, s30, 245760
    s_add_u32 s27, s27, {WGU_P}
    s_mul_i32 s30, s22, 12288
    s_add_u32 s27, s27, s30
    s_add_u32 s27, s27, s32
    s_lshl_b32 s31, s31, 10
    s_add_u32 s27, s27, s31
    LP_load:
    s_mov_b32 s15, 0x20000
    v_lshrrev_b32 v2, 3, v0
    s_lshl_b32 s29, s3, 3
    v_add_u32 v2, s29, v2
    s_lshl_b32 s29, s22, 5
    v_add_u32 v2, s29, v2
    s_cmp_eq_u32 s26, 1
    s_cbranch_scc0 LP_noperm
    s_movk_i32 s29, 1639
    v_mul_u32_u24 v3, s29, v2
    v_lshrrev_b32 v3, 16, v3
    v_mul_u32_u24 v4, 40, v3
    v_sub_u32 v5, v2, v4
    v_mov_b32 v6, v5
    v_add_u32 v7, 4, v5
    v_cmp_le_u32 vcc, 16, v5
    s_nop 1
    v_cndmask_b32 v6, v6, v7, vcc
    v_subrev_u32 v7, 16, v5
    v_cmp_le_u32 vcc, 32, v5
    s_nop 1
    v_cndmask_b32 v6, v6, v7, vcc
    v_cmp_le_u32 vcc, 36, v5
    s_nop 1
    v_cndmask_b32 v6, v6, v5, vcc
    v_add_u32 v2, v4, v6
    LP_noperm:
    v_mul_lo_u32 v2, v2, s21
    v_and_b32 v3, 7, v0
    v_lshl_add_u32 v2, v3, 4, v2
    s_lshl_b32 s29, s23, 7
    s_lshl_b32 s30, s3, 10
    s_mov_b32 m0, s30
    s_nop 0
    buffer_load_dwordx4 v2, s[12:15], s29 offen lds
    s_waitcnt vmcnt(0)
    s_barrier
    v_lshrrev_b32 v3, 4, v0
    v_bfe_u32 v4, v0, 2, 2
    v_and_b32 v5, 3, v0
    v_lshl_add_u32 v6, v3, 3, v4
    v_lshlrev_b32 v6, 7, v6
    v_lshl_add_u32 v6, v5, 3, v6
    s_lshl_b32 s30, s3, 5
    v_add_u32 v6, s30, v6
    ds_read_b64_tr_b16 v[8:9], v6
    ds_read_b64_tr_b16 v[10:11], v6 offset:512
    s_waitcnt lgkmcnt(0)
    v_lshlrev_b32 v7, 4, v0
    buffer_store_dwordx4 v[8:11], v7, s[16:19], s27 offen
    s_endpgm
    ; ---------------- wqkv relayout: unit u = (wg-base)*4 + wave ; s = u/32, h = u%32
    LP_wq:
    s_sub_u32 s24, s2, {NU + NS + NC}
    s_lshl_b32 s24, s24, 2
    s_add_u32 s24, s24, s3
    s_lshr_b32 s22, s24, 5            ; s
    s_and_b32 s23, s24, 31            ; h
    s_mov_b32 s12, s42
    s_mov_b32 s13, s43
    s_mov_b32 s14, 2457600
    s_mov_b32 s15, 0x20000
    s_mul_i32 s25, s23, 40
    s_and_b32 s26, s25, 15            ; off0
    s_andn2_b32 s25, s25, 15
    s_mul_i32 s27, s22, {32*3840}
    s_add_u32 s27, s27, s25
    v_lshrrev_b32 v2, 2, v0
    v_mul_u32_u24 v2, 3840, v2
    v_and_b32 v3, 3, v0
    v_lshl_add_u32 v2, v3, 4, v2
    s_mul_i32 s28, s3, 6144
    """)
    for part in range(3):
        for p in range(2):
            a.e(f"""
            s_add_u32 m0, s28, {part*2048 + p*1024}
            s_add_u32 s29, s27, {part*1280 + p*16*3840}
            buffer_load_dwordx4 v2, s[12:15], s29 offen lds
            """)
    a.e(f"""
    s_waitcnt vmcnt(0)
    v_lshrrev_b32 v3, 4, v0
    v_bfe_u32 v4, v0, 2, 2
    v_and_b32 v5, 3, v0
    v_lshl_add_u32 v6, v3, 3, v4
    v_lshlrev_b32 v6, 6, v6
    s_add_u32 s28, s28, s26
    v_add_u32 v6, s28, v6
    v_lshl_add_u32 v7, v5, 3, v6       ; tiles 0..2
    v_min_u32 v5, 2, v5
    v_lshl_add_u32 v9, v5, 11, v6
    ds_read_b64_tr_b16 v[12:13], v7
    ds_read_b64_tr_b16 v[14:15], v7 offset:256
    ds_read_b64_tr_b16 v[16:17], v7 offset:2048
    ds_read_b64_tr_b16 v[18:19], v7 offset:2304
    ds_read_b64_tr_b16 v[20:21], v7 offset:4096
    ds_read_b64_tr_b16 v[22:23], v7 offset:4352
    ds_read_b64_tr_b16 v[24:25], v9 offset:32
    ds_read_b64_tr_b16 v[26:27], v9 offset:288
    s_waitcnt lgkmcnt(0)
    s_mul_i32 s27, s23, 81920
    s_lshl_b32 s29, s22, 12
    s_add_u32 s27, s27, s29
    s_add_u32 s27, s27, {WQ_P}
    v_lshlrev_b32 v7, 4, v0
    buffer_store_dwordx4 v[12:15], v7, s[16:19], s27 offen
    buffer_store_dwordx4 v[16:19], v7, s[16:19], s27 offen offset:1024
    buffer_store_dwordx4 v[20:23], v7, s[16:19], s27 offen offset:2048
    buffer_store_dwordx4 v[24:27], v7, s[16:19], s27 offen offset:3072
    s_endpgm
    LP_rowstat:
    s_sub_u32 s24, s2, {NU}
    s_mov_b32 s12, s40
    s_mov_b32 s13, s41
    s_mov_b32 s14, 2621440
    s_mov_b32 s15, 0x20000
    v_lshrrev_b32 v2, 4, v20
    v_and_b32 v3, 15, v20
    v_mul_u32_u24 v4, 1280, v2
    v_mul_u32_u24 v5, 80, v3
    v_add_u32 v4, v4, v5
    s_mul_i32 s25, s24, {16*1280}
    """)
    for i in range(5):
        a.e(f'buffer_load_dwordx4 v[{24+4*i}:{27+4*i}], v4, s[12:15], s25 offen offset:{16*i}')
    a.e("""
    v_mov_b32 v8, 0
    v_mov_b32 v9, 0
    s_mov_b32 s26, 0x3f803f80
    s_waitcnt vmcnt(0)
    """)
    for i in range(20):
        a.e(f'v_dot2_f32_bf16 v8, v{24+i}, s26, v8')
        a.e(f'v_dot2_f32_bf16 v9, v{24+i}, v{24+i}, v9')
    a.e('s_nop 4')
    for sh in (8, 4, 2, 1):
        a.e(f"""
        v_add_f32_dpp v8, v8, v8 row_ror:{sh}
        v_add_f32_dpp v9, v9, v9 row_ror:{sh}
        s_nop 1
        """)
    a.e(f"""
    v_cmp_eq_u32 vcc, 0, v3
    s_nop 1
    v_cndmask_b32 v8, 0, v8, vcc
    v_cndmask_b32 v9, 0, v9, vcc
    v_lshlrev_b32 v6, 7, v3
    v_lshl_add_u32 v6, v2, 3, v6
    s_lshl_b32 s25, s24, 10
    s_add_u32 s25, s25, {ST0}
    v_cmp_gt_u32 vcc, 8, v3
    s_and_saveexec_b64 s[30:31], vcc
    buffer_store_dwordx2 v[8:9], v6, s[16:19], s25 offen
    s_endpgm
    LP_colsum:
    s_sub_u32 s24, s2, {NU + NS}
    s_cmp_lt_u32 s24, 30
    s_cbranch_scc0 LP_cs_gu
    s_mov_b32 s12, s42
    s_mov_b32 s13, s43
    s_mov_b32 s14, 2457600
    s_mov_b32 s21, 3840
    s_lshl_b32 s25, s24, 7
    s_lshl_b32 s27, s24, 8
    s_add_u32 s27, s27, {CS_QKV}
    s_mov_b32 s28, 0
    s_branch LP_cs_go
    LP_cs_gu:
    s_sub_u32 s24, s24, 30
    s_mov_b32 s28, 1
    s_mov_b32 s29, 0
    s_cmp_lt_u32 s24, 24
    s_cbranch_scc1 LP_cs_g
    s_sub_u32 s24, s24, 24
    s_mov_b32 s12, s10
    s_mov_b32 s13, s11
    s_mov_b32 s29, 384
    s_branch LP_cs_g2
    LP_cs_g:
    s_mov_b32 s12, s8
    s_mov_b32 s13, s9
    LP_cs_g2:
    s_mov_b32 s14, 1966080
    s_mov_b32 s21, 3072
    s_lshl_b32 s25, s24, 7
    LP_cs_go:
    s_mov_b32 s15, 0x20000
    v_lshrrev_b32 v2, 3, v20
    v_and_b32 v3, 7, v20
    v_mul_u32_u24 v4, 20, v2
    v_mul_lo_u32 v4, v4, s21
    v_lshl_add_u32 v4, v3, 4, v4
    """)
    for i in range(8):
        a.e(f'v_mov_b32 v{8+i}, 0')
    for k0 in range(0, 20, 5):
        for i in range(5):
            a.e(f'buffer_load_dwordx4 v[{24+4*i}:{27+4*i}], v4, s[12:15], s25 offen')
            a.e(f'v_add_u32 v4, s21, v4')
        a.e('s_waitcnt vmcnt(0)')
        for i in range(5):
            for d in range(4):
                x = 24 + 4*i + d
                a.e(f"""
                v_lshlrev_b32 v5, 16, v{x}
                v_and_b32 v6, 0xffff0000, v{x}
                v_add_f32 v{8+2*d}, v{8+2*d}, v5
                v_add_f32 v{9+2*d}, v{9+2*d}, v6
                """)
    a.e(f"""
    v_lshlrev_b32 v5, 8, v2
    v_lshl_add_u32 v5, v3, 5, v5
    ds_write_b128 v5, v[8:11]
    ds_write_b128 v5, v[12:15] offset:16
    s_waitcnt lgkmcnt(0)
    s_barrier
    v_cmp_gt_u32 vcc, 64, v20
    s_and_saveexec_b64 s[30:31], vcc
    s_cbranch_execz LP_done
    v_lshlrev_b32 v5, 2, v20
    v_mov_b32 v8, 0
    """)
    for kg in range(32):
        a.e(f'ds_read_b32 v{24+(kg%8)}, v5 offset:{kg*256}')
        if kg % 8 == 7:
            a.e('s_waitcnt lgkmcnt(0)')
            for i in range(8): a.e(f'v_add_f32 v8, v8, v{24+i}')
    a.e(f"""
    s_cmp_eq_u32 s28, 0
    s_cbranch_scc0 LP_cs_gud
    buffer_store_dword v8, v5, s[16:19], s27 offen
    s_endpgm
    LP_cs_gud:
    ; col f = 64*s24 + t ; ft = f>>4 ; fb = ft/6 ; q = ft%6 ; dest = CS_GU + fb*768 + isU*384 + q*64 + (f&15)*4
    s_lshl_b32 s25, s24, 6
    v_add_u32 v6, s25, v20
    v_lshrrev_b32 v7, 4, v6
    s_movk_i32 s26, 10923
    v_mul_u32_u24 v9, s26, v7
    v_lshrrev_b32 v9, 16, v9
    v_mul_u32_u24 v10, 6, v9
    v_sub_u32 v10, v7, v10
    v_mul_u32_u24 v9, 768, v9
    v_lshl_add_u32 v9, v10, 6, v9
    v_and_b32 v6, 15, v6
    v_lshl_add_u32 v9, v6, 2, v9
    s_add_u32 s29, s29, {CS_GU}
    buffer_store_dword v8, v9, s[16:19], s29 offen
    LP_done:
    s_endpgm
    """)
    a.end_kernel(name, 48, 48)
    a.launch(name, (NT, 1, 1), (256, 1, 1), 24576)

def flag_store(a, ph):
    a.e(f"""
    s_lshl_b32 {s('t0')}, {s('j')}, 2
    s_add_u32 {s('t0')}, {s('t0')}, {s('flb')}
    s_add_u32 {s('t0')}, {s('t0')}, {ph*8192}
    v_mov_b32 v4, {s('t0')}
    v_mov_b32 v5, {s('tag')}
    s_mov_b64 exec, 1
    buffer_store_dword v5, v4, {s('WS',4)}, 0 offen offset:128
    buffer_store_dword v5, v4, {s('WS',4)}, 0 offen sc1
    s_mov_b64 exec, -1
    """)

def emit_sync(a, L, ph, kind='own', pre=None, mid=None):
    if pre: pre()
    a.e('s_barrier')
    skip = a.newlabel('Lnp')
    if mid is None:
        a.e(f's_cmp_lg_u32 {s("lw")}, 0\ns_cbranch_scc1 {skip}')
        flag_store(a, ph)
    else:
        nf = a.newlabel('Lnf')
        a.e(f's_cmp_lg_u32 {s("lw")}, 0\ns_cbranch_scc1 {nf}')
        flag_store(a, ph)
        a.label(nf)
        mid()
        a.e(f's_cmp_lg_u32 {s("lw")}, 0\ns_cbranch_scc1 {skip}')
    ld = a.newlabel('Lpolled')
    if kind == 'own':
        a.e(f"""
        s_add_u32 {s('t0')}, {s('flb')}, {ph*8192}
        v_lshl_add_u32 v48, v0, 2, {s('t0')}
        s_mov_b64 exec, 0xffff
        """)
    elif kind == 'pair':
        a.e(f"""
        s_and_b32 {s('t1')}, {s('r')}, 1
        s_lshl_b32 {s('t1')}, {s('t1')}, 9
        s_sub_u32 {s('t0')}, {s('flb')}, {s('t1')}
        s_add_u32 {s('t0')}, {s('t0')}, {ph*8192}
        v_lshlrev_b32 v5, 9, v3
        v_lshl_add_u32 v5, v2, 2, v5
        v_add_u32 v48, {s('t0')}, v5
        s_mov_b32 exec_lo, -1
        s_mov_b32 exec_hi, 0
        """)
    else:
        a.e(f"""
        s_cmp_lt_u32 {s('r')}, 2
        s_cbranch_scc1 {ld}
        s_lshl_b32 {s('t0')}, {s('j')}, 2
        s_add_u32 {s('t0')}, {s('t0')}, {s('flb')}
        s_add_u32 {s('t0')}, {s('t0')}, {ph*8192 - 1024}
        v_mov_b32 v48, {s('t0')}
        s_mov_b64 exec, 1
        """)
    lp = a.newlabel('Lpoll')
    a.label(lp)
    if kind != 'prev':
        for i in range(3):
            a.e(f"""
            buffer_load_dword v24, v48, {s('WS',4)}, 0 offen offset:128 sc1
            s_waitcnt vmcnt(0)
            v_cmp_ne_u32 vcc, {s('tag')}, v24
            s_cmp_eq_u64 vcc, 0
            s_cbranch_scc1 {ld}
            """)
    a.e(f"""
    buffer_load_dword v24, v48, {s('WS',4)}, 0 offen sc1
    s_waitcnt vmcnt(0)
    v_cmp_ne_u32 vcc, {s('tag')}, v24
    s_cmp_eq_u64 vcc, 0
    s_cbranch_scc0 {lp}
    """)
    a.label(ld)
    a.e('s_mov_b64 exec, -1')
    a.label(skip)
    a.e('s_barrier')
    a.stamp('L', f'polled{ph}')

def issue_W(a, L, ph, t):
    c = GE[ph]
    lds = c['WP'] + (t % c['CW']) * c['Wb']
    if ph == 'P1R':
        a.e(f's_add_u32 m0, {s("wlds")}, {lds}')
        a.e(f's_add_u32 {s("t0")}, {s("wsrc")}, {t*64*3840}')
        for p in range(3):
            o = f' offset:{p*1024}' if p else ''
            a.e(f'buffer_load_dwordx4 v{8+p}, {s("WQKV",4)}, {s("t0")} offen{o} lds')
        L.issued(('W', ph, t), 3)
        return
    dma_linear(a, L, ('W', ph, t), s('WS', 4), s('wsrc'), t * c['Wb'], s('wlds'), lds, c['Wb'] // 4096, flags=SC1)

def issue_X(a, L, ph, t):
    c = GE[ph]
    lds = c['XP'] + (t % c['CX']) * c['Xb']
    if ph in ('P1', 'P1R'):
        a.e(f's_mul_i32 {s("t5")}, {s("xstride")}, {t}')
        a.e(f's_add_u32 {s("t5")}, {s("t5")}, {s("xsrc")}')
        for gq in range(2):
            a.e(f's_add_u32 m0, {s("xlds")}, {lds + gq*4096}')
            if gq: a.e(f's_add_u32 {s("t5")}, {s("t5")}, {s("xg2")}')
            else: a.e('s_nop 0')
            for p in range(4):
                o = f' offset:{p*1024}' if p else ''
                a.e(f'buffer_load_dwordx4 v{12+p}, {s("XCUR",4)}, {s("t5")} offen{o} {SC1} lds')
        L.issued(('X', ph, t), 8)
    else:
        dma_linear(a, L, ('X', ph, t), s('WS', 4), s('xsrc'), t * c['Xb'], s('xlds'), lds, 4, flags=SC1)

def setup_W(a, ph):
    c = GE[ph]
    per = c['Wb'] // 4
    a.e(f's_mul_i32 {s("wlds")}, {s("lw")}, {per}')
    if ph == 'P1R':
        a.e(f"""
        s_mul_i32 {s('t1')}, {s('head')}, 40
        s_andn2_b32 {s('t1')}, {s('t1')}, 15
        s_mul_i32 {s('wsrc')}, {s('lw')}, {16*3840}
        s_add_u32 {s('wsrc')}, {s('wsrc')}, {s('t1')}
        v_lshrrev_b32 v4, 2, v0
        v_mul_u32_u24 v4, 3840, v4
        v_and_b32 v5, 3, v0
        v_lshl_add_u32 v8, v5, 4, v4
        v_add_u32 v9, 256, v8
        v_add_u32 v10, 512, v8
        """)
        return
    base, idx, stride = {'P1': (WQ_P, 'head', 81920), 'P3': (WO_P, 'cb', 5*20480), 'P4': (WGU_P, 'j', 245760), 'P5': (WD_P, 'cb', 245760)}[ph]
    a.e(f"""
    s_mul_i32 {s('wsrc')}, {s(idx)}, {stride}
    s_add_u32 {s('wsrc')}, {s('wsrc')}, {base}
    s_add_u32 {s('wsrc')}, {s('wsrc')}, {s('wlds')}
    """)

def setup_X(a, ph, layer1=False):
    if ph == 'P1R':
        ph = 'P1'; layer1 = False
    elif ph == 'P1':
        layer1 = True
    if ph == 'P1':
        a.e(f's_lshl_b32 {s("xlds")}, {s("lw")}, 13')
    else:
        a.e(f's_lshl_b32 {s("xlds")}, {s("lw")}, 12')
    if ph == 'P1' and not layer1:
        a.e(f"""
        s_lshl_b32 {s('t1')}, {s('blk')}, 2
        s_add_u32 {s('t1')}, {s('t1')}, {s('lw')}
        s_mul_i32 {s('xsrc')}, {s('t1')}, {64*1280}
        s_movk_i32 {s('xstride')}, 128
        s_mov_b32 {s('xg2')}, {32*1280}
        s_mov_b32 {s('stsrc')}, {ST0}
        """)
        for p in range(4):
            a.e(f"""
            v_add_u32 v4, {4*p}, v3
            v_and_b32 v4, 7, v4
            v_and_b32 v5, 7, v0
            v_xor_b32 v4, v4, v5
            v_lshrrev_b32 v5, 3, v0
            v_add_u32 v5, {8*p}, v5
            v_mul_u32_u24 v5, 1280, v5
            v_lshl_add_u32 v5, v4, 4, v5
            v_subrev_u32 v{12+p}, {1024*p}, v5
            """)
    elif ph == 'P1':
        a.e(f"""
        s_mov_b32 s{S['XCUR']}, s{S['WS']}
        s_mov_b32 s{S['XCUR']+1}, s{S['WS']+1}
        s_mov_b32 s{S['XCUR']+2}, s{S['WS']+2}
        s_lshl_b32 {s('t1')}, {s('blk')}, 1
        s_lshr_b32 {s('t2')}, {s('lw')}, 1
        s_add_u32 {s('t1')}, {s('t1')}, {s('t2')}
        s_mul_i32 {s('xsrc')}, {s('t1')}, 163840
        s_and_b32 {s('t2')}, {s('lw')}, 1
        s_lshl_b32 {s('t2')}, {s('t2')}, 13
        s_add_u32 {s('xsrc')}, {s('xsrc')}, {s('t2')}
        s_add_u32 {s('xsrc')}, {s('xsrc')}, {LB0 + oX2}
        s_movk_i32 {s('xstride')}, 16384
        s_movk_i32 {s('xg2')}, 4096
        s_mov_b32 {s('stsrc')}, {LB0 + oST2}
        v_mov_b32 v12, v1
        v_mov_b32 v13, v1
        v_mov_b32 v14, v1
        v_mov_b32 v15, v1
        """)
    else:
        idx, stride, off = {'P3': ('rb64', 81920, oO), 'P4': ('r', 163840, oX1), 'P5': ('rb64', 196608, oH)}[ph]
        a.e(f"""
        s_mul_i32 {s('xsrc')}, {s(idx)}, {stride}
        s_add_u32 {s('xsrc')}, {s('xsrc')}, {s('lb')}
        s_add_u32 {s('xsrc')}, {s('xsrc')}, {off}
        s_add_u32 {s('xsrc')}, {s('xsrc')}, {s('xlds')}
        """)
        if ph == 'P4':
            a.e(f's_add_u32 {s("stsrc")}, {s("lb")}, {oST1}')

def loader_gemm(a, L, ph, first=False):
    c = GE[ph]
    T, CW, CX = c['T'], c['CW'], c['CX']
    stats = ph in ('P1', 'P4', 'P1R')
    tfin = 6 if ph == 'P1R' else 3
    a.c(f'---- loader {ph}')
    if first:
        issue_X(a, L, ph, 0); issue_W(a, L, ph, 0)
        issue_X(a, L, ph, 1); issue_W(a, L, ph, 1)
        pend = []
        for t in range(2, max(CW, CX)):
            if t < CX: pend.append(('X', t))
            if t < CW: pend.append(('W', t))
    else:
        issue_X(a, L, ph, 0); issue_X(a, L, ph, 1)
        pend = [('X', t) for t in range(2, min(CX, T))]
    if ph == 'P4':
        a.e(f"""
        v_lshrrev_b32 v4, 1, v3
        v_lshlrev_b32 v4, 10, v4
        v_and_b32 v5, 1, v3
        v_lshl_add_u32 v4, v5, 9, v4
        v_lshl_add_u32 v4, v2, 3, v4
        s_lshl_b32 {s('t1')}, {s('r')}, 13
        s_add_u32 {s('t1')}, {s('t1')}, {s('stsrc')}
        s_lshl_b32 {s('t2')}, {s('lw')}, 11
        s_add_u32 {s('t1')}, {s('t1')}, {s('t2')}
        """)
        for i in range(4):
            a.e(f'buffer_load_dwordx2 {vr(16+2*i,2)}, v4, {s("WS",4)}, {s("t1")} offen offset:{i*128} {SC1}')
        L.issued('ST', 4)
        a.e(f"""
        v_mul_u32_u24 v4, 12288, v3
        v_lshl_add_u32 v4, v2, 2, v4
        s_lshr_b32 {s('t1')}, {s('lw')}, 1
        s_mul_i32 {s('t1')}, {s('t1')}, 6144
        s_mul_i32 {s('t2')}, {s('j')}, 384
        s_add_u32 {s('t1')}, {s('t1')}, {s('t2')}
        s_and_b32 {s('t2')}, {s('lw')}, 1
        s_mul_i32 {s('t2')}, {s('t2')}, 192
        s_add_u32 {s('t1')}, {s('t1')}, {s('t2')}
        s_add_u32 {s('t1')}, {s('t1')}, {CSP}
        """)
        for i in range(5):
            for e in range(3):
                a.e(f'buffer_load_dword v{28+i*3+e}, v4, {s("WS",4)}, {s("t1")} offen offset:{e*64} {SC1}')
            if i < 4: a.e(f's_add_u32 {s("t1")}, {s("t1")}, {4*12288}')
        L.issued('CS', 15)
    def p1_stat_loads():
        a.e(f"""
        v_lshlrev_b32 v4, 10, v3
        v_lshl_add_u32 v4, v2, 3, v4
        s_lshl_b32 {s('t1')}, {s('blk')}, 14
        s_add_u32 {s('t1')}, {s('t1')}, {s('stsrc')}
        s_lshl_b32 {s('t2')}, {s('lw')}, 12
        s_add_u32 {s('t1')}, {s('t1')}, {s('t2')}
        """)
        for i in range(8):
            a.e(f'buffer_load_dwordx2 {vr(28+2*i,2)}, v4, {s("WS",4)}, {s("t1")} offen offset:{i*128} {SC1}')
        L.issued('ST', 8)
    if ph == 'P1':
        p1_stat_loads()
    a.stamp('L', f'{ph} Xissued')
    for t in range(T):
        L.wait({('W', ph, t), ('X', ph, t)})
        a.e('s_barrier')
        if t == 0:
            a.stamp('L', f'{ph} B0')
            for k, tt in pend:
                (issue_X if k == 'X' else issue_W)(a, L, ph, tt)
        else:
            if t - 1 + CW < T: issue_W(a, L, ph, t - 1 + CW)
            if t - 1 + CX < T: issue_X(a, L, ph, t - 1 + CX)
        if ph == 'P4' and t == 4:
            L.wait({'CS'})
            for e in range(3):
                a.e(f'v_add_f32 v{28+e}, v{28+e}, v{31+e}')
                a.e(f'v_add_f32 v{34+e}, v{34+e}, v{37+e}')
            for e in range(3):
                a.e(f'v_add_f32 v{28+e}, v{28+e}, v{40+e}')
            for e in range(3):
                a.e(f'v_add_f32 v{28+e}, v{28+e}, v{34+e}')
            for e in range(3):
                a.e(f"""
                v_mov_b32 v4, v{28+e}
                s_nop 1
                v_permlane16_swap_b32 v{28+e}, v4
                s_nop 1
                v_add_f32 v{28+e}, v{28+e}, v4
                v_mov_b32 v4, v{28+e}
                s_nop 1
                v_permlane32_swap_b32 v{28+e}, v4
                s_nop 1
                v_add_f32 v{28+e}, v{28+e}, v4
                """)
            a.e(f"""
            s_mul_i32 {s('t1')}, {s('lw')}, 192
            v_lshl_add_u32 v4, v2, 2, {s('t1')}
            s_mov_b64 exec, 0xffff
            ds_write_b32 v4, v28 offset:{M_CS}
            ds_write_b32 v4, v29 offset:{M_CS + 64}
            ds_write_b32 v4, v30 offset:{M_CS + 128}
            s_mov_b64 exec, -1
            """)
        if ph == 'P1R' and t == 3:
            lp = a.newlabel('Lsp')
            a.e(f"""
            s_lshl_b32 {s('t1')}, {s('blk')}, 7
            s_add_u32 {s('t1')}, {s('t1')}, {FLAGS + 90112}
            v_lshl_add_u32 v4, v0, 2, {s('t1')}
            s_mov_b32 exec_hi, 0
            {lp}:
            buffer_load_dword v5, v4, {s('WS',4)}, 0 offen sc1
            s_waitcnt vmcnt(0)
            v_cmp_ne_u32 vcc, {s('tag')}, v5
            s_cmp_eq_u64 vcc, 0
            s_cbranch_scc0 {lp}
            s_mov_b64 exec, -1
            """)
            L.drained()
            p1_stat_loads()
        if stats and t == tfin:
            L.wait({'ST'})
            if ph == 'P4':
                a.e(f"""
                v_add_f32 v16, v16, v18
                v_add_f32 v17, v17, v19
                v_add_f32 v20, v20, v22
                v_add_f32 v21, v21, v23
                v_add_f32 v16, v16, v20
                v_add_f32 v17, v17, v21
                v_mov_b32 v18, v16
                v_mov_b32 v19, v17
                s_nop 1
                v_permlane16_swap_b32 v16, v18
                v_permlane16_swap_b32 v17, v19
                s_nop 1
                v_add_f32 v16, v16, v18
                v_add_f32 v17, v17, v19
                """)
            else:
                a.e('v_add_f32 v16, v28, v30\nv_add_f32 v17, v29, v31')
                for i in range(2, 8):
                    a.e(f'v_add_f32 v16, v16, v{28+2*i}\nv_add_f32 v17, v17, v{29+2*i}')
            a.e(f"""
            s_mov_b32 {s('c1')}, {f32(1.0/640.0)}
            s_mov_b32 {s('c2')}, {f32(1e-5)}
            v_mul_f32 v16, {s('c1')}, v16
            v_mul_f32 v17, {s('c1')}, v17
            v_fma_f32 v17, -v16, v16, v17
            v_max_f32 v17, 0, v17
            """)
            bf16_round(a, 'v16', 'v4')
            bf16_round(a, 'v17', 'v4')
            a.e(f'v_add_f32 v17, {s("c2")}, v17')
            bf16_round(a, 'v17', 'v4')
            a.e('v_sqrt_f32 v17, v17\ns_nop 0')
            bf16_round(a, 'v17', 'v4')
            a.e('v_rcp_f32 v17, v17')
            if ph == 'P4':
                a.e(f"""
                v_lshrrev_b32 v4, 1, v3
                v_lshlrev_b32 v4, 6, v4
                v_lshl_add_u32 v4, v2, 2, v4
                s_lshl_b32 {s('t1')}, {s('lw')}, 7
                v_add_u32 v4, {s('t1')}, v4
                s_mov_b32 exec_lo, 0xffff
                s_mov_b32 exec_hi, 0xffff
                """)
            else:
                a.e(f"""
                v_lshlrev_b32 v4, 2, v0
                s_lshl_b32 {s('t1')}, {s('lw')}, 8
                v_add_u32 v4, {s('t1')}, v4
                """)
            a.e(f"""
            ds_write_b32 v4, v16 offset:{M_ROWM}
            ds_write_b32 v4, v17 offset:{M_ROWR}
            s_mov_b64 exec, -1
            """)
    a.e('s_waitcnt lgkmcnt(0)')
    a.e('s_barrier')
    a.stamp('L', f'{ph} E')

ACC = 24
RESID = 246
def compute_gemm(a, ph):
    c = GE[ph]
    T, KS, CW, CX, Wb, Xb = c['T'], c['KS'], c['CW'], c['CX'], c['Wb'], c['Xb']
    XPOOL, WPOOL = c['XP'], c['WP']
    a.c(f'---- compute {ph}')
    raw = ph == 'P1R'
    isP1 = ph in ('P1', 'P1R')
    ntt, nct, MS = {'P1': (4, 4, 1), 'P1R': (4, 4, 1), 'P4': (4, 6, 1), 'P3': (1, 5, 2), 'P5': (1, 5, 2)}[ph]
    nacc = ntt * nct * 4
    FR = ACC + nacc
    fsz = (ntt + nct) * 4 * MS
    def xf(st, ms, tt): return FR + st*fsz + ms*(ntt+nct)*4 + tt*4
    def wf(st, ms, q): return FR + st*fsz + ms*(ntt+nct)*4 + ntt*4 + q*4
    def acc(tt, q): return ACC + (tt*nct + q)*4
    CSR = FR + 2*fsz
    if raw:
        a.e(f"""
        v_lshrrev_b32 v4, 1, v2
        v_xor_b32 v4, v4, v3
        v_lshlrev_b32 v5, 7, v2
        v_lshl_add_u32 v8, v4, 4, v5
        v_xor_b32 v9, 64, v8
        """)
    elif ph == 'P1':
        a.e('v_mov_b32 v8, v1\nv_add_u32 v9, 1024, v1')
    elif ph == 'P4':
        a.e('v_mov_b32 v8, v1\nv_add_u32 v9, 1024, v1')
    if ph == 'P4':
        a.e(f"""
        s_and_b32 {s('t1')}, {s('lw')}, 1
        s_lshl_b32 {s('t1')}, {s('t1')}, 13
        s_add_u32 {s('t1')}, {s('t1')}, {XPOOL}
        v_add_u32 v8, {s('t1')}, v8
        v_add_u32 v9, {s('t1')}, v9
        v_add_u32 v22, 0x10000, v8
        v_add_u32 v23, 0x10000, v9
        s_lshr_b32 {s('t2')}, {s('lw')}, 1          ; wn
        """)
    ONES = CSR + 16
    SUMR, SQR = CSR + 20, CSR + 24
    if isP1:
        a.e(f"""
        s_lshl_b32 {s('t1')}, {s('lw')}, 13
        s_add_u32 {s('t1')}, {s('t1')}, {XPOOL}
        v_add_u32 v8, {s('t1')}, v8
        v_add_u32 v9, {s('t1')}, v9
        v_add_u32 v22, 0x10000, v8
        v_add_u32 v23, 0x10000, v9
        """)
        if raw:
            a.e(f"""
            s_mul_i32 {s('t1')}, {s('head')}, 40
            s_and_b32 {s('t1')}, {s('t1')}, 15
            v_lshrrev_b32 v4, 1, v3
            v_mul_u32_u24 v4, 3072, v4
            v_and_b32 v5, 1, v3
            v_lshlrev_b32 v5, 3, v5
            v_bfe_u32 v6, v0, 2, 2
            v_add_u32 v5, v5, v6
            v_lshl_add_u32 v4, v5, 6, v4
            v_add_u32 v4, {s('t1')}, v4
            v_and_b32 v5, 3, v0
            v_lshl_add_u32 v10, v5, 3, v4
            v_min_u32 v5, 2, v5
            v_lshl_add_u32 v11, v5, 10, v4
            v_add_u32 v11, 32, v11
            s_mov_b32 {s('c0')}, 0x3f803f80
            """)
            for i in range(8): a.e(f'v_mov_b32 v{SUMR+i}, 0')
        else:
            a.e('v_mov_b32 v10, v1\nv_add_u32 v11, 0x10000, v1')
        for i in range(16): a.e(f'v_mov_b32 v{CSR+i}, 0')
        for i in range(4): a.e(f'v_mov_b32 v{ONES+i}, 0x3f803f80')
    elif ph == 'P4':
        a.e(f"""
        s_mul_i32 {s('t1')}, {s('t2')}, 3072
        v_add_u32 v10, {s('t1')}, v1
        v_add_u32 v11, 0x10000, v10
        """)
    else:
        a.e(f"""
        s_lshl_b32 {s('t1')}, {s('lw')}, 10
        s_add_u32 {s('t1')}, {s('t1')}, {XPOOL}
        v_add_u32 v8, {s('t1')}, v1
        v_mov_b32 v10, v1
        v_add_u32 v11, 0x10000, v1
        """)
    for i in range(nacc):
        a.e(f'v_mov_b32 v{ACC+i}, 0')
    def wa(lo, hi, off):
        return (f'v{hi}', off - 0x10000) if off >= 0x10000 else (f'v{lo}', off)
    def reads(st, t, m):
        xo = (t % CX) * Xb
        wo = WPOOL + (t % CW) * Wb
        xs, ws = [], []
        for ms in range(MS):
            sx = m*MS + ms
            if ph in ('P1', 'P1R', 'P4'):
                for tt in range(4):
                    r_, o_ = wa(8+sx, 22+sx, xo + tt*2048)
                    xs.append(f'ds_read_b128 {vr(xf(st,ms,tt),4)}, {r_} offset:{o_}')
            else:
                xs.append(f'ds_read_b128 {vr(xf(st,ms,0),4)}, v8 offset:{xo + sx*4096}')
            if raw:
                for q in range(4):
                    for h in range(2):
                        if q < 3: ws.append(f'ds_read_b64_tr_b16 {vr(wf(st,ms,q)+2*h,2)}, v10 offset:{wo + sx*6144 + q*1024 + h*256}')
                        else: ws.append(f'ds_read_b64_tr_b16 {vr(wf(st,ms,q)+2*h,2)}, v11 offset:{wo + sx*6144 + h*256}')
            elif ph == 'P1':
                for q in range(4):
                    r_, o_ = wa(10, 11, wo + (sx*4 + q)*1024)
                    ws.append(f'ds_read_b128 {vr(wf(st,ms,q),4)}, {r_} offset:{o_}')
            elif ph == 'P4':
                for q in range(6):
                    ct = q if q < 3 else 6 + (q - 3)
                    r_, o_ = wa(10, 11, wo + (sx*12 + ct)*1024)
                    ws.append(f'ds_read_b128 {vr(wf(st,ms,q),4)}, {r_} offset:{o_}')
            else:
                for q in range(5):
                    r_, o_ = wa(10, 11, wo + (sx*5 + q)*1024)
                    ws.append(f'ds_read_b128 {vr(wf(st,ms,q),4)}, {r_} offset:{o_}')
        out = []
        if 'noreads' in DBG: return []
        while xs or ws:
            if xs: out.append(xs.pop(0))
            if ws: out.append(ws.pop(0))
        return out
    def mfmas(st):
        m = []
        if 'nomfma' in DBG: return ['s_nop 0'] * (MS*ntt*nct)
        for ms in range(MS):
            for tt in range(ntt):
                for q in range(nct):
                    A, B = (xf(st,ms,tt), wf(st,ms,q)) if isP1 else (wf(st,ms,q), xf(st,ms,tt))
                    m.append(f'v_mfma_f32_16x16x32_bf16 {vr(acc(tt,q),4)}, {vr(A,4)}, {vr(B,4)}, {vr(acc(tt,q),4)}')
                    if False and q in (1, 3):
                        for i in ((0, 1) if q == 1 else (2, 3)):
                            x = xf(st, ms, tt) + i
                            m.append(f'v_dot2_f32_bf16 v{SUMR+tt}, v{x}, {s("c0")}, v{SUMR+tt}')
                            m.append(f'v_dot2_f32_bf16 v{SQR+tt}, v{x}, v{x}, v{SQR+tt}')
            if isP1:
                for q in range(4):
                    m.append(f'v_mfma_f32_16x16x32_bf16 {vr(CSR+4*q,4)}, {vr(ONES,4)}, {vr(wf(st,ms,q),4)}, {vr(CSR+4*q,4)}')
        return m
    def interleave(ms_, rs, start=0):
        i = 0
        span = max(1, (len(ms_) - start) * 2 // 3)
        per = max(1, -(-len(rs) // span))
        for k, m in enumerate(ms_):
            a.e(m)
            if k >= start:
                for _ in range(per):
                    if i < len(rs):
                        a.e(rs[i]); i += 1
        while i < len(rs):
            a.e(rs[i]); i += 1
    NM = KS // MS
    a.e('s_barrier')
    a.stamp('C', f'{ph} B0')
    for r_ in reads(0, 0, 0): a.e(r_)
    st = 0
    for t in range(T):
        for m in range(NM):
            a.e('s_waitcnt lgkmcnt(0)')
            ms_ = mfmas(st)
            if m < NM - 1:
                interleave(ms_, reads(st ^ 1, t, m + 1))
            elif t < T - 1:
                nb = 2
                for x in ms_[:nb]: a.e(x)
                a.e('s_barrier')
                interleave(ms_[nb:], reads(st ^ 1, t + 1, 0))
            else:
                for x in ms_: a.e(x)
            st ^= 1
    a.stamp('C', f'{ph} loopend')
    a.e('s_barrier')
    a.nop(8)
    return dict(acc=acc, FR=FR, CSR=CSR, SUMR=CSR+20, SQR=CSR+24, raw=False)

def epilogue_P1(a, m):
    acc, FR, CSR = m['acc'], m['FR'], m['CSR']
    a.c('---- epilogue P1 (to LDS)')
    M4, R4 = FR, FR + 16
    if m['raw']:
        SUMR, SQR = m['SUMR'], m['SQR']
        a.e(f's_mov_b32 {s("c1")}, {f32(1.0/640.0)}\ns_mov_b32 {s("c2")}, {f32(1e-5)}')
        for tt in range(4):
            for v in (SUMR + tt, SQR + tt):
                a.e(f"""
                v_mov_b32 v4, v{v}
                s_nop 1
                v_permlane16_swap_b32 v{v}, v4
                s_nop 1
                v_add_f32 v{v}, v{v}, v4
                v_mov_b32 v4, v{v}
                s_nop 1
                v_permlane32_swap_b32 v{v}, v4
                s_nop 1
                v_add_f32 v{v}, v{v}, v4
                """)
            sm, sq = f'v{SUMR+tt}', f'v{SQR+tt}'
            a.e(f"""
            v_mul_f32 {sm}, {s('c1')}, {sm}
            v_mul_f32 {sq}, {s('c1')}, {sq}
            v_fma_f32 {sq}, -{sm}, {sm}, {sq}
            v_max_f32 {sq}, 0, {sq}
            """)
            bf16_round(a, sm, 'v4'); bf16_round(a, sq, 'v4')
            a.e(f'v_add_f32 {sq}, {s("c2")}, {sq}')
            bf16_round(a, sq, 'v4')
            a.e(f'v_sqrt_f32 {sq}, {sq}\ns_nop 0')
            bf16_round(a, sq, 'v4')
            a.e(f'v_rcp_f32 {sq}, {sq}')
        a.e(f"""
        s_lshl_b32 {s('t3')}, {s('lw')}, 8
        v_lshl_add_u32 v4, v2, 2, {s('t3')}
        s_mov_b64 exec, 0xffff
        """)
        for tt in range(4):
            a.e(f'ds_write_b32 v4, v{SUMR+tt} offset:{M_ROWM + tt*64}')
            a.e(f'ds_write_b32 v4, v{SQR+tt} offset:{M_ROWR + tt*64}')
        a.e('s_mov_b64 exec, -1\ns_waitcnt lgkmcnt(0)')
    a.e(f"""
    s_lshl_b32 {s('t3')}, {s('lw')}, 8
    v_lshl_add_u32 v4, v3, 4, {s('t3')}
    """)
    for tt in range(4):
        a.e(f'ds_read_b128 {vr(M4+tt*4,4)}, v4 offset:{M_ROWM + tt*64}')
        a.e(f'ds_read_b128 {vr(R4+tt*4,4)}, v4 offset:{M_ROWR + tt*64}')
    a.e(f"""
    s_mul_i32 {s('t3')}, {s('lw')}, 2560             ; 2w*1280
    v_and_b32 v5, 7, v2
    v_xor_b32 v5, v5, v3                             ; g ^ (j&7)
    v_lshlrev_b32 v5, 3, v5
    v_lshl_add_u32 v5, v2, 6, v5                     ; j*64 + phys*8
    s_add_u32 {s('t4')}, {s('t3')}, {QB_}
    v_add_u32 v8, {s('t4')}, v5
    v_xor_b32 v16, 32, v8
    s_add_u32 {s('t4')}, {s('t3')}, {KB + 10240}
    v_add_u32 v9, {s('t4')}, v5
    v_xor_b32 v17, 32, v9
    v_and_b32 v6, 1, v3
    v_mul_u32_u24 v6, 320, v6
    v_lshrrev_b32 v7, 1, v3
    v_lshl_add_u32 v6, v7, 3, v6                     ; (g&1)*320 + (g>>1)*8
    v_lshl_add_u32 v7, v2, 4, v6                     ; + j*16
    s_add_u32 {s('t4')}, {s('t3')}, {VB + 10240}
    v_add_u32 v10, {s('t4')}, v7
    ; tile3: d = 16 + (j&3) ; d&7 = j&3
    v_and_b32 v5, 3, v2
    v_add_u32 v7, 16, v5
    v_lshl_add_u32 v12, v7, 4, v6
    v_add_u32 v12, {s('t4')}, v12                    ; V lanes
    v_xor_b32 v5, v5, v3
    v_lshlrev_b32 v5, 3, v5
    v_lshl_add_u32 v11, v7, 6, v5                    ; d*64 + phys*8
    v_mov_b32 v5, {QB_}
    v_mov_b32 v6, {KB + 10240}
    v_cmp_gt_u32 vcc, 4, v2
    s_nop 1
    v_cndmask_b32 v5, v6, v5, vcc
    v_add_u32 v11, v11, v5
    v_add_u32 v11, {s('t3')}, v11
    v_xor_b32 v18, 32, v11
    v_mov_b32 v14, 1.0
    v_mov_b32 v15, {f32(QSCALE)}
    v_cndmask_b32 v14, v14, v15, vcc
    s_mov_b32 {s('c0')}, {f32(QSCALE)}
    s_mov_b32 s{S['c0']+1}, {f32(QSCALE)}
    s_mov_b32 {s('m0a')}, 0x00ff00ff
    s_mov_b32 s{S['m0a']+1}, 0x00ff00ff
    s_mov_b32 s58, 0x0f000f00
    s_mov_b32 s59, 0x0f000f00
    s_waitcnt vmcnt(0) lgkmcnt(0)
    """)
    for i in range(0, 16, 2):
        a.e(f'v_pk_mul_f32 {vr(M4+i,2)}, {vr(M4+i,2)}, {vr(R4+i,2)}')
    PK = FR + 32
    TMP = CSR + 28
    units = [(tt, q) for tt in range(4) for q in range(4)]
    def st1(k):
        tt, q = units[k]; T = TMP + (k & 1)*4
        return [f'v_pk_mul_f32 {vr(T+i,2)}, {vr(M4+tt*4+i,2)}, {vr(CSR+4*q,2)} op_sel_hi:[1,0]' for i in (0, 2)]
    def st2(k):
        tt, q = units[k]; T = TMP + (k & 1)*4; A = acc(tt, q)
        return [f'v_pk_fma_f32 {vr(A+i,2)}, {vr(R4+tt*4+i,2)}, {vr(A+i,2)}, {vr(T+i,2)} neg_lo:[0,0,1] neg_hi:[0,0,1]' for i in (0, 2)]
    def st3(k):
        tt, q = units[k]; A = acc(tt, q)
        if q == 0: return [f'v_pk_mul_f32 {vr(A+i,2)}, {vr(A+i,2)}, {s("c0",2)}' for i in (0, 2)]
        if q == 3: return [f'v_pk_mul_f32 {vr(A+i,2)}, {vr(A+i,2)}, v[14:15] op_sel_hi:[1,0]' for i in (0, 2)]
        return []
    def st4(k):
        tt, q = units[k]; A = acc(tt, q); p = PK + (k % 8)*2
        return [f'v_cvt_pk_bf16_f32 v{p}, v{A}, v{A+1}', f'v_cvt_pk_bf16_f32 v{p+1}, v{A+2}, v{A+3}']
    def st5(k):
        tt, q = units[k]; p = PK + (k % 8)*2
        oqk = (tt >> 1)*1280
        ov = (tt >> 1)*1280 + (tt & 1)*640
        m_ = tt & 1
        if q == 0: return [f'ds_write_b64 v{16 if m_ else 8}, {vr(p,2)} offset:{oqk}']
        if q == 1: return [f'ds_write_b64 v{17 if m_ else 9}, {vr(p,2)} offset:{oqk}']
        if q == 2: return [f'ds_write_b64 v10, {vr(p,2)} offset:{ov}']
        return [f's_mov_b64 exec, {s("m0a",2)}', f'ds_write_b64 v{18 if m_ else 11}, {vr(p,2)} offset:{oqk}',
                's_mov_b64 exec, s[58:59]', f'ds_write_b64 v12, {vr(p,2)} offset:{ov}', 's_mov_b64 exec, -1']
    n = len(units)
    a.stamp('C', 'epi setup')
    for k in range(n + 4):
        for f_, d in ((st1, 0), (st2, 1), (st3, 2), (st4, 3), (st5, 4)):
            kk = k - d
            if 'nodsw' in DBG and f_ is st5: continue
            if 'nomath' in DBG and f_ is not st5: continue
            if 0 <= kk < n:
                for x in f_(kk): a.e(x)
    a.stamp('C', 'epi issued')
    a.e('s_waitcnt lgkmcnt(0)')

def kv_copy_out(a):
    a.c('---- kv copy out')
    a.e(f"""
    s_lshl_b32 {s('t1')}, {s('blk')}, 5
    s_add_u32 {s('t1')}, {s('t1')}, {s('head')}
    s_mul_i32 {s('t1')}, {s('t1')}, 20480
    s_add_u32 {s('t1')}, {s('t1')}, {s('lb')}
    s_add_u32 {s('t1')}, {s('t1')}, {oKV}
    s_lshl_b32 {s('t2')}, {s('wave')}, 10
    s_add_u32 {s('t1')}, {s('t1')}, {s('t2')}
    s_add_u32 {s('t3')}, {s('t2')}, {KB + 10240}       ; i=0: p = wave (<8) -> K
    v_add_u32 v4, {s('t3')}, v1
    ds_read_b128 v[16:19], v4
    s_add_u32 {s('t3')}, {s('t2')}, {KB + 10240 + 8192}
    s_add_u32 {s('t4')}, {s('t2')}, {VB + 10240 - 2048}
    s_cmp_lt_u32 {s('wave')}, 2
    s_cselect_b32 {s('t3')}, {s('t3')}, {s('t4')}
    v_add_u32 v5, {s('t3')}, v1
    ds_read_b128 v[20:23], v5
    s_add_u32 {s('t3')}, {s('t2')}, {VB + 10240 + 6144}
    v_add_u32 v6, {s('t3')}, v1
    ds_read_b128 v[24:27], v6
    s_waitcnt lgkmcnt(2)
    buffer_store_dwordx4 v[16:19], v1, {s('WS',4)}, {s('t1')} offen {SC1}
    s_add_u32 {s('t1')}, {s('t1')}, 8192
    s_waitcnt lgkmcnt(1)
    buffer_store_dwordx4 v[20:23], v1, {s('WS',4)}, {s('t1')} offen {SC1}
    s_add_u32 {s('t1')}, {s('t1')}, 8192
    s_waitcnt lgkmcnt(0)
    """)
    lab = a.newlabel('Lkv')
    a.e(f"""
    s_cmp_ge_u32 {s('wave')}, 4
    s_cbranch_scc1 {lab}
    buffer_store_dwordx4 v[24:27], v1, {s('WS',4)}, {s('t1')} offen {SC1}
    {lab}:
    s_waitcnt vmcnt(0)
    """)

def epilogue_P4(a, m):
    acc, FR, CSR = m['acc'], m['FR'], m['CSR']
    a.c('---- epilogue P4')
    MM, RR = FR, FR + 8
    CG, CU = CSR, CSR + 12
    a.e(f"""
    s_and_b32 {s('t1')}, {s('lw')}, 1
    s_lshr_b32 {s('t2')}, {s('lw')}, 1
    s_lshl_b32 {s('t3')}, {s('t1')}, 8
    v_lshl_add_u32 v4, v2, 2, {s('t3')}
    """)
    for tt in range(4):
        a.e(f'ds_read_b32 v{MM+2*tt}, v4 offset:{M_ROWM + tt*64}')
        a.e(f'ds_read_b32 v{RR+2*tt}, v4 offset:{M_ROWR + tt*64}')
    a.e(f"""
    s_mul_i32 {s('t3')}, {s('t2')}, 192
    v_lshl_add_u32 v5, v3, 4, {s('t3')}
    """)
    for q in range(3):
        a.e(f'ds_read_b128 {vr(CG+q*4,4)}, v5 offset:{M_CS + q*64}')
        a.e(f'ds_read_b128 {vr(CU+q*4,4)}, v5 offset:{M_CS + 384 + q*64}')
    a.e(f"""
    s_lshl_b32 {s('t3')}, {s('r')}, 1
    s_add_u32 {s('t3')}, {s('t3')}, {s('t1')}
    s_mul_i32 {s('t3')}, {s('t3')}, 196608
    s_add_u32 {s('t3')}, {s('t3')}, {s('lb')}
    s_add_u32 {s('t3')}, {s('t3')}, {oH}
    s_mul_i32 {s('t4')}, {s('j')}, 12
    s_mul_i32 {s('t5')}, {s('t2')}, 6
    s_add_u32 {s('t4')}, {s('t4')}, {s('t5')}
    v_lshrrev_b32 v4, 1, v3
    v_add_u32 v4, {s('t4')}, v4
    v_and_b32 v5, 1, v3
    v_lshlrev_b32 v5, 10, v5
    v_lshl_add_u32 v5, v2, 4, v5
    """)
    AD = 8
    for q in range(3):
        a.e(f"""
        v_add_u32 v6, {2*q}, v4
        v_lshrrev_b32 v7, 2, v6
        v_lshlrev_b32 v7, 12, v7
        v_and_b32 v6, 3, v6
        v_lshl_add_u32 v7, v6, 8, v7
        v_add_u32 v{AD+q}, v7, v5
        """)
    a.e('s_waitcnt vmcnt(0) lgkmcnt(0)')
    for tt in range(4):
        a.e(f'v_mul_f32 v{RR+2*tt}, v{RR+2*tt}, v{RR+2*tt}')
    PK = FR + 16
    def pk(u, q): return PK + (u*3 + q)*4
    for u in range(2):
        for q in range(3):
            for tt in (2*u, 2*u+1):
                G, U = acc(tt, q), acc(tt, 3+q)
                for i in (0, 2):
                    a.e(f'v_pk_fma_f32 {vr(G+i,2)}, {vr(MM+2*tt,2)}, {vr(CG+q*4+i,2)}, {vr(G+i,2)} op_sel_hi:[0,1,1] neg_lo:[1,0,0] neg_hi:[1,0,0]')
                    a.e(f'v_pk_fma_f32 {vr(U+i,2)}, {vr(MM+2*tt,2)}, {vr(CU+q*4+i,2)}, {vr(U+i,2)} op_sel_hi:[0,1,1] neg_lo:[1,0,0] neg_hi:[1,0,0]')
                for i in (0, 2):
                    a.e(f'v_pk_mul_f32 {vr(G+i,2)}, {vr(G+i,2)}, {vr(U+i,2)}')
                for i in (0, 2):
                    a.e(f'v_pk_mul_f32 {vr(G+i,2)}, {vr(G+i,2)}, {vr(RR+2*tt,2)} op_sel_hi:[1,0]')
                p = pk(u, q) + 2*(tt & 1)
                a.e(f'v_cvt_pk_bf16_f32 v{p}, v{G}, v{G+1}')
                a.e(f'v_cvt_pk_bf16_f32 v{p+1}, v{G+2}, v{G+3}')
            p = pk(u, q)
            o = f' offset:{u*2048}' if u else ''
            a.e(f"""
            s_nop 1
            v_permlane16_swap_b32 v{p}, v{p+2}
            v_permlane16_swap_b32 v{p+1}, v{p+3}
            s_nop 1
            buffer_store_dwordx4 {vr(p,4)}, v{AD+q}, {s("WS",4)}, {s("t3")} offen{o} {SC1}
            """)

def epilogue_P35(a, m, ph):
    acc, FR = m['acc'], m['FR']
    a.c(f'---- epilogue {ph}')
    if ph == 'P3':
        a.e('s_waitcnt vmcnt(0)')
    for ct in range(5):
        A = acc(0, ct)
        R = RESID + 2*ct
        a.e(f"""
        v_lshlrev_b32 v4, 16, v{R}
        v_and_b32 v5, 0xffff0000, v{R}
        v_lshlrev_b32 v6, 16, v{R+1}
        v_and_b32 v7, 0xffff0000, v{R+1}
        v_pk_add_f32 {vr(A,2)}, {vr(A,2)}, v[4:5]
        v_pk_add_f32 {vr(A+2,2)}, {vr(A+2,2)}, v[6:7]
        v_cvt_pk_bf16_f32 v{R}, v{A}, v{A+1}
        v_cvt_pk_bf16_f32 v{R+1}, v{A+2}, v{A+3}
        """)
    PK = FR
    for pr in range(2):
        for i in range(4):
            a.e(f'v_mov_b32 v{PK+pr*4+i}, v{RESID+pr*4+i}')
    AD = FR + 8
    lo = a.newlabel('Lout'); le = a.newlabel('Le35')
    if ph == 'P5':
        a.e(f's_cmp_eq_u32 {s("layer")}, 1\ns_cbranch_scc1 {lo}')
    xo = oX1 if ph == 'P3' else oX2
    sto = oST1 if ph == 'P3' else oST2
    a.e(f"""
    s_mul_i32 {s('t3')}, {s('r')}, 163840
    s_add_u32 {s('t3')}, {s('t3')}, {s('lb')}
    s_add_u32 {s('t3')}, {s('t3')}, {xo}
    s_and_b32 {s('t4')}, {s('rb64')}, 1
    s_lshl_b32 {s('t4')}, {s('t4')}, 2
    s_add_u32 {s('t4')}, {s('t4')}, {s('lw')}
    s_lshl_b32 {s('t4')}, {s('t4')}, 11
    s_add_u32 {s('t3')}, {s('t3')}, {s('t4')}
    s_mul_i32 {s('t4')}, {s('cb')}, 10
    v_and_b32 v4, 1, v3
    v_lshrrev_b32 v5, 1, v3
    v_lshl_add_u32 v6, v4, 1, v5
    v_add_u32 v6, {s('t4')}, v6
    v_add_u32 v7, {s('t4')}, v5
    v_permlane16_swap_b32 v{PK}, v{PK+2}
    v_permlane16_swap_b32 v{PK+1}, v{PK+3}
    v_permlane16_swap_b32 v{PK+4}, v{PK+6}
    v_permlane16_swap_b32 v{PK+5}, v{PK+7}
    """)
    for pr in range(2):
        a.e(f"""
        v_add_u32 v8, {4*pr}, v6
        v_lshrrev_b32 v9, 3, v8
        v_lshlrev_b32 v9, 14, v9
        v_and_b32 v8, 7, v8
        v_lshl_add_u32 v9, v8, 8, v9
        v_lshl_add_u32 v{AD+pr}, v2, 4, v9
        buffer_store_dwordx4 {vr(PK+pr*4,4)}, v{AD+pr}, {s("WS",4)}, {s("t3")} offen {SC1}
        """)
    a.e(f"""
    v_add_u32 v8, 8, v7
    v_lshrrev_b32 v9, 3, v8
    v_lshlrev_b32 v9, 14, v9
    v_and_b32 v8, 7, v8
    v_lshl_add_u32 v9, v8, 8, v9
    v_lshl_add_u32 v9, v2, 4, v9
    v_lshl_add_u32 v{AD+2}, v4, 3, v9
    buffer_store_dwordx2 {vr(RESID+8,2)}, v{AD+2}, {s("WS",4)}, {s("t3")} offen {SC1}
    s_mov_b32 {s('c0')}, 0x3f803f80
    v_mov_b32 v12, 0
    v_mov_b32 v13, 0
    """)
    for i in range(10):
        a.e(f'v_dot2_f32_bf16 v12, v{RESID+i}, {s("c0")}, v12')
        a.e(f'v_dot2_f32_bf16 v13, v{RESID+i}, v{RESID+i}, v13')
    a.e(f"""
    s_nop 2
    v_mov_b32 v14, v12
    v_mov_b32 v15, v13
    s_nop 1
    v_permlane16_swap_b32 v12, v14
    v_permlane16_swap_b32 v13, v15
    s_nop 1
    v_add_f32 v12, v12, v14
    v_add_f32 v13, v13, v15
    v_mov_b32 v14, v12
    v_mov_b32 v15, v13
    s_nop 1
    v_permlane32_swap_b32 v12, v14
    v_permlane32_swap_b32 v13, v15
    s_nop 1
    v_add_f32 v12, v12, v14
    v_add_f32 v13, v13, v15
    s_lshl_b32 {s('t3')}, {s('rb64')}, 2
    s_add_u32 {s('t3')}, {s('t3')}, {s('lw')}
    s_lshl_b32 {s('t3')}, {s('t3')}, 3
    s_add_u32 {s('t3')}, {s('t3')}, {s('cb')}
    s_lshl_b32 {s('t3')}, {s('t3')}, 7
    s_add_u32 {s('t3')}, {s('t3')}, {s('lb')}
    s_add_u32 {s('t3')}, {s('t3')}, {sto}
    v_lshlrev_b32 v4, 3, v2
    s_mov_b64 exec, 0xffff
    buffer_store_dwordx2 v[12:13], v4, {s("WS",4)}, {s("t3")} offen {SC1}
    s_mov_b64 exec, -1
    """)
    if ph == 'P5':
        a.e(f"""
        s_branch {le}
        {lo}:
        s_lshl_b32 {s('t3')}, {s('rb64')}, 2
        s_add_u32 {s('t3')}, {s('t3')}, {s('lw')}
        s_mul_i32 {s('t3')}, {s('t3')}, {16*1280}
        s_mul_i32 {s('t4')}, {s('cb')}, 160
        s_add_u32 {s('t3')}, {s('t3')}, {s('t4')}
        v_mul_u32_u24 v6, 1280, v2
        v_and_b32 v4, 1, v3
        v_lshrrev_b32 v5, 1, v3
        v_lshl_add_u32 v7, v4, 5, v6
        v_lshl_add_u32 v7, v5, 4, v7
        v_lshl_add_u32 v8, v3, 3, v6
        v_permlane16_swap_b32 v{PK}, v{PK+2}
        v_permlane16_swap_b32 v{PK+1}, v{PK+3}
        v_permlane16_swap_b32 v{PK+4}, v{PK+6}
        v_permlane16_swap_b32 v{PK+5}, v{PK+7}
        s_nop 1
        buffer_store_dwordx4 {vr(PK,4)}, v7, {s('OUT',4)}, {s('t3')} offen
        buffer_store_dwordx4 {vr(PK+4,4)}, v7, {s('OUT',4)}, {s('t3')} offen offset:64
        buffer_store_dwordx2 {vr(RESID+8,2)}, v8, {s('OUT',4)}, {s('t3')} offen offset:128
        {le}:
        """)

M_SIG = MISC + 2048
M_CS = MISC + 2304
def lds_spin(a, addr_off, val_s):
    lp = a.newlabel('Lspin')
    a.e(f"""
    v_mov_b32 v4, {addr_off}
    {lp}:
    ds_read_b32 v5, v4
    s_waitcnt lgkmcnt(0)
    v_readfirstlane_b32 {s('t0')}, v5
    s_cmp_lg_u32 {s('t0')}, {val_s}
    s_cbranch_scc1 {lp}
    """)

def attention_phase(a, role, prefetch_cb=None):
    a.c('---- attention')
    SA, SBt = 16, 32
    CM = 48
    C0, C8 = 64, 80
    OB = 96
    KF = 112
    VF = 168
    QF = 184
    PB = 192
    vKa, vKb, vVa, vq, vneg, vzero, vm = 'v8', 'v9', 'v10', 'v11', 'v12', 'v13', 'v14'
    if role == 'C':
        ls = a.newlabel('Lsa')
        a.e(f"""
        s_cmp_ge_u32 {s('wave')}, 2
        s_cbranch_scc1 {ls}
        s_lshl_b32 {s('t1')}, {s('blk')}, 5
        s_add_u32 {s('t1')}, {s('t1')}, {s('head')}
        s_mul_i32 {s('t1')}, {s('t1')}, 20480
        s_add_u32 {s('t1')}, {s('t1')}, {s('lb')}
        s_add_u32 {s('t1')}, {s('t1')}, {oKV}
        s_mul_i32 {s('t2')}, {s('wave')}, 10240
        s_add_u32 {s('t1')}, {s('t1')}, {s('t2')}
        s_mul_i32 {s('t3')}, {s('wave')}, 20480
        s_add_u32 {s('t3')}, {s('t3')}, {KB + 10240}
        v_add_u32 v4, {s('t3')}, v1
        """)
        for p in range(10):
            a.e(f'ds_read_b128 {vr(16+4*p,4)}, v4 offset:{p*1024}')
        for p in range(10):
            if p % 4 == 0 and p: a.e(f's_add_u32 {s("t1")}, {s("t1")}, 4096')
            a.e(f's_waitcnt lgkmcnt({9-p})')
            o = f' offset:{(p%4)*1024}' if p % 4 else ''
            a.e(f'buffer_store_dwordx4 {vr(16+4*p,4)}, v1, {s("WS",4)}, {s("t1")} offen{o} {SC1}')
        a.e('s_nop 1')
        a.label(ls)
    a.e(f"""
    s_sub_u32 {s('t2')}, 11, {s('wave')}
    s_cmp_lt_u32 {s('wave')}, 4
    s_cselect_b32 {s('qt')}, {s('wave')}, {s('t2')}
    s_mul_i32 {s('t4')}, {s('qt')}, 1280
    s_add_u32 {s('t3')}, {s('t4')}, {KB}
    v_lshrrev_b32 v4, 1, v3
    v_bfe_u32 v5, v0, 2, 2
    v_and_b32 v6, 3, v0
    v_and_b32 v7, 1, v3
    v_lshl_add_u32 v7, v7, 2, v6
    v_xor_b32 v7, v7, v5
    v_lshlrev_b32 v7, 3, v7
    v_lshl_add_u32 v6, v4, 3, v5
    v_lshl_add_u32 {vKa}, v6, 6, v7
    v_add_u32 v6, 16, v5
    v_lshl_add_u32 {vKb}, v6, 6, v7
    s_add_u32 {s('t5')}, {s('t4')}, {QB_}
    v_add_u32 v208, {s('t5')}, {vKa}
    v_add_u32 v209, {s('t5')}, {vKb}
    v_xor_b32 v210, 32, v208
    v_add_u32 {vKa}, {s('t3')}, {vKa}
    v_add_u32 {vKb}, {s('t3')}, {vKb}
    v_xor_b32 v15, 32, {vKa}
    ds_read_b64_tr_b16 {vr(QF,2)}, v208
    ds_read_b64_tr_b16 {vr(QF+2,2)}, v210 offset:256
    ds_read_b64_tr_b16 {vr(QF+4,2)}, v209
    v_and_b32 v6, 31, v0
    v_mul_u32_u24 v7, 320, v4
    v_lshl_add_u32 {vVa}, v6, 4, v7
    s_add_u32 {s('t3')}, {s('t3')}, 20480
    v_add_u32 {vVa}, {s('t3')}, {vVa}
    v_lshlrev_b32 v7, 2, v4
    v_sub_u32 {vq}, v6, v7
    v_mov_b32 {vneg}, {f32(NEG)}
    v_mov_b32 {vzero}, 0
    s_sub_u32 {s('c2')}, 8, {s('qt')}
    s_sub_u32 {s('c3')}, 7, {s('qt')}
    v_mov_b32 v7, 0x3f803f80
    v_cmp_eq_u32 vcc, 20, v6
    s_nop 1
    v_cndmask_b32 v7, 0, v7, vcc
    s_mov_b32 {s('m0a')}, 0xfffff
    s_mov_b32 s{S['m0a']+1}, 0xfffff
    """)
    def kf(t): return KF + t*6
    def kreads(t):
        k = kf(t)
        return [f'ds_read_b64_tr_b16 {vr(k,2)}, {vKa} offset:{t*1280}',
                f'ds_read_b64_tr_b16 {vr(k+2,2)}, v15 offset:{t*1280+256}',
                f'ds_read_b64_tr_b16 {vr(k+4,2)}, {vKb} offset:{t*1280}']
    def vreads(t, st):
        v = VF + st*8
        return [f's_mov_b64 exec, {s("m0a",2)}',
                f'ds_read_b128 {vr(v,4)}, {vVa} offset:{t*1280}',
                f'ds_read_b128 {vr(v+4,4)}, {vVa} offset:{t*1280+640}',
                's_mov_b64 exec, -1']
    def qk(t, D, C):
        k = kf(t)
        return [f'v_mfma_f32_32x32x16_bf16 {vr(D,16)}, {vr(k,4)}, {vr(QF,4)}, {C}',
                f'v_mfma_f32_32x32x8_bf16 {vr(D,16)}, {vr(k+4,2)}, {vr(QF+4,2)}, {vr(D,16)}']
    seqA = [8, 7, 6, 5, 4, 3, 2, 1]
    seqB = [0, 1, 2, 3, 4, 5, 6, 7]
    for t in seqA[:3]:
        for r_ in kreads(t): a.e(r_)
    for i in range(16):
        a.e(f'v_mov_b32 v{VF+i}, v7')
    for i in range(16):
        a.e(f'v_mov_b32 v{OB+i}, 0')
    for b in range(4):
        for i in range(4):
            reg = b*4 + i
            creg = 8*(reg >> 2) + (reg & 3)
            a.e(f'v_cmp_gt_i32 s[{64+2*i}:{65+2*i}], {creg}, {vq}')
        a.e('s_nop 1')
        for i in range(4):
            reg = b*4 + i
            a.e(f'v_cndmask_b32 v{C0+reg}, {vneg}, {vzero}, s[{64+2*i}:{65+2*i}]')
            a.e(f'v_cndmask_b32 v{C8+reg}, {vzero}, {vneg}, s[{64+2*i}:{65+2*i}]')
    a.e(f"""
    s_waitcnt lgkmcnt(9)
    s_mov_b32 exec_lo, 0
    v_mov_b32 v{QF+4}, 0
    v_mov_b32 v{QF+5}, 0
    s_mov_b32 exec_lo, -1
    """)
    ch = ['v4', 'v5', 'v6', 'v7']
    buf = [SA, SBt]
    def maxes(D):
        return [f'v_max3_f32 {ch[i & 3]}, {ch[i & 3]}, v{D+2*i}, v{D+2*i+1}' for i in range(8)]
    def part(seq, lim, masked_t, Cmask, first_reads_done):
        n = len(seq)
        ex1 = a.newlabel('Lx1'); ex2 = a.newlabel('Lx2')
        if not first_reads_done:
            for t in seq[:3]:
                for r_ in kreads(t): a.e(r_)
        for c_ in ch: a.e(f'v_mov_b32 {c_}, {vneg}')
        for i in range(16): a.e(f'v_mov_b32 v{buf[1]+i}, {vneg}')
        for k, t in enumerate(seq):
            a.e(f's_waitcnt lgkmcnt({min(6, (n - 1 - k) * 3)})')
            D = buf[k & 1]
            C = vr(Cmask, 16) if t == masked_t else '0'
            q1, q2 = qk(t, D, C)
            mx = maxes(buf[(k - 1) & 1]) if k >= 1 else []
            a.e(q1)
            if k + 3 < n:
                for r_ in kreads(seq[k + 3]): a.e(r_)
                if mx: a.nop(1)
            elif mx: a.nop(4)
            for x in mx[:4]: a.e(x)
            a.e(q2)
            for x in mx[4:]: a.e(x)
            if k < n - 1:
                a.e(f's_cmp_eq_u32 {lim}, {t}\ns_cbranch_scc1 {ex1}')
        a.label(ex1)
        a.nop(14)
        for x in maxes(buf[0]): a.e(x)
        for x in maxes(buf[1]): a.e(x)
        a.e(f"""
        v_max3_f32 v4, v4, v5, v6
        v_max_f32 v4, v4, v7
        v_mov_b32 v5, v4
        s_nop 1
        v_permlane32_swap_b32 v4, v5
        s_nop 1
        v_max_f32 v4, v4, v5
        """)
        if masked_t == 8:
            a.e(f'v_mov_b32 {vm}, v4')
        else:
            a.e(f"""
            v_max_f32 v4, v4, {vm}
            v_sub_f32 v5, {vm}, v4
            v_exp_f32 v5, v5
            v_mov_b32 {vm}, v4
            s_nop 0
            """)
            for i in range(16):
                a.e(f'v_mul_f32 v{OB+i}, v{OB+i}, v5')
        for i in range(16):
            a.e(f'v_sub_f32 v{CM+i}, 0, {vm}')
        for i in range(16):
            a.e(f'v_sub_f32 v{Cmask+i}, v{Cmask+i}, {vm}')
        a.e('s_waitcnt lgkmcnt(0)')
        def C2(t): return vr(Cmask, 16) if t == masked_t else vr(CM, 16)
        def pv(k):
            v = VF + (k & 1)*8; P = PB + (k & 1)*8
            return [f'v_mfma_f32_32x32x16_bf16 {vr(OB,16)}, {vr(v,4)}, {vr(P,4)}, {vr(OB,16)}',
                    f'v_mfma_f32_32x32x16_bf16 {vr(OB,16)}, {vr(v+4,4)}, {vr(P+4,4)}, {vr(OB,16)}']
        for r_ in vreads(seq[0], 0): a.e(r_)
        for x in qk(seq[0], buf[0], C2(seq[0])): a.e(x)
        stubs = []
        for k, t in enumerate(seq):
            D = buf[k & 1]
            P = PB + (k & 1)*8
            nq = qk(seq[k+1], buf[(k+1) & 1], C2(seq[k+1])) if k < n - 1 else []
            pp = pv(k - 1) if k >= 1 else []
            ml = []
            if nq: ml.append(nq[0])
            if pp: ml.append(('wait', pp[0]))
            if nq: ml.append(nq[1])
            if pp: ml.append(pp[1])
            if k == 0: a.nop(12)
            slots = {0: [], 4: [], 8: [], 12: []}
            for idx, m_ in enumerate(ml): slots[4*idx].append(m_)
            for i in range(16):
                for m_ in slots.get(i, []):
                    if isinstance(m_, tuple):
                        a.e('s_waitcnt lgkmcnt(2)')
                        a.e(m_[1])
                    else:
                        a.e(m_)
                if i == 9 and k < n - 1:
                    pass
                a.e(f'v_exp_f32 v{D+i}, v{D+i}')
                if i % 2 == 1 and i >= 3:
                    a.e(f'v_cvt_pk_bf16_f32 v{P+(i-3)//2}, v{D+i-3}, v{D+i-2}')
            a.e('s_nop 0')
            a.e(f'v_cvt_pk_bf16_f32 v{P+7}, v{D+14}, v{D+15}')
            if k < n - 1:
                for r_ in vreads(seq[k+1], (k+1) & 1): a.e(r_)
                st = a.newlabel('Lst')
                a.e(f's_cmp_eq_u32 {lim}, {t}\ns_cbranch_scc1 {st}')
                stubs.append((st, k))
            else:
                a.e('s_waitcnt lgkmcnt(0)\ns_nop 0')
                for x in pv(k): a.e(x)
        a.e(f's_branch {ex2}')
        for st, k in stubs:
            a.label(st)
            a.e('s_waitcnt lgkmcnt(0)\ns_nop 0')
            for x in pv(k): a.e(x)
            a.e(f's_branch {ex2}')
        a.label(ex2)
        a.e('s_waitcnt lgkmcnt(0)')
    part(seqA, s('c2'), 8, C8, True)
    a.stamp(role, 'attn partA')
    if role == 'C':
        lnp1 = a.newlabel('Lnp1')
        a.e(f"""
        s_cmp_lg_u32 {s('layer')}, 0
        s_cbranch_scc1 {lnp1}
        s_cmp_lt_u32 {s('wave')}, 2
        s_cbranch_scc1 {lnp1}
        """)
        for i in range(8): a.e(f'v_mov_b32 v{216+i}, v{8+i}')
        a.e(f's_mov_b32 s100, {s("c2")}\ns_mov_b32 s101, {s("m0a")}')
        emit_prep1(a)
        a.e('s_waitcnt lgkmcnt(0)')
        for i in range(8): a.e(f'v_mov_b32 v{8+i}, v{216+i}')
        a.label(lnp1)
        ls = a.newlabel('Lsb'); l1 = a.newlabel('Lsb1'); lj = a.newlabel('Lsbj'); lnp = a.newlabel('Lsbn')
        a.e(f"""
        s_cmp_ge_u32 {s('wave')}, 2
        s_cbranch_scc1 {ls}
        s_waitcnt vmcnt(0)
        s_add_u32 {s('t5')}, {s('layer')}, 1
        s_cmp_eq_u32 {s('wave')}, 0
        s_cbranch_scc0 {l1}
        """)
        lds_spin(a, M_SIG, s('t5'))
        flag_store(a, 0)
        lp = a.newlabel('Lpp')
        a.e(f"""
        s_cmp_eq_u32 {s('blk')}, 0
        s_cbranch_scc1 {lnp}
        s_lshl_b32 {s('t0')}, {s('j')}, 2
        s_add_u32 {s('t0')}, {s('t0')}, {s('flb')}
        s_sub_u32 {s('t0')}, {s('t0')}, 1024
        v_mov_b32 v4, {s('t0')}
        s_mov_b64 exec, 1
        {lp}:
        buffer_load_dword v5, v4, {s('WS',4)}, 0 offen sc1
        s_waitcnt vmcnt(0)
        v_cmp_ne_u32 vcc, {s('tag')}, v5
        s_cmp_eq_u64 vcc, 0
        s_cbranch_scc0 {lp}
        s_mov_b64 exec, -1
        {lnp}:
        v_mov_b32 v4, {M_SIG + 4}
        v_mov_b32 v5, {s('t5')}
        ds_write_b32 v4, v5
        s_branch {lj}
        {l1}:
        v_mov_b32 v4, {M_SIG}
        v_mov_b32 v5, {s('t5')}
        ds_write_b32 v4, v5
        """)
        lds_spin(a, M_SIG + 4, s('t5'))
        a.label(lj)
        La = Loader(a)
        lnd = a.newlabel('Lsbd')
        a.e(f"""
        s_cmp_eq_u32 {s('blk')}, 0
        s_cbranch_scc1 {lnd}
        s_lshl_b32 {s('t1')}, {s('blk')}, 5
        s_add_u32 {s('t1')}, {s('t1')}, {s('head')}
        s_sub_u32 {s('t1')}, {s('t1')}, 32
        s_mul_i32 {s('t1')}, {s('t1')}, 20480
        s_add_u32 {s('t1')}, {s('t1')}, {s('lb')}
        s_add_u32 {s('t1')}, {s('t1')}, {oKV}
        s_mul_i32 {s('t2')}, {s('wave')}, 10240
        s_add_u32 {s('t1')}, {s('t1')}, {s('t2')}
        s_mul_i32 {s('t3')}, {s('wave')}, 20480
        """)
        dma_linear(a, La, 'PK', s('WS', 4), s('t1'), 0, s('t3'), KB, 10, flags=SC1)
        a.e(f"""
        s_waitcnt vmcnt(0)
        {lnd}:
        """)
        a.label(ls)
    a.e('s_waitcnt lgkmcnt(0)')
    a.e('s_barrier')
    a.stamp(role, 'attn A1')
    if role == 'L' and prefetch_cb:
        prefetch_cb()
    lfin = a.newlabel('Lafin')
    a.e(f's_cmp_eq_u32 {s("blk")}, 0\ns_cbranch_scc1 {lfin}')
    part(seqB, s('c3'), 0, C0, False)
    a.label(lfin)
    a.nop(14)
    a.e(f"""
    v_mov_b32 v4, v{OB+8}
    v_mov_b32 v5, v{OB+8}
    s_nop 1
    v_permlane32_swap_b32 v4, v5
    s_nop 1
    v_rcp_f32 v5, v5
    s_nop 0
    """)
    for i in range(12):
        a.e(f'v_mul_f32 v{OB+i}, v{OB+i}, v5')
    P = PB
    for i in range(6):
        a.e(f'v_cvt_pk_bf16_f32 v{P+i}, v{OB+2*i}, v{OB+2*i+1}')
    a.e(f"""
    s_and_b32 {s('t1')}, {s('head')}, 1
    s_lshl_b32 {s('t3')}, {s('blk')}, 2
    s_lshr_b32 {s('t4')}, {s('qt')}, 1
    s_add_u32 {s('t3')}, {s('t3')}, {s('t4')}
    s_mul_i32 {s('t3')}, {s('t3')}, 81920
    s_add_u32 {s('t3')}, {s('t3')}, {s('lb')}
    s_add_u32 {s('t3')}, {s('t3')}, {oO}
    s_and_b32 {s('t4')}, {s('qt')}, 1
    s_lshl_b32 {s('t4')}, {s('t4')}, 11
    s_add_u32 {s('t3')}, {s('t3')}, {s('t4')}
    v_permlane32_swap_b32 v{P}, v{P+2}
    v_permlane32_swap_b32 v{P+1}, v{P+3}
    s_lshr_b32 {s('t4')}, {s('head')}, 1
    s_mul_i32 {s('t4')}, {s('t4')}, 5
    s_lshl_b32 {s('t5')}, {s('t1')}, 1
    s_add_u32 {s('t5')}, {s('t5')}, {s('t4')}
    v_and_b32 v4, 1, v3
    v_lshlrev_b32 v4, 10, v4
    v_lshl_add_u32 v4, v2, 4, v4
    v_lshrrev_b32 v5, 1, v3
    v_add_u32 v5, {s('t5')}, v5
    v_lshrrev_b32 v6, 2, v5
    v_lshlrev_b32 v6, 12, v6
    v_and_b32 v5, 3, v5
    v_lshl_add_u32 v6, v5, 8, v6
    v_add_u32 v6, v6, v4
    buffer_store_dwordx4 {vr(P,4)}, v6, {s('WS',4)}, {s('t3')} offen {SC1}
    s_add_u32 {s('t4')}, {s('t4')}, 4
    s_lshr_b32 {s('t5')}, {s('t4')}, 2
    s_lshl_b32 {s('t5')}, {s('t5')}, 12
    s_and_b32 {s('t4')}, {s('t4')}, 3
    s_lshl_b32 {s('t4')}, {s('t4')}, 8
    s_add_u32 {s('t5')}, {s('t5')}, {s('t4')}
    s_lshl_b32 {s('t4')}, {s('t1')}, 3
    s_add_u32 {s('t5')}, {s('t5')}, {s('t4')}
    v_add_u32 v7, {s('t5')}, v4
    s_mov_b32 exec_hi, 0
    buffer_store_dwordx2 {vr(P+4,2)}, v7, {s('WS',4)}, {s('t3')} offen {SC1}
    s_mov_b32 exec_hi, -1
    """)
    a.stamp(role, 'attn stores')
    a.e('s_waitcnt vmcnt(0)')
    a.stamp(role, 'attn drained')

PW = dict(wo=76, wg=78, wu=80, wd=82)
def emit_unit_A(a, su, srd, dst, csp, vo, ldsoff):
    k, cg, pitch, typ, base, per, x, y = [f's{i}' for i in range(92, 100)]
    L = lambda p: a.newlabel(p)
    lwg, lwu, lwd, lgo5, lgu, lld, lnp = L('Ug'), L('Uu'), L('Ud'), L('U5'), L('Ugu'), L('Uld'), L('Unp')
    S0, S1, S2, S3 = f's{srd}', f's{srd+1}', f's{srd+2}', f's{srd+3}'
    a.e(f"""
    s_mov_b32 {S3}, 0x20000
    s_cmp_lt_u32 {su}, 480
    s_cbranch_scc1 {lwg}
    s_cmp_lt_u32 {su}, 960
    s_cbranch_scc1 {lwu}
    s_cmp_lt_u32 {su}, 1440
    s_cbranch_scc1 {lwd}
    s_sub_u32 {x}, {su}, 1440
    s_mov_b32 {S0}, s{PW['wo']}
    s_mov_b32 {S1}, s{PW['wo']+1}
    s_mov_b32 {S2}, 819200
    s_mov_b32 {typ}, 1
    s_mov_b32 {base}, {WO_P}
    s_mov_b32 {per}, {20*5*1024}
    s_branch {lgo5}
    {lwd}:
    s_sub_u32 {x}, {su}, 960
    s_mov_b32 {S0}, s{PW['wd']}
    s_mov_b32 {S1}, s{PW['wd']+1}
    s_mov_b32 {S2}, 1966080
    s_mov_b32 {typ}, 0
    s_mov_b32 {base}, {WD_P}
    s_mov_b32 {per}, {48*5*1024}
    {lgo5}:
    s_mul_i32 {k}, {x}, 6554
    s_lshr_b32 {k}, {k}, 16
    s_mul_i32 {y}, {k}, 10
    s_sub_u32 {cg}, {x}, {y}
    s_movk_i32 {pitch}, 1280
    s_mov_b32 s{csp}, -1
    s_mul_i32 {y}, {k}, 5120
    s_add_u32 {base}, {base}, {y}
    """)
    for i in range(4):
        a.e(f"""
        s_lshl_b32 {x}, {cg}, 2
        s_add_u32 {x}, {x}, {i}
        s_mul_i32 {y}, {x}, 13108
        s_lshr_b32 {y}, {y}, 16
        s_mul_i32 s{dst+i}, {y}, {per}
        s_mul_i32 {y}, {y}, 5
        s_sub_u32 {x}, {x}, {y}
        s_lshl_b32 {x}, {x}, 10
        s_add_u32 s{dst+i}, s{dst+i}, {x}
        s_add_u32 s{dst+i}, s{dst+i}, {base}
        """)
    a.e(f"""
    s_branch {lld}
    {lwg}:
    s_mov_b32 {x}, {su}
    s_mov_b32 {S0}, s{PW['wg']}
    s_mov_b32 {S1}, s{PW['wg']+1}
    s_mov_b32 {per}, 0
    s_branch {lgu}
    {lwu}:
    s_sub_u32 {x}, {su}, 480
    s_mov_b32 {S0}, s{PW['wu']}
    s_mov_b32 {S1}, s{PW['wu']+1}
    s_mov_b32 {per}, 1
    {lgu}:
    s_mov_b32 {S2}, 1966080
    s_movk_i32 {pitch}, 3072
    s_mov_b32 {typ}, 0
    s_mul_i32 {k}, {x}, 2731
    s_lshr_b32 {k}, {k}, 16
    s_mul_i32 {y}, {k}, 24
    s_sub_u32 {cg}, {x}, {y}
    s_lshl_b32 {y}, {k}, 1
    s_add_u32 {y}, {y}, {per}
    s_mul_i32 s{csp}, {y}, 6144
    s_lshl_b32 {y}, {cg}, 8
    s_add_u32 s{csp}, s{csp}, {y}
    s_add_u32 s{csp}, s{csp}, {CSP}
    s_mul_i32 {base}, {k}, 12288
    s_mul_i32 {y}, {per}, 6144
    s_add_u32 {base}, {base}, {y}
    s_add_u32 {base}, {base}, {WGU_P}
    """)
    for i in range(4):
        a.e(f"""
        s_lshl_b32 {x}, {cg}, 2
        s_add_u32 {x}, {x}, {i}
        s_mul_i32 {y}, {x}, 10923
        s_lshr_b32 {y}, {y}, 16
        s_mul_i32 s{dst+i}, {y}, 245760
        s_mul_i32 {y}, {y}, 6
        s_sub_u32 {x}, {x}, {y}
        s_lshl_b32 {x}, {x}, 10
        s_add_u32 s{dst+i}, s{dst+i}, {x}
        s_add_u32 s{dst+i}, s{dst+i}, {base}
        """)
    a.label(lld)
    for p in range(4):
        np_ = a.newlabel('Unp')
        a.e(f"""
        v_lshrrev_b32 v4, 3, v0
        s_lshl_b32 {x}, {k}, 5
        s_add_u32 {x}, {x}, {8*p}
        v_add_u32 v4, {x}, v4
        s_cmp_eq_u32 {typ}, 1
        s_cbranch_scc0 {np_}
        s_movk_i32 {x}, 1639
        v_mul_u32_u24 v5, {x}, v4
        v_lshrrev_b32 v5, 16, v5
        v_mul_u32_u24 v5, 40, v5
        v_sub_u32 v6, v4, v5
        v_mov_b32 v4, v6
        v_add_u32 v7, 4, v6
        v_cmp_le_u32 vcc, 16, v6
        s_nop 1
        v_cndmask_b32 v4, v4, v7, vcc
        v_subrev_u32 v7, 16, v6
        v_cmp_le_u32 vcc, 32, v6
        s_nop 1
        v_cndmask_b32 v4, v4, v7, vcc
        v_cmp_le_u32 vcc, 36, v6
        s_nop 1
        v_cndmask_b32 v4, v4, v6, vcc
        v_add_u32 v4, v5, v4
        {np_}:
        v_mul_lo_u32 v4, v4, {pitch}
        v_and_b32 v5, 7, v0
        v_lshl_add_u32 v{vo+p}, v5, 4, v4
        s_lshl_b32 {x}, {cg}, 7
        s_add_u32 m0, {s('c0')}, {ldsoff + p*1024}
        s_nop 0
        buffer_load_dwordx4 v{vo+p}, s[{srd}:{srd+3}], {x} offen lds
        """)

def emit_unit_A_out(a, dst, csp, ldsoff):
    a.e(f's_add_u32 {s("t1")}, {s("c0")}, {ldsoff}\nv_add_u32 v4, {s("t1")}, v20')
    for i in range(4):
        a.e(f'ds_read_b64_tr_b16 {vr(24+4*i,2)}, v4 offset:{i*32}')
        a.e(f'ds_read_b64_tr_b16 {vr(26+4*i,2)}, v4 offset:{i*32 + 512}')
    a.e('s_waitcnt lgkmcnt(0)')
    for i in range(4):
        a.e(f'buffer_store_dwordx4 {vr(24+4*i,4)}, v1, {s("WS",4)}, s{dst+i} offen {SC1}')
    nc = a.newlabel('Unc')
    a.e(f's_cmp_eq_u32 s{csp}, -1\ns_cbranch_scc1 {nc}')
    a.e(f's_mov_b32 {s("t2")}, 0x3f803f80')
    for i in range(4):
        a.e(f'v_mov_b32 v{40+i}, 0')
    for r_ in range(4):
        for i in range(4):
            a.e(f'v_dot2_f32_bf16 v{40+i}, v{24+4*i+r_}, {s("t2")}, v{40+i}')
    a.e('s_nop 3')
    for i in range(4):
        a.e(f"""
        v_mov_b32 v5, v{40+i}
        s_nop 1
        v_permlane16_swap_b32 v{40+i}, v5
        s_nop 1
        v_add_f32 v{40+i}, v{40+i}, v5
        v_mov_b32 v5, v{40+i}
        s_nop 1
        v_permlane32_swap_b32 v{40+i}, v5
        s_nop 1
        v_add_f32 v{40+i}, v{40+i}, v5
        """)
    a.e(f"""
    v_cmp_eq_u32 vcc, 1, v3
    s_nop 1
    v_cndmask_b32 v40, v40, v41, vcc
    v_cmp_eq_u32 vcc, 2, v3
    s_nop 1
    v_cndmask_b32 v40, v40, v42, vcc
    v_cmp_eq_u32 vcc, 3, v3
    s_nop 1
    v_cndmask_b32 v40, v40, v43, vcc
    v_lshlrev_b32 v5, 2, v0
    buffer_store_dword v40, v5, {s("WS",4)}, s{csp} offen {SC1}
    {nc}:
    """)

def prep_common(a, scratch_base, per_wave):
    a.e(f"""
    s_load_dwordx2 s[76:77], s[0:1], 16
    s_load_dwordx4 s[68:71], s[0:1], 32
    s_load_dwordx2 s[82:83], s[0:1], 48
    s_mul_i32 {s('c0')}, {s('lw')}, {per_wave}
    s_add_u32 {s('c0')}, {s('c0')}, {scratch_base}
    v_bfe_u32 v4, v0, 2, 2
    v_lshl_add_u32 v4, v3, 3, v4
    v_lshlrev_b32 v4, 7, v4
    v_and_b32 v5, 3, v0
    v_lshl_add_u32 v20, v5, 3, v4
    s_waitcnt lgkmcnt(0)
    s_mov_b32 s78, s68
    s_mov_b32 s79, s69
    s_mov_b32 s80, s70
    s_mov_b32 s81, s71
    """)

def prep_A2(a, n):
    l1 = a.newlabel('Up1'); l2 = a.newlabel('Up2'); l3 = a.newlabel('Up3'); l4 = a.newlabel('Up4')
    a.e(f's_cmp_lt_u32 s73, 1640\ns_cbranch_scc0 {l1}')
    emit_unit_A(a, 's73', 84, 88, 74, 8, 0)
    a.label(l1)
    if n == 2:
        a.e(f's_cmp_lt_u32 s59, 1640\ns_cbranch_scc0 {l2}')
        emit_unit_A(a, 's59', 64, 68, 75, 12, 4096)
        a.label(l2)
    a.e('s_waitcnt vmcnt(0)')
    a.e(f's_cmp_lt_u32 s73, 1640\ns_cbranch_scc0 {l3}')
    emit_unit_A_out(a, 88, 74, 0)
    a.label(l3)
    if n == 2:
        a.e(f's_cmp_lt_u32 s59, 1640\ns_cbranch_scc0 {l4}')
        emit_unit_A_out(a, 68, 75, 4096)
        a.label(l4)

def prep_B(a):
    sk = a.newlabel('Ub')
    a.e(f"""
    s_cmp_lt_u32 s92, 640
    s_cbranch_scc0 {sk}
    s_lshr_b32 s93, s92, 5
    s_and_b32 s94, s92, 31
    s_mul_i32 s95, s94, 40
    s_and_b32 s58, s95, 15
    s_andn2_b32 s95, s95, 15
    s_mul_i32 s96, s93, {32*3840}
    s_add_u32 s96, s96, s95
    v_lshrrev_b32 v4, 2, v0
    v_mul_u32_u24 v4, 3840, v4
    v_and_b32 v5, 3, v0
    v_lshl_add_u32 v16, v5, 4, v4
    s_mul_i32 s57, s94, 81920
    s_lshl_b32 s98, s93, 12
    s_add_u32 s57, s57, s98
    s_add_u32 s57, s57, {WQ_P}
    """)
    for part in range(3):
        for p in range(2):
            a.e(f"""
            s_add_u32 m0, {s('c0')}, {part*2048 + p*1024}
            s_add_u32 s98, s96, {part*1280 + p*16*3840}
            buffer_load_dwordx4 v16, {s('WQKV',4)}, s98 offen lds
            """)
    a.e(f"""
    s_waitcnt vmcnt(0)
    v_bfe_u32 v4, v0, 2, 2
    v_lshl_add_u32 v6, v3, 3, v4
    v_lshlrev_b32 v6, 6, v6
    s_add_u32 s97, {s('c0')}, s58
    v_add_u32 v6, s97, v6
    v_and_b32 v5, 3, v0
    v_lshl_add_u32 v7, v5, 3, v6
    v_min_u32 v5, 2, v5
    v_lshl_add_u32 v6, v5, 11, v6
    ds_read_b64_tr_b16 v[24:25], v7
    ds_read_b64_tr_b16 v[26:27], v7 offset:256
    ds_read_b64_tr_b16 v[28:29], v7 offset:2048
    ds_read_b64_tr_b16 v[30:31], v7 offset:2304
    ds_read_b64_tr_b16 v[32:33], v7 offset:4096
    ds_read_b64_tr_b16 v[34:35], v7 offset:4352
    ds_read_b64_tr_b16 v[36:37], v6 offset:32
    ds_read_b64_tr_b16 v[38:39], v6 offset:288
    s_waitcnt lgkmcnt(0)
    buffer_store_dwordx4 v[24:27], v1, {s('WS',4)}, s57 offen {SC1}
    buffer_store_dwordx4 v[28:31], v1, {s('WS',4)}, s57 offen offset:1024 {SC1}
    buffer_store_dwordx4 v[32:35], v1, {s('WS',4)}, s57 offen offset:2048 {SC1}
    buffer_store_dwordx4 v[36:39], v1, {s('WS',4)}, s57 offen offset:3072 {SC1}
    s_nop 1
    {sk}:
    """)

def emit_prep0(a):
    a.c('---- prep 0 (wo)')
    sk = a.newlabel('Up0')
    a.e(f"""
    s_cmp_lg_u32 {s('lw')}, 0
    s_cbranch_scc1 {sk}
    s_cmp_lt_u32 s2, 200
    s_cbranch_scc0 {sk}
    """)
    prep_common(a, 53248 + 2*32768, 8192)
    a.e('s_add_u32 s73, s2, 1440')
    prep_A2(a, 1)
    a.label(sk)

def emit_stats0(a):
    a.c('---- stats0')
    sk = a.newlabel('Ls0')
    a.e(f"""
    s_cmp_lg_u32 {s('lw')}, 1
    s_cbranch_scc1 {sk}
    s_lshl_b32 {s('t1')}, {s('blk')}, 5
    s_add_u32 {s('t1')}, {s('t1')}, {s('head')}
    s_mul_i32 {s('t1')}, {s('t1')}, {8*1280}
    v_lshrrev_b32 v4, 3, v0
    v_mul_u32_u24 v4, 1280, v4
    v_and_b32 v5, 7, v0
    v_mul_u32_u24 v6, 160, v5
    v_add_u32 v4, v4, v6
    """)
    for i in range(10):
        a.e(f'buffer_load_dwordx4 {vr(24+4*i,4)}, v4, {s("XIN",4)}, {s("t1")} offen offset:{16*i}')
    a.e(f"""
    v_mov_b32 v8, 0
    v_mov_b32 v9, 0
    s_mov_b32 {s('t2')}, 0x3f803f80
    s_waitcnt vmcnt(0)
    """)
    for i in range(40):
        a.e(f'v_dot2_f32_bf16 v8, v{24+i}, {s("t2")}, v8')
        a.e(f'v_dot2_f32_bf16 v9, v{24+i}, v{24+i}, v9')
    a.e('s_nop 4')
    for mod in ('quad_perm:[1,0,3,2]', 'quad_perm:[2,3,0,1]', 'row_half_mirror'):
        a.e(f"""
        v_add_f32_dpp v10, v8, v8 {mod}
        v_add_f32_dpp v11, v9, v9 {mod}
        s_nop 1
        v_mov_b32 v8, v10
        v_mov_b32 v9, v11
        s_nop 1
        """)
    a.e(f"""
    v_cmp_eq_u32 vcc, 0, v5
    s_nop 1
    v_cndmask_b32 v8, 0, v8, vcc
    v_cndmask_b32 v9, 0, v9, vcc
    s_lshl_b32 {s('t1')}, {s('blk')}, 4
    s_lshr_b32 {s('t2')}, {s('head')}, 1
    s_add_u32 {s('t1')}, {s('t1')}, {s('t2')}
    s_lshl_b32 {s('t1')}, {s('t1')}, 10
    s_and_b32 {s('t2')}, {s('head')}, 1
    s_lshl_b32 {s('t2')}, {s('t2')}, 6
    s_add_u32 {s('t1')}, {s('t1')}, {s('t2')}
    s_add_u32 {s('t1')}, {s('t1')}, {ST0}
    v_lshrrev_b32 v4, 3, v0
    v_lshlrev_b32 v4, 3, v4
    v_lshl_add_u32 v4, v5, 7, v4
    buffer_store_dwordx2 v[8:9], v4, {s('WS',4)}, {s('t1')} offen {SC1}
    s_waitcnt vmcnt(0)
    s_lshl_b32 {s('t1')}, {s('blk')}, 7
    s_lshl_b32 {s('t2')}, {s('head')}, 2
    s_add_u32 {s('t1')}, {s('t1')}, {s('t2')}
    s_add_u32 {s('t1')}, {s('t1')}, {FLAGS + 90112}
    v_mov_b32 v4, {s('t1')}
    v_mov_b32 v5, {s('tag')}
    s_mov_b64 exec, 1
    buffer_store_dword v5, v4, {s('WS',4)}, 0 offen sc1
    s_mov_b64 exec, -1
    {sk}:
    """)

def emit_prep1(a):
    a.c('---- prep 1 (wgu)')
    prep_common(a, 4096, 8192)
    a.e(f"""
    s_lshl_b32 s73, s2, 1
    s_add_u32 s73, s73, {s('wave')}
    s_sub_u32 s73, s73, 2
    s_lshl_b32 s73, s73, 1
    s_add_u32 s59, s73, 1
    s_cmp_lt_u32 s73, 960
    s_cselect_b32 s73, s73, 2000
    s_cmp_lt_u32 s59, 960
    s_cselect_b32 s59, s59, 2000
    """)
    prep_A2(a, 2)

def emit_prep2(a):
    a.c('---- prep 2 (wd)')
    prep_common(a, 135168, 7168)
    a.e(f"""
    s_lshl_b32 s73, s2, 1
    s_add_u32 s73, s73, {s('lw')}
    s_add_u32 s73, s73, 960
    s_cmp_lt_u32 s73, 1440
    s_cselect_b32 s73, s73, 2000
    s_cmp_lt_u32 {s('lw')}, 2
    s_cselect_b32 s73, s73, 2000
    """)
    prep_A2(a, 1)

def emit_prep3(a):
    a.c('---- prep 3 (wq)')
    a.e(f"""
    s_mov_b32 {s('c0')}, 151552
    s_cmp_eq_u32 {s('lw')}, 1
    s_cselect_b32 {s('c0')}, 157696, {s('c0')}
    s_cmp_eq_u32 {s('lw')}, 2
    s_cselect_b32 {s('c0')}, 77824, {s('c0')}
    s_mul_i32 s92, s2, 3
    s_add_u32 s92, s92, {s('lw')}
    s_cmp_lt_u32 {s('lw')}, 3
    s_cselect_b32 s92, s92, 2000
    """)
    prep_B(a)

def emit_allprep_poll(a, ph=0):
    sk = a.newlabel('Lap'); lp = a.newlabel('Lapp')
    a.e(f"""
    s_cmp_lg_u32 {s('layer')}, 0
    s_cbranch_scc1 {sk}
    v_lshrrev_b32 v4, 2, v0
    v_lshlrev_b32 v4, 9, v4
    v_and_b32 v5, 3, v0
    v_lshl_add_u32 v4, v5, 4, v4
    v_add_u32 v4, {FLAGS + ph*8192}, v4
    {lp}:
    buffer_load_dwordx4 v[212:215], v4, {s('WS',4)}, 0 offen sc1
    s_waitcnt vmcnt(0)
    v_cmp_ne_u32 vcc, {s('tag')}, v212
    v_cmp_ne_u32 s[64:65], {s('tag')}, v213
    s_or_b64 vcc, vcc, s[64:65]
    v_cmp_ne_u32 s[64:65], {s('tag')}, v214
    s_or_b64 vcc, vcc, s[64:65]
    v_cmp_ne_u32 s[64:65], {s('tag')}, v215
    s_or_b64 vcc, vcc, s[64:65]
    s_cmp_eq_u64 vcc, 0
    s_cbranch_scc0 {lp}
    {sk}:
    """)

def gen_main(a, stop_after=None, name=KNAME):
    a.begin_kernel(name)
    a.e(f"""
    s_cmp_ge_u32 s2, 256
    s_cbranch_scc1 LM_exit
    s_load_dwordx4 s[4:7], s[0:1], 0
    s_load_dwordx2 s[34:35], s[0:1], 56
    s_load_dwordx2 s[36:37], s[0:1], 72
    v_lshrrev_b32 v1, 6, v0
    s_nop 0
    v_readfirstlane_b32 {s('wave')}, v1
    v_and_b32 v0, 63, v0
    v_lshlrev_b32 v1, 4, v0
    v_and_b32 v2, 15, v0
    v_lshrrev_b32 v3, 4, v0
    s_waitcnt lgkmcnt(0)
    s_load_dword {s('tag')}, s[36:37], {EPOCH}
    s_mov_b32 s8, s4
    s_mov_b32 s9, s5
    s_mov_b32 s10, 2621440
    s_mov_b32 s11, 0x20000
    s_mov_b32 s12, s6
    s_mov_b32 s13, s7
    s_mov_b32 s14, 2457600
    s_mov_b32 s15, 0x20000
    s_mov_b32 s16, s36
    s_mov_b32 s17, s37
    s_mov_b32 s18, {WS_BYTES}
    s_mov_b32 s19, 0x20000
    s_mov_b32 s20, s34
    s_mov_b32 s21, s35
    s_mov_b32 s22, 2621440
    s_mov_b32 s23, 0x20000
    s_mov_b32 s24, s4
    s_mov_b32 s25, s5
    s_mov_b32 s26, 2621440
    s_mov_b32 s27, 0x20000
    s_and_b32 {s('t0')}, s2, 7
    s_lshr_b32 {s('t1')}, s2, 3
    s_lshl_b32 {s('t2')}, {s('t0')}, 1
    s_lshr_b32 {s('t3')}, {s('t1')}, 4
    s_add_u32 {s('r')}, {s('t2')}, {s('t3')}
    s_and_b32 {s('j')}, {s('t1')}, 15
    s_mov_b32 {s('blk')}, {s('t0')}
    s_mov_b32 {s('head')}, {s('t1')}
    s_and_b32 {s('t2')}, {s('j')}, 1
    s_lshl_b32 {s('rb64')}, {s('r')}, 1
    s_add_u32 {s('rb64')}, {s('rb64')}, {s('t2')}
    s_lshr_b32 {s('cb')}, {s('j')}, 1
    s_and_b32 {s('lw')}, {s('wave')}, 3
    s_mov_b32 {s('layer')}, 0
    s_mov_b32 {s('lb')}, {LB0}
    s_lshl_b32 {s('flb')}, {s('r')}, 9
    s_add_u32 {s('flb')}, {s('flb')}, {FLAGS}
    s_mov_b32 s72, 0
    v_mov_b32 v245, 0
    s_waitcnt lgkmcnt(0)
    s_add_u32 {s('tag')}, {s('tag')}, 1
    """)
    a.stamp('C', 'start'); a.stampnames['L'].append('start')
    a.e(f"""
    s_cmp_ge_u32 {s('wave')}, 4
    s_cbranch_scc1 LM_loader
    """)
    a.e(f"""
    s_lshl_b32 {s('t0')}, {s('rb64')}, 2
    s_add_u32 {s('t0')}, {s('t0')}, {s('lw')}
    s_mul_i32 {s('t0')}, {s('t0')}, {16*1280}
    s_mul_i32 {s('t1')}, {s('cb')}, 160
    s_add_u32 {s('t0')}, {s('t0')}, {s('t1')}
    v_mul_u32_u24 v4, 1280, v2
    v_lshl_add_u32 v4, v3, 3, v4
    """)
    for ct in range(5):
        a.e(f'buffer_load_dwordx2 {vr(RESID+2*ct,2)}, v4, {s("XIN",4)}, {s("t0")} offen offset:{32*ct}')
    a.e(f"""
    v_mov_b32 v4, {M_SIG}
    v_mov_b32 v6, 0
    v_mov_b32 v7, 0
    ds_write_b64 v4, v[6:7]
    """)
    emit_prep0(a)
    emit_stats0(a)
    a.e('s_waitcnt lgkmcnt(0)')
    a.stamp('C', 'prep done')
    m = compute_gemm(a, 'P1R'); epilogue_P1(a, m)
    a.stamp('C', 'P1 epi done')
    nC0 = len(a.stampnames['C'])
    a.label('LC_common')
    def cfin(ph_idx):
        a.stamp('C', 'stores issued')
        a.e('s_waitcnt vmcnt(0)')
        a.stamp('C', 'drained')
        if ph_idx == 4:
            a.e(f's_cmp_eq_u32 {s("layer")}, 1\ns_cbranch_scc1 LM_fin')
        a.e('s_barrier\ns_barrier')
    a.e('s_barrier')
    attention_phase(a, 'C')
    a.e('s_barrier\ns_barrier')
    lp2 = a.newlabel('Lnp2')
    a.e(f's_cmp_lg_u32 {s("layer")}, 0\ns_cbranch_scc1 {lp2}')
    emit_prep2(a)
    a.e('s_waitcnt lgkmcnt(0)')
    a.label(lp2)
    m = compute_gemm(a, 'P3'); epilogue_P35(a, m, 'P3'); cfin(2)
    lp3 = a.newlabel('Lnp3')
    a.e(f's_cmp_lg_u32 {s("layer")}, 0\ns_cbranch_scc1 {lp3}')
    emit_prep3(a)
    a.e('s_waitcnt lgkmcnt(0)')
    a.label(lp3)
    m = compute_gemm(a, 'P4'); epilogue_P4(a, m); cfin(3)
    m = compute_gemm(a, 'P5'); epilogue_P35(a, m, 'P5'); cfin(4)
    a.e(f"""
    s_mov_b32 {s('layer')}, 1
    s_add_u32 {s('lb')}, {s('lb')}, {LSTRIDE}
    s_add_u32 {s('flb')}, {s('flb')}, {5*8192}
    """)
    nC1 = len(a.stampnames['C'])
    m = compute_gemm(a, 'P1'); epilogue_P1(a, m)
    a.stamp('C', 'P1 epi done')
    a.e('s_branch LC_common')
    a.label('LM_fin')
    a.e(f"""
    s_cmp_lg_u32 s2, 0
    s_cbranch_scc1 LM_done
    s_cmp_lg_u32 {s('wave')}, 0
    s_cbranch_scc1 LM_done
    v_mov_b32 v4, {EPOCH}
    v_mov_b32 v5, {s('tag')}
    s_mov_b64 exec, 1
    buffer_store_dword v5, v4, {s('WS',4)}, 0 offen
    s_mov_b64 exec, -1
    s_branch LM_done
    """)
    a.c_struct = (nC0, nC1)
    a.label('LM_loader')
    L = Loader(a)
    setup_W(a, 'P1R')
    setup_X(a, 'P1R')
    loader_gemm(a, L, 'P1R', first=True)
    nL0 = len(a.stampnames['L'])
    a.label('LL_afterP1')
    L = Loader(a)
    def prefetch(nxt):
        setup_W(a, nxt)
        for t in range(min(GE[nxt]['CW'], GE[nxt]['T'])):
            issue_W(a, L, nxt, t)
    a.e('s_barrier')
    attention_phase(a, 'L', prefetch_cb=lambda: (emit_allprep_poll(a), prefetch('P3')))
    L.drained()
    emit_sync(a, L, 1, 'pair', pre=lambda: setup_X(a, 'P3'))
    loader_gemm(a, L, 'P3')
    emit_allprep_poll(a, 1)
    prefetch('P4')
    emit_sync(a, L, 2, 'own', pre=lambda: setup_X(a, 'P4'))
    loader_gemm(a, L, 'P4')
    emit_allprep_poll(a, 2)
    prefetch('P5')
    emit_sync(a, L, 3, 'own', pre=lambda: setup_X(a, 'P5'))
    loader_gemm(a, L, 'P5')
    a.e(f's_cmp_eq_u32 {s("layer")}, 1\ns_cbranch_scc1 LM_done')
    emit_allprep_poll(a, 3)
    prefetch('P1')
    emit_sync(a, L, 4, 'pair', pre=lambda: setup_X(a, 'P1'))
    a.e(f"""
    s_mov_b32 {s('layer')}, 1
    s_add_u32 {s('lb')}, {s('lb')}, {LSTRIDE}
    s_add_u32 {s('flb')}, {s('flb')}, {5*8192}
    """)
    nL1 = len(a.stampnames['L'])
    loader_gemm(a, L, 'P1')
    a.e('s_branch LL_afterP1')
    a.l_struct = (nL0, nL1)
    a.label('LM_done')
    if a.stamps:
        a.stamp('X', 'end')
        a.e(f"""
        s_lshl_b32 {s('t0')}, s2, 3
        s_add_u32 {s('t0')}, {s('t0')}, {s('wave')}
        s_lshl_b32 {s('t0')}, {s('t0')}, 8
        s_add_u32 {s('t0')}, {s('t0')}, {TSB}
        v_lshlrev_b32 v4, 2, v0
        buffer_store_dword v245, v4, {s('WS',4)}, {s('t0')} offen
        """)
    a.e('LM_exit:\ns_endpgm')
    a.end_kernel(name, 256, 102, 256)
    a.launch(name, (256, 1, 1), (512, 1, 1), LDS_TOTAL)

if __name__ == '__main__':
    out = sys.argv[2] if len(sys.argv) > 2 else 'main.s'
    a = Gen()
    a.stampnames['X'] = []
    if len(sys.argv) > 3 and sys.argv[3] == 'stamps':
        a.stamps = True
    if len(sys.argv) > 4:
        DBG.update(sys.argv[4].split(','))
    gen_main(a)
    open(out, 'w').write(a.text(single=True))
    if a.stamps:
        C = a.stampnames['C']; Ln = a.stampnames['L']
        nC0, nC1 = a.c_struct
        cn = C[:nC1] + C[nC1:] + C[nC0:nC1] + ['end']
        nL0, nL1 = a.l_struct
        mid = Ln[nL0:nL1]
        ln = Ln[:nL1] + Ln[nL1:] + mid[:-1] + ['end']
        json.dump({'C': cn, 'L': ln}, open('stampnames.json', 'w'))
    print('lines', len(a.lines))
```

```python
import sys, struct, json
sys.path.insert(0, 'gen')
from asmlib import *

FLAGS = 0
CS_QKV = 0x20000
CS_GU = 0x22000
ST0 = 0x30000
CSP = 0xA00000
EPOCH = 0x1F000
WO_P = 0x60000
WGU_P = WO_P + 819200
WD_P = WGU_P + 3932160
WQ_P = 0x700000
LB0 = 12 << 20
LSTRIDE = 24 << 20
oQ, oK, oV, oO, oX1, oH, oX2 = 0, 2621440, 5242880, 7864320, 10485760, 13107200, 19398656
oST1, oST2 = 22020096, 22151168
oKV = 0
WS_BYTES = 268435456
TSB = 200 << 20

MISC = 0
M_ROWM = MISC
M_ROWR = MISC + 1024
WPOOL, WPOOL_SZ = 4096, 81920
XPOOL, XPOOL_SZ = 86016, 77824
LDS_TOTAL = 163840
AD = 86016
KB, VB, QB_ = AD, AD + 20480, AD + 40960

LOG2E = 1.4426950408889634
QSCALE = LOG2E / (20 ** 0.5)
NEG = -1.0e30
SC1 = 'sc1'

def f32(x):
    return '0x%08x' % struct.unpack('<I', struct.pack('<f', x))[0]

S = dict(
    wg=2, wave=3,
    XIN=8, WQKV=12, WS=16, OUT=20, XCUR=24,
    r=28, j=29, layer=30, tag=31, lb=32, lw=33,
    t0=34, t1=35, t2=36, t3=37, t4=38, t5=39,
    wsrc=40, xsrc=41, wlds=42, xlds=43, xstride=44,
    stsrc=45, flb=46, xg2=47, blk=48, head=49, qt=50,
    rb64=52, cb=53,
    m0a=56, c0=60, c1=61, c2=62, c3=63,
)
def s(n, k=1):
    b = S[n]
    return f's{b}' if k == 1 else f's[{b}:{b+k-1}]'
def vr(b, n=1):
    return f'v{b}' if n == 1 else f'v[{b}:{b+n-1}]'

class Gen(Asm):
    stamps = False
    def __init__(self):
        super().__init__()
        self.stampnames = {'C': [], 'L': []}
    def nop(self, n):
        while n > 0:
            k = min(n, 16)
            self.e(f's_nop {k-1}')
            n -= k
    def stamp(self, role, name):
        if not self.stamps: return
        self.e("""
        s_memtime s[70:71]
        s_waitcnt lgkmcnt(0)
        s_mov_b32 m0, s72
        s_nop 0
        v_writelane_b32 v245, s70, m0
        s_add_u32 s72, s72, 1
        """)
        self.stampnames[role].append(name)

DBG = set()
class Loader:
    def __init__(self, a):
        self.a = a; self.q = []
    def issued(self, tag, n=1):
        self.q += [tag] * n
    def wait(self, tags):
        idx = -1
        for i, t in enumerate(self.q):
            if t in tags: idx = i
        if idx < 0: return
        n = len(self.q) - 1 - idx
        assert n <= 63, n
        if 'nowait' not in DBG: self.a.e(f's_waitcnt vmcnt({n})')
        self.q = self.q[idx+1:]
    def drained(self):
        self.q = []

GE = dict(
    P1=dict(T=10, KS=2, Wb=8192, CW=6, Xb=32768, CX=3, WP=4096, XP=53248),
    P1R=dict(T=10, KS=2, Wb=8192, CW=6, Xb=32768, CX=3, WP=4096, XP=53248),
    P3=dict(T=5, KS=4, Wb=20480, CW=4, Xb=16384, CX=4, WP=4096, XP=86016),
    P4=dict(T=10, KS=2, Wb=24576, CW=3, Xb=16384, CX=4, WP=4096, XP=86016),
    P5=dict(T=12, KS=4, Wb=20480, CW=4, Xb=16384, CX=4, WP=4096, XP=86016),
)

def dma_linear(a, L, tag, srd, sbase, goff, ldsbase_s, ldsoff, npieces, voff='v1', flags=''):
    p = 0
    while p < npieces:
        n = min(4, npieces - p)
        a.e(f's_add_u32 m0, {ldsbase_s}, {ldsoff + p*1024}')
        a.e(f's_add_u32 {s("t0")}, {sbase}, {goff + p*1024}')
        for i in range(n):
            o = f' offset:{i*1024}' if i else ''
            a.e(f'buffer_load_dwordx4 {voff}, {srd}, {s("t0")} offen{o} {flags} lds')
        L.issued(tag, n)
        p += n

def bf16_round(a, v, t):
    a.e(f'v_cvt_pk_bf16_f32 {t}, {v}, {v}\nv_lshlrev_b32 {v}, 16, {t}')

def gen_prep(a):
    name = 'prep_kernel'
    a.begin_kernel(name)
    NA = 410
    NQ = 160
    NS = 128
    NT = NA + NQ + NS
    a.e(f"""
    s_cmp_ge_u32 s2, {NT}
    s_cbranch_scc1 LP_done
    s_load_dwordx4 s[40:43], s[0:1], 0     ; x, wqkv
    s_load_dwordx2 s[76:77], s[0:1], 16
    s_load_dwordx4 s[68:71], s[0:1], 32
    s_load_dwordx2 s[82:83], s[0:1], 48
    s_load_dwordx2 s[36:37], s[0:1], 72
    v_mov_b32 v50, v0
    v_lshrrev_b32 v1, 6, v0
    s_nop 0
    v_readfirstlane_b32 s3, v1
    v_and_b32 v0, 63, v0
    v_lshlrev_b32 v1, 4, v0
    v_and_b32 v2, 15, v0
    v_lshrrev_b32 v3, 4, v0
    s_waitcnt lgkmcnt(0)
    s_mov_b32 s16, s36
    s_mov_b32 s17, s37
    s_mov_b32 s18, {WS_BYTES}
    s_mov_b32 s19, 0x20000
    s_mov_b32 s78, s68
    s_mov_b32 s79, s69
    s_mov_b32 s80, s70
    s_mov_b32 s81, s71
    s_cmp_ge_u32 s2, {NA + NQ}
    s_cbranch_scc1 LP_rowstat
    s_cmp_ge_u32 s2, {NA}
    s_cbranch_scc1 LP_wq
    s_cmp_lt_u32 s2, 96
    s_cbranch_scc0 LP_noz
    s_cmp_eq_u32 s3, 0
    s_cbranch_scc0 LP_noz
    s_lshl_b32 s20, s2, 10
    v_mov_b32 v4, 0
    v_mov_b32 v5, 0
    v_mov_b32 v6, 0
    v_mov_b32 v7, 0
    buffer_store_dwordx4 v[4:7], v1, s[16:19], s20 offen
    LP_noz:
    s_lshl_b32 s73, s2, 2
    s_add_u32 s73, s73, s3
    s_mul_i32 {s('c0')}, s3, 6144
    v_bfe_u32 v4, v0, 2, 2
    v_lshl_add_u32 v4, v3, 3, v4
    v_lshlrev_b32 v4, 7, v4
    v_and_b32 v5, 3, v0
    v_lshl_add_u32 v20, v5, 3, v4
    """)
    global SC1
    sv = SC1; SC1 = ''
    emit_unit_A(a, 's73', 84, 88, 74, 8, 0)
    a.e('s_waitcnt vmcnt(0)')
    emit_unit_A_out(a, 88, 74, 0)
    SC1 = sv
    a.e(f"""
    s_endpgm
    LP_wq:
    s_sub_u32 s24, s2, {NA}
    s_lshl_b32 s24, s24, 2
    s_add_u32 s24, s24, s3
    s_lshr_b32 s22, s24, 5
    s_and_b32 s23, s24, 31
    s_mov_b32 s12, s42
    s_mov_b32 s13, s43
    s_mov_b32 s14, 2457600
    s_mov_b32 s15, 0x20000
    s_mul_i32 s25, s23, 40
    s_and_b32 s26, s25, 15
    s_andn2_b32 s25, s25, 15
    s_mul_i32 s27, s22, {32*3840}
    s_add_u32 s27, s27, s25
    v_lshrrev_b32 v2, 2, v0
    v_mul_u32_u24 v2, 3840, v2
    v_and_b32 v3, 3, v0
    v_lshl_add_u32 v2, v3, 4, v2
    s_mul_i32 s28, s3, 6144
    """)
    for part in range(3):
        for p in range(2):
            a.e(f"""
            s_add_u32 m0, s28, {part*2048 + p*1024}
            s_add_u32 s29, s27, {part*1280 + p*16*3840}
            buffer_load_dwordx4 v2, s[12:15], s29 offen lds
            """)
    a.e(f"""
    s_waitcnt vmcnt(0)
    v_lshrrev_b32 v3, 4, v0
    v_bfe_u32 v4, v0, 2, 2
    v_and_b32 v5, 3, v0
    v_lshl_add_u32 v6, v3, 3, v4
    v_lshlrev_b32 v6, 6, v6
    s_add_u32 s28, s28, s26
    v_add_u32 v6, s28, v6
    v_lshl_add_u32 v7, v5, 3, v6
    v_min_u32 v5, 2, v5
    v_lshl_add_u32 v9, v5, 11, v6
    ds_read_b64_tr_b16 v[12:13], v7
    ds_read_b64_tr_b16 v[14:15], v7 offset:256
    ds_read_b64_tr_b16 v[16:17], v7 offset:2048
    ds_read_b64_tr_b16 v[18:19], v7 offset:2304
    ds_read_b64_tr_b16 v[20:21], v7 offset:4096
    ds_read_b64_tr_b16 v[22:23], v7 offset:4352
    ds_read_b64_tr_b16 v[24:25], v9 offset:32
    ds_read_b64_tr_b16 v[26:27], v9 offset:288
    s_waitcnt lgkmcnt(0)
    s_mul_i32 s27, s23, 81920
    s_lshl_b32 s29, s22, 12
    s_add_u32 s27, s27, s29
    s_add_u32 s27, s27, {WQ_P}
    buffer_store_dwordx4 v[12:15], v1, s[16:19], s27 offen
    buffer_store_dwordx4 v[16:19], v1, s[16:19], s27 offen offset:1024
    buffer_store_dwordx4 v[20:23], v1, s[16:19], s27 offen offset:2048
    buffer_store_dwordx4 v[24:27], v1, s[16:19], s27 offen offset:3072
    s_endpgm
    LP_rowstat:
    s_sub_u32 s24, s2, {NA + NQ}
    s_mov_b32 s12, s40
    s_mov_b32 s13, s41
    s_mov_b32 s14, 2621440
    s_mov_b32 s15, 0x20000
    v_lshrrev_b32 v2, 4, v50
    v_and_b32 v3, 15, v50
    v_mul_u32_u24 v4, 1280, v2
    v_mul_u32_u24 v5, 80, v3
    v_add_u32 v4, v4, v5
    s_mul_i32 s25, s24, {16*1280}
    """)
    for i in range(5):
        a.e(f'buffer_load_dwordx4 v[{24+4*i}:{27+4*i}], v4, s[12:15], s25 offen offset:{16*i}')
    a.e("""
    v_mov_b32 v8, 0
    v_mov_b32 v9, 0
    s_mov_b32 s26, 0x3f803f80
    s_waitcnt vmcnt(0)
    """)
    for i in range(20):
        a.e(f'v_dot2_f32_bf16 v8, v{24+i}, s26, v8')
        a.e(f'v_dot2_f32_bf16 v9, v{24+i}, v{24+i}, v9')
    a.e('s_nop 4')
    for sh in (8, 4, 2, 1):
        a.e(f"""
        v_add_f32_dpp v8, v8, v8 row_ror:{sh}
        v_add_f32_dpp v9, v9, v9 row_ror:{sh}
        s_nop 1
        """)
    a.e(f"""
    v_cmp_eq_u32 vcc, 0, v3
    s_nop 1
    v_cndmask_b32 v8, 0, v8, vcc
    v_cndmask_b32 v9, 0, v9, vcc
    v_lshlrev_b32 v6, 7, v3
    v_lshl_add_u32 v6, v2, 3, v6
    s_lshl_b32 s25, s24, 10
    s_add_u32 s25, s25, {ST0}
    v_cmp_gt_u32 vcc, 8, v3
    s_and_saveexec_b64 s[30:31], vcc
    buffer_store_dwordx2 v[8:9], v6, s[16:19], s25 offen
    LP_done:
    s_endpgm
    """)
    a.end_kernel(name, 56, 102)
    a.launch(name, (NT, 1, 1), (256, 1, 1), 24576)

def flag_store(a, ph):
    a.e(f"""
    s_lshl_b32 {s('t0')}, {s('j')}, 2
    s_add_u32 {s('t0')}, {s('t0')}, {s('flb')}
    s_add_u32 {s('t0')}, {s('t0')}, {ph*8192}
    v_mov_b32 v4, {s('t0')}
    v_mov_b32 v5, {s('tag')}
    s_mov_b64 exec, 1
    buffer_store_dword v5, v4, {s('WS',4)}, 0 offen offset:128
    buffer_store_dword v5, v4, {s('WS',4)}, 0 offen sc1
    s_mov_b64 exec, -1
    """)

def emit_sync(a, L, ph, kind='own', pre=None, mid=None):
    if pre: pre()
    a.e('s_barrier')
    skip = a.newlabel('Lnp')
    if mid is None:
        a.e(f's_cmp_lg_u32 {s("lw")}, 0\ns_cbranch_scc1 {skip}')
        flag_store(a, ph)
    else:
        nf = a.newlabel('Lnf')
        a.e(f's_cmp_lg_u32 {s("lw")}, 0\ns_cbranch_scc1 {nf}')
        flag_store(a, ph)
        a.label(nf)
        mid()
        a.e(f's_cmp_lg_u32 {s("lw")}, 0\ns_cbranch_scc1 {skip}')
    ld = a.newlabel('Lpolled')
    if kind == 'own':
        a.e(f"""
        s_add_u32 {s('t0')}, {s('flb')}, {ph*8192}
        v_lshl_add_u32 v48, v0, 2, {s('t0')}
        s_mov_b64 exec, 0xffff
        """)
    elif kind == 'pair':
        a.e(f"""
        s_and_b32 {s('t1')}, {s('r')}, 1
        s_lshl_b32 {s('t1')}, {s('t1')}, 9
        s_sub_u32 {s('t0')}, {s('flb')}, {s('t1')}
        s_add_u32 {s('t0')}, {s('t0')}, {ph*8192}
        v_lshlrev_b32 v5, 9, v3
        v_lshl_add_u32 v5, v2, 2, v5
        v_add_u32 v48, {s('t0')}, v5
        s_mov_b32 exec_lo, -1
        s_mov_b32 exec_hi, 0
        """)
    else:
        a.e(f"""
        s_cmp_lt_u32 {s('r')}, 2
        s_cbranch_scc1 {ld}
        s_lshl_b32 {s('t0')}, {s('j')}, 2
        s_add_u32 {s('t0')}, {s('t0')}, {s('flb')}
        s_add_u32 {s('t0')}, {s('t0')}, {ph*8192 - 1024}
        v_mov_b32 v48, {s('t0')}
        s_mov_b64 exec, 1
        """)
    lp = a.newlabel('Lpoll')
    a.label(lp)
    if kind != 'prev':
        for i in range(3):
            a.e(f"""
            buffer_load_dword v24, v48, {s('WS',4)}, 0 offen offset:128 sc1
            s_waitcnt vmcnt(0)
            v_cmp_ne_u32 vcc, {s('tag')}, v24
            s_cmp_eq_u64 vcc, 0
            s_cbranch_scc1 {ld}
            """)
    a.e(f"""
    buffer_load_dword v24, v48, {s('WS',4)}, 0 offen sc1
    s_waitcnt vmcnt(0)
    v_cmp_ne_u32 vcc, {s('tag')}, v24
    s_cmp_eq_u64 vcc, 0
    s_cbranch_scc0 {lp}
    """)
    a.label(ld)
    a.e('s_mov_b64 exec, -1')
    a.label(skip)
    a.e('s_barrier')
    a.stamp('L', f'polled{ph}')

def issue_W(a, L, ph, t):
    c = GE[ph]
    lds = c['WP'] + (t % c['CW']) * c['Wb']
    dma_linear(a, L, ('W', ph, t), s('WS', 4), s('wsrc'), t * c['Wb'], s('wlds'), lds, c['Wb'] // 4096, flags=SC1)

def issue_X(a, L, ph, t):
    c = GE[ph]
    lds = c['XP'] + (t % c['CX']) * c['Xb']
    if ph in ('P1', 'P1R'):
        a.e(f's_mul_i32 {s("t5")}, {s("xstride")}, {t}')
        a.e(f's_add_u32 {s("t5")}, {s("t5")}, {s("xsrc")}')
        for gq in range(2):
            a.e(f's_add_u32 m0, {s("xlds")}, {lds + gq*4096}')
            if gq: a.e(f's_add_u32 {s("t5")}, {s("t5")}, {s("xg2")}')
            else: a.e('s_nop 0')
            for p in range(4):
                o = f' offset:{p*1024}' if p else ''
                a.e(f'buffer_load_dwordx4 v{12+p}, {s("XCUR",4)}, {s("t5")} offen{o} {SC1} lds')
        L.issued(('X', ph, t), 8)
    else:
        dma_linear(a, L, ('X', ph, t), s('WS', 4), s('xsrc'), t * c['Xb'], s('xlds'), lds, 4, flags=SC1)

def setup_W(a, ph):
    c = GE[ph]
    per = c['Wb'] // 4
    a.e(f's_mul_i32 {s("wlds")}, {s("lw")}, {per}')
    base, idx, stride = {'P1': (WQ_P, 'head', 81920), 'P1R': (WQ_P, 'head', 81920), 'P3': (WO_P, 'cb', 5*20480), 'P4': (WGU_P, 'j', 245760), 'P5': (WD_P, 'cb', 245760)}[ph]
    a.e(f"""
    s_mul_i32 {s('wsrc')}, {s(idx)}, {stride}
    s_add_u32 {s('wsrc')}, {s('wsrc')}, {base}
    s_add_u32 {s('wsrc')}, {s('wsrc')}, {s('wlds')}
    """)

def setup_X(a, ph, layer1=False):
    if ph == 'P1R':
        ph = 'P1'; layer1 = False
    elif ph == 'P1':
        layer1 = True
    if ph == 'P1':
        a.e(f's_lshl_b32 {s("xlds")}, {s("lw")}, 13')
    else:
        a.e(f's_lshl_b32 {s("xlds")}, {s("lw")}, 12')
    if ph == 'P1' and not layer1:
        a.e(f"""
        s_lshl_b32 {s('t1')}, {s('blk')}, 2
        s_add_u32 {s('t1')}, {s('t1')}, {s('lw')}
        s_mul_i32 {s('xsrc')}, {s('t1')}, {64*1280}
        s_movk_i32 {s('xstride')}, 128
        s_mov_b32 {s('xg2')}, {32*1280}
        s_mov_b32 {s('stsrc')}, {ST0}
        """)
        for p in range(4):
            a.e(f"""
            v_add_u32 v4, {4*p}, v3
            v_and_b32 v4, 7, v4
            v_and_b32 v5, 7, v0
            v_xor_b32 v4, v4, v5
            v_lshrrev_b32 v5, 3, v0
            v_add_u32 v5, {8*p}, v5
            v_mul_u32_u24 v5, 1280, v5
            v_lshl_add_u32 v5, v4, 4, v5
            v_subrev_u32 v{12+p}, {1024*p}, v5
            """)
    elif ph == 'P1':
        a.e(f"""
        s_mov_b32 s{S['XCUR']}, s{S['WS']}
        s_mov_b32 s{S['XCUR']+1}, s{S['WS']+1}
        s_mov_b32 s{S['XCUR']+2}, s{S['WS']+2}
        s_lshl_b32 {s('t1')}, {s('blk')}, 1
        s_lshr_b32 {s('t2')}, {s('lw')}, 1
        s_add_u32 {s('t1')}, {s('t1')}, {s('t2')}
        s_mul_i32 {s('xsrc')}, {s('t1')}, 163840
        s_and_b32 {s('t2')}, {s('lw')}, 1
        s_lshl_b32 {s('t2')}, {s('t2')}, 13
        s_add_u32 {s('xsrc')}, {s('xsrc')}, {s('t2')}
        s_add_u32 {s('xsrc')}, {s('xsrc')}, {LB0 + oX2}
        s_movk_i32 {s('xstride')}, 16384
        s_movk_i32 {s('xg2')}, 4096
        s_mov_b32 {s('stsrc')}, {LB0 + oST2}
        v_mov_b32 v12, v1
        v_mov_b32 v13, v1
        v_mov_b32 v14, v1
        v_mov_b32 v15, v1
        """)
    else:
        idx, stride, off = {'P3': ('rb64', 81920, oO), 'P4': ('r', 163840, oX1), 'P5': ('rb64', 196608, oH)}[ph]
        a.e(f"""
        s_mul_i32 {s('xsrc')}, {s(idx)}, {stride}
        s_add_u32 {s('xsrc')}, {s('xsrc')}, {s('lb')}
        s_add_u32 {s('xsrc')}, {s('xsrc')}, {off}
        s_add_u32 {s('xsrc')}, {s('xsrc')}, {s('xlds')}
        """)
        if ph == 'P4':
            a.e(f's_add_u32 {s("stsrc")}, {s("lb")}, {oST1}')

def loader_gemm(a, L, ph, first=False):
    c = GE[ph]
    T, CW, CX = c['T'], c['CW'], c['CX']
    stats = ph in ('P1', 'P4', 'P1R')
    tfin = 3
    a.c(f'---- loader {ph}')
    if first:
        issue_X(a, L, ph, 0); issue_W(a, L, ph, 0)
        issue_X(a, L, ph, 1); issue_W(a, L, ph, 1)
        pend = []
        for t in range(2, max(CW, CX)):
            if t < CX: pend.append(('X', t))
            if t < CW: pend.append(('W', t))
    else:
        issue_X(a, L, ph, 0); issue_X(a, L, ph, 1)
        pend = [('X', t) for t in range(2, min(CX, T))]
    if ph == 'P4':
        a.e(f"""
        v_lshrrev_b32 v4, 1, v3
        v_lshlrev_b32 v4, 10, v4
        v_and_b32 v5, 1, v3
        v_lshl_add_u32 v4, v5, 9, v4
        v_lshl_add_u32 v4, v2, 3, v4
        s_lshl_b32 {s('t1')}, {s('r')}, 13
        s_add_u32 {s('t1')}, {s('t1')}, {s('stsrc')}
        s_lshl_b32 {s('t2')}, {s('lw')}, 11
        s_add_u32 {s('t1')}, {s('t1')}, {s('t2')}
        """)
        for i in range(4):
            a.e(f'buffer_load_dwordx2 {vr(16+2*i,2)}, v4, {s("WS",4)}, {s("t1")} offen offset:{i*128} {SC1}')
        L.issued('ST', 4)
        a.e(f"""
        v_mul_u32_u24 v4, 12288, v3
        v_lshl_add_u32 v4, v2, 2, v4
        s_lshr_b32 {s('t1')}, {s('lw')}, 1
        s_mul_i32 {s('t1')}, {s('t1')}, 6144
        s_mul_i32 {s('t2')}, {s('j')}, 384
        s_add_u32 {s('t1')}, {s('t1')}, {s('t2')}
        s_and_b32 {s('t2')}, {s('lw')}, 1
        s_mul_i32 {s('t2')}, {s('t2')}, 192
        s_add_u32 {s('t1')}, {s('t1')}, {s('t2')}
        s_add_u32 {s('t1')}, {s('t1')}, {CSP}
        """)
        for i in range(5):
            for e in range(3):
                a.e(f'buffer_load_dword v{28+i*3+e}, v4, {s("WS",4)}, {s("t1")} offen offset:{e*64} {SC1}')
            if i < 4: a.e(f's_add_u32 {s("t1")}, {s("t1")}, {4*12288}')
        L.issued('CS', 15)
    def p1_stat_loads():
        a.e(f"""
        v_lshlrev_b32 v4, 10, v3
        v_lshl_add_u32 v4, v2, 3, v4
        s_lshl_b32 {s('t1')}, {s('blk')}, 14
        s_add_u32 {s('t1')}, {s('t1')}, {s('stsrc')}
        s_lshl_b32 {s('t2')}, {s('lw')}, 12
        s_add_u32 {s('t1')}, {s('t1')}, {s('t2')}
        """)
        for i in range(8):
            a.e(f'buffer_load_dwordx2 {vr(28+2*i,2)}, v4, {s("WS",4)}, {s("t1")} offen offset:{i*128} {SC1}')
        L.issued('ST', 8)
    if ph in ('P1', 'P1R'):
        p1_stat_loads()
    a.stamp('L', f'{ph} Xissued')
    for t in range(T):
        L.wait({('W', ph, t), ('X', ph, t)})
        a.e('s_barrier')
        if t == 0:
            a.stamp('L', f'{ph} B0')
            for k, tt in pend:
                (issue_X if k == 'X' else issue_W)(a, L, ph, tt)
        else:
            if t - 1 + CW < T: issue_W(a, L, ph, t - 1 + CW)
            if t - 1 + CX < T: issue_X(a, L, ph, t - 1 + CX)
        if ph == 'P4' and t == 4:
            L.wait({'CS'})
            for e in range(3):
                a.e(f'v_add_f32 v{28+e}, v{28+e}, v{31+e}')
                a.e(f'v_add_f32 v{34+e}, v{34+e}, v{37+e}')
            for e in range(3):
                a.e(f'v_add_f32 v{28+e}, v{28+e}, v{40+e}')
            for e in range(3):
                a.e(f'v_add_f32 v{28+e}, v{28+e}, v{34+e}')
            for e in range(3):
                a.e(f"""
                v_mov_b32 v4, v{28+e}
                s_nop 1
                v_permlane16_swap_b32 v{28+e}, v4
                s_nop 1
                v_add_f32 v{28+e}, v{28+e}, v4
                v_mov_b32 v4, v{28+e}
                s_nop 1
                v_permlane32_swap_b32 v{28+e}, v4
                s_nop 1
                v_add_f32 v{28+e}, v{28+e}, v4
                """)
            a.e(f"""
            s_mul_i32 {s('t1')}, {s('lw')}, 192
            v_lshl_add_u32 v4, v2, 2, {s('t1')}
            s_mov_b64 exec, 0xffff
            ds_write_b32 v4, v28 offset:{M_CS}
            ds_write_b32 v4, v29 offset:{M_CS + 64}
            ds_write_b32 v4, v30 offset:{M_CS + 128}
            s_mov_b64 exec, -1
            """)
        if stats and t == tfin:
            L.wait({'ST'})
            if ph == 'P4':
                a.e(f"""
                v_add_f32 v16, v16, v18
                v_add_f32 v17, v17, v19
                v_add_f32 v20, v20, v22
                v_add_f32 v21, v21, v23
                v_add_f32 v16, v16, v20
                v_add_f32 v17, v17, v21
                v_mov_b32 v18, v16
                v_mov_b32 v19, v17
                s_nop 1
                v_permlane16_swap_b32 v16, v18
                v_permlane16_swap_b32 v17, v19
                s_nop 1
                v_add_f32 v16, v16, v18
                v_add_f32 v17, v17, v19
                """)
            else:
                a.e('v_add_f32 v16, v28, v30\nv_add_f32 v17, v29, v31')
                for i in range(2, 8):
                    a.e(f'v_add_f32 v16, v16, v{28+2*i}\nv_add_f32 v17, v17, v{29+2*i}')
            a.e(f"""
            s_mov_b32 {s('c1')}, {f32(1.0/640.0)}
            s_mov_b32 {s('c2')}, {f32(1e-5)}
            v_mul_f32 v16, {s('c1')}, v16
            v_mul_f32 v17, {s('c1')}, v17
            v_fma_f32 v17, -v16, v16, v17
            v_max_f32 v17, 0, v17
            """)
            bf16_round(a, 'v16', 'v4')
            bf16_round(a, 'v17', 'v4')
            a.e(f'v_add_f32 v17, {s("c2")}, v17')
            bf16_round(a, 'v17', 'v4')
            a.e('v_sqrt_f32 v17, v17\ns_nop 0')
            bf16_round(a, 'v17', 'v4')
            a.e('v_rcp_f32 v17, v17')
            if ph == 'P4':
                a.e(f"""
                v_lshrrev_b32 v4, 1, v3
                v_lshlrev_b32 v4, 6, v4
                v_lshl_add_u32 v4, v2, 2, v4
                s_lshl_b32 {s('t1')}, {s('lw')}, 7
                v_add_u32 v4, {s('t1')}, v4
                s_mov_b32 exec_lo, 0xffff
                s_mov_b32 exec_hi, 0xffff
                """)
            else:
                a.e(f"""
                v_lshlrev_b32 v4, 2, v0
                s_lshl_b32 {s('t1')}, {s('lw')}, 8
                v_add_u32 v4, {s('t1')}, v4
                """)
            a.e(f"""
            ds_write_b32 v4, v16 offset:{M_ROWM}
            ds_write_b32 v4, v17 offset:{M_ROWR}
            s_mov_b64 exec, -1
            """)
    a.e('s_waitcnt lgkmcnt(0)')
    a.e('s_barrier')
    a.stamp('L', f'{ph} E')

ACC = 24
RESID = 246
def compute_gemm(a, ph):
    c = GE[ph]
    T, KS, CW, CX, Wb, Xb = c['T'], c['KS'], c['CW'], c['CX'], c['Wb'], c['Xb']
    XPOOL, WPOOL = c['XP'], c['WP']
    a.c(f'---- compute {ph}')
    raw = ph == 'P1R'
    isP1 = ph in ('P1', 'P1R')
    ntt, nct, MS = {'P1': (4, 4, 1), 'P1R': (4, 4, 1), 'P4': (4, 6, 1), 'P3': (1, 5, 2), 'P5': (1, 5, 2)}[ph]
    nacc = ntt * nct * 4
    FR = ACC + nacc
    fsz = (ntt + nct) * 4 * MS
    def xf(st, ms, tt): return FR + st*fsz + ms*(ntt+nct)*4 + tt*4
    def wf(st, ms, q): return FR + st*fsz + ms*(ntt+nct)*4 + ntt*4 + q*4
    def acc(tt, q): return ACC + (tt*nct + q)*4
    CSR = FR + 2*fsz
    if raw:
        a.e(f"""
        v_lshrrev_b32 v4, 1, v2
        v_xor_b32 v4, v4, v3
        v_lshlrev_b32 v5, 7, v2
        v_lshl_add_u32 v8, v4, 4, v5
        v_xor_b32 v9, 64, v8
        """)
    elif ph == 'P1':
        a.e('v_mov_b32 v8, v1\nv_add_u32 v9, 1024, v1')
    elif ph == 'P4':
        a.e('v_mov_b32 v8, v1\nv_add_u32 v9, 1024, v1')
    if ph == 'P4':
        a.e(f"""
        s_and_b32 {s('t1')}, {s('lw')}, 1
        s_lshl_b32 {s('t1')}, {s('t1')}, 13
        s_add_u32 {s('t1')}, {s('t1')}, {XPOOL}
        v_add_u32 v8, {s('t1')}, v8
        v_add_u32 v9, {s('t1')}, v9
        v_add_u32 v22, 0x10000, v8
        v_add_u32 v23, 0x10000, v9
        s_lshr_b32 {s('t2')}, {s('lw')}, 1          ; wn
        """)
    ONES = CSR + 16
    SUMR, SQR = CSR + 20, CSR + 24
    if isP1:
        a.e(f"""
        s_lshl_b32 {s('t1')}, {s('lw')}, 13
        s_add_u32 {s('t1')}, {s('t1')}, {XPOOL}
        v_add_u32 v8, {s('t1')}, v8
        v_add_u32 v9, {s('t1')}, v9
        v_add_u32 v22, 0x10000, v8
        v_add_u32 v23, 0x10000, v9
        """)
        if False:
            a.e(f"""
            s_mul_i32 {s('t1')}, {s('head')}, 40
            s_and_b32 {s('t1')}, {s('t1')}, 15
            v_lshrrev_b32 v4, 1, v3
            v_mul_u32_u24 v4, 3072, v4
            v_and_b32 v5, 1, v3
            v_lshlrev_b32 v5, 3, v5
            v_bfe_u32 v6, v0, 2, 2
            v_add_u32 v5, v5, v6
            v_lshl_add_u32 v4, v5, 6, v4
            v_add_u32 v4, {s('t1')}, v4
            v_and_b32 v5, 3, v0
            v_lshl_add_u32 v10, v5, 3, v4
            v_min_u32 v5, 2, v5
            v_lshl_add_u32 v11, v5, 10, v4
            v_add_u32 v11, 32, v11
            s_mov_b32 {s('c0')}, 0x3f803f80
            """)
            for i in range(8): a.e(f'v_mov_b32 v{SUMR+i}, 0')
        else:
            a.e('v_mov_b32 v10, v1\nv_add_u32 v11, 0x10000, v1')
        for i in range(16): a.e(f'v_mov_b32 v{CSR+i}, 0')
        for i in range(4): a.e(f'v_mov_b32 v{ONES+i}, 0x3f803f80')
    elif ph == 'P4':
        a.e(f"""
        s_mul_i32 {s('t1')}, {s('t2')}, 3072
        v_add_u32 v10, {s('t1')}, v1
        v_add_u32 v11, 0x10000, v10
        """)
    else:
        a.e(f"""
        s_lshl_b32 {s('t1')}, {s('lw')}, 10
        s_add_u32 {s('t1')}, {s('t1')}, {XPOOL}
        v_add_u32 v8, {s('t1')}, v1
        v_mov_b32 v10, v1
        v_add_u32 v11, 0x10000, v1
        """)
    for i in range(nacc):
        a.e(f'v_mov_b32 v{ACC+i}, 0')
    def wa(lo, hi, off):
        return (f'v{hi}', off - 0x10000) if off >= 0x10000 else (f'v{lo}', off)
    def reads(st, t, m):
        xo = (t % CX) * Xb
        wo = WPOOL + (t % CW) * Wb
        xs, ws = [], []
        for ms in range(MS):
            sx = m*MS + ms
            if ph in ('P1', 'P1R', 'P4'):
                for tt in range(4):
                    r_, o_ = wa(8+sx, 22+sx, xo + tt*2048)
                    xs.append(f'ds_read_b128 {vr(xf(st,ms,tt),4)}, {r_} offset:{o_}')
            else:
                xs.append(f'ds_read_b128 {vr(xf(st,ms,0),4)}, v8 offset:{xo + sx*4096}')
            if False:
                for q in range(4):
                    for h in range(2):
                        if q < 3: ws.append(f'ds_read_b64_tr_b16 {vr(wf(st,ms,q)+2*h,2)}, v10 offset:{wo + sx*6144 + q*1024 + h*256}')
                        else: ws.append(f'ds_read_b64_tr_b16 {vr(wf(st,ms,q)+2*h,2)}, v11 offset:{wo + sx*6144 + h*256}')
            elif isP1:
                for q in range(4):
                    r_, o_ = wa(10, 11, wo + (sx*4 + q)*1024)
                    ws.append(f'ds_read_b128 {vr(wf(st,ms,q),4)}, {r_} offset:{o_}')
            elif ph == 'P4':
                for q in range(6):
                    ct = q if q < 3 else 6 + (q - 3)
                    r_, o_ = wa(10, 11, wo + (sx*12 + ct)*1024)
                    ws.append(f'ds_read_b128 {vr(wf(st,ms,q),4)}, {r_} offset:{o_}')
            else:
                for q in range(5):
                    r_, o_ = wa(10, 11, wo + (sx*5 + q)*1024)
                    ws.append(f'ds_read_b128 {vr(wf(st,ms,q),4)}, {r_} offset:{o_}')
        out = []
        if 'noreads' in DBG: return []
        while xs or ws:
            if xs: out.append(xs.pop(0))
            if ws: out.append(ws.pop(0))
        return out
    def mfmas(st):
        m = []
        if 'nomfma' in DBG: return ['s_nop 0'] * (MS*ntt*nct)
        for ms in range(MS):
            for tt in range(ntt):
                for q in range(nct):
                    A, B = (xf(st,ms,tt), wf(st,ms,q)) if isP1 else (wf(st,ms,q), xf(st,ms,tt))
                    m.append(f'v_mfma_f32_16x16x32_bf16 {vr(acc(tt,q),4)}, {vr(A,4)}, {vr(B,4)}, {vr(acc(tt,q),4)}')
                    if False and q in (1, 3):
                        for i in ((0, 1) if q == 1 else (2, 3)):
                            x = xf(st, ms, tt) + i
                            m.append(f'v_dot2_f32_bf16 v{SUMR+tt}, v{x}, {s("c0")}, v{SUMR+tt}')
                            m.append(f'v_dot2_f32_bf16 v{SQR+tt}, v{x}, v{x}, v{SQR+tt}')
            if isP1:
                for q in range(4):
                    m.append(f'v_mfma_f32_16x16x32_bf16 {vr(CSR+4*q,4)}, {vr(ONES,4)}, {vr(wf(st,ms,q),4)}, {vr(CSR+4*q,4)}')
        return m
    def interleave(ms_, rs, start=0):
        i = 0
        span = max(1, (len(ms_) - start) * 2 // 3)
        per = max(1, -(-len(rs) // span))
        for k, m in enumerate(ms_):
            a.e(m)
            if k >= start:
                for _ in range(per):
                    if i < len(rs):
                        a.e(rs[i]); i += 1
        while i < len(rs):
            a.e(rs[i]); i += 1
    NM = KS // MS
    a.e('s_barrier')
    a.stamp('C', f'{ph} B0')
    for r_ in reads(0, 0, 0): a.e(r_)
    st = 0
    for t in range(T):
        for m in range(NM):
            a.e('s_waitcnt lgkmcnt(0)')
            ms_ = mfmas(st)
            if m < NM - 1:
                interleave(ms_, reads(st ^ 1, t, m + 1))
            elif t < T - 1:
                nb = 2
                for x in ms_[:nb]: a.e(x)
                a.e('s_barrier')
                interleave(ms_[nb:], reads(st ^ 1, t + 1, 0))
            else:
                for x in ms_: a.e(x)
            st ^= 1
    a.stamp('C', f'{ph} loopend')
    a.e('s_barrier')
    a.nop(8)
    return dict(acc=acc, FR=FR, CSR=CSR, SUMR=CSR+20, SQR=CSR+24, raw=False)

def epilogue_P1(a, m):
    acc, FR, CSR = m['acc'], m['FR'], m['CSR']
    a.c('---- epilogue P1 (to LDS)')
    M4, R4 = FR, FR + 16
    if m['raw']:
        SUMR, SQR = m['SUMR'], m['SQR']
        a.e(f's_mov_b32 {s("c1")}, {f32(1.0/640.0)}\ns_mov_b32 {s("c2")}, {f32(1e-5)}')
        for tt in range(4):
            for v in (SUMR + tt, SQR + tt):
                a.e(f"""
                v_mov_b32 v4, v{v}
                s_nop 1
                v_permlane16_swap_b32 v{v}, v4
                s_nop 1
                v_add_f32 v{v}, v{v}, v4
                v_mov_b32 v4, v{v}
                s_nop 1
                v_permlane32_swap_b32 v{v}, v4
                s_nop 1
                v_add_f32 v{v}, v{v}, v4
                """)
            sm, sq = f'v{SUMR+tt}', f'v{SQR+tt}'
            a.e(f"""
            v_mul_f32 {sm}, {s('c1')}, {sm}
            v_mul_f32 {sq}, {s('c1')}, {sq}
            v_fma_f32 {sq}, -{sm}, {sm}, {sq}
            v_max_f32 {sq}, 0, {sq}
            """)
            bf16_round(a, sm, 'v4'); bf16_round(a, sq, 'v4')
            a.e(f'v_add_f32 {sq}, {s("c2")}, {sq}')
            bf16_round(a, sq, 'v4')
            a.e(f'v_sqrt_f32 {sq}, {sq}\ns_nop 0')
            bf16_round(a, sq, 'v4')
            a.e(f'v_rcp_f32 {sq}, {sq}')
        a.e(f"""
        s_lshl_b32 {s('t3')}, {s('lw')}, 8
        v_lshl_add_u32 v4, v2, 2, {s('t3')}
        s_mov_b64 exec, 0xffff
        """)
        for tt in range(4):
            a.e(f'ds_write_b32 v4, v{SUMR+tt} offset:{M_ROWM + tt*64}')
            a.e(f'ds_write_b32 v4, v{SQR+tt} offset:{M_ROWR + tt*64}')
        a.e('s_mov_b64 exec, -1\ns_waitcnt lgkmcnt(0)')
    a.e(f"""
    s_lshl_b32 {s('t3')}, {s('lw')}, 8
    v_lshl_add_u32 v4, v3, 4, {s('t3')}
    """)
    for tt in range(4):
        a.e(f'ds_read_b128 {vr(M4+tt*4,4)}, v4 offset:{M_ROWM + tt*64}')
        a.e(f'ds_read_b128 {vr(R4+tt*4,4)}, v4 offset:{M_ROWR + tt*64}')
    a.e(f"""
    s_mul_i32 {s('t3')}, {s('lw')}, 2560             ; 2w*1280
    v_and_b32 v5, 7, v2
    v_xor_b32 v5, v5, v3                             ; g ^ (j&7)
    v_lshlrev_b32 v5, 3, v5
    v_lshl_add_u32 v5, v2, 6, v5                     ; j*64 + phys*8
    s_add_u32 {s('t4')}, {s('t3')}, {QB_}
    v_add_u32 v8, {s('t4')}, v5
    v_xor_b32 v16, 32, v8
    s_add_u32 {s('t4')}, {s('t3')}, {KB + 10240}
    v_add_u32 v9, {s('t4')}, v5
    v_xor_b32 v17, 32, v9
    v_and_b32 v6, 1, v3
    v_mul_u32_u24 v6, 320, v6
    v_lshrrev_b32 v7, 1, v3
    v_lshl_add_u32 v6, v7, 3, v6                     ; (g&1)*320 + (g>>1)*8
    v_lshl_add_u32 v7, v2, 4, v6                     ; + j*16
    s_add_u32 {s('t4')}, {s('t3')}, {VB + 10240}
    v_add_u32 v10, {s('t4')}, v7
    ; tile3: d = 16 + (j&3) ; d&7 = j&3
    v_and_b32 v5, 3, v2
    v_add_u32 v7, 16, v5
    v_lshl_add_u32 v12, v7, 4, v6
    v_add_u32 v12, {s('t4')}, v12                    ; V lanes
    v_xor_b32 v5, v5, v3
    v_lshlrev_b32 v5, 3, v5
    v_lshl_add_u32 v11, v7, 6, v5                    ; d*64 + phys*8
    v_mov_b32 v5, {QB_}
    v_mov_b32 v6, {KB + 10240}
    v_cmp_gt_u32 vcc, 4, v2
    s_nop 1
    v_cndmask_b32 v5, v6, v5, vcc
    v_add_u32 v11, v11, v5
    v_add_u32 v11, {s('t3')}, v11
    v_xor_b32 v18, 32, v11
    v_mov_b32 v14, 1.0
    v_mov_b32 v15, {f32(QSCALE)}
    v_cndmask_b32 v14, v14, v15, vcc
    s_mov_b32 {s('c0')}, {f32(QSCALE)}
    s_mov_b32 s{S['c0']+1}, {f32(QSCALE)}
    s_mov_b32 {s('m0a')}, 0x00ff00ff
    s_mov_b32 s{S['m0a']+1}, 0x00ff00ff
    s_mov_b32 s58, 0x0f000f00
    s_mov_b32 s59, 0x0f000f00
    s_waitcnt vmcnt(0) lgkmcnt(0)
    """)
    for i in range(0, 16, 2):
        a.e(f'v_pk_mul_f32 {vr(M4+i,2)}, {vr(M4+i,2)}, {vr(R4+i,2)}')
    PK = FR + 32
    TMP = CSR + 28
    units = [(tt, q) for tt in range(4) for q in range(4)]
    def st1(k):
        tt, q = units[k]; T = TMP + (k & 1)*4
        return [f'v_pk_mul_f32 {vr(T+i,2)}, {vr(M4+tt*4+i,2)}, {vr(CSR+4*q,2)} op_sel_hi:[1,0]' for i in (0, 2)]
    def st2(k):
        tt, q = units[k]; T = TMP + (k & 1)*4; A = acc(tt, q)
        return [f'v_pk_fma_f32 {vr(A+i,2)}, {vr(R4+tt*4+i,2)}, {vr(A+i,2)}, {vr(T+i,2)} neg_lo:[0,0,1] neg_hi:[0,0,1]' for i in (0, 2)]
    def st3(k):
        tt, q = units[k]; A = acc(tt, q)
        if q == 0: return [f'v_pk_mul_f32 {vr(A+i,2)}, {vr(A+i,2)}, {s("c0",2)}' for i in (0, 2)]
        if q == 3: return [f'v_pk_mul_f32 {vr(A+i,2)}, {vr(A+i,2)}, v[14:15] op_sel_hi:[1,0]' for i in (0, 2)]
        return []
    def st4(k):
        tt, q = units[k]; A = acc(tt, q); p = PK + (k % 8)*2
        return [f'v_cvt_pk_bf16_f32 v{p}, v{A}, v{A+1}', f'v_cvt_pk_bf16_f32 v{p+1}, v{A+2}, v{A+3}']
    def st5(k):
        tt, q = units[k]; p = PK + (k % 8)*2
        oqk = (tt >> 1)*1280
        ov = (tt >> 1)*1280 + (tt & 1)*640
        m_ = tt & 1
        if q == 0: return [f'ds_write_b64 v{16 if m_ else 8}, {vr(p,2)} offset:{oqk}']
        if q == 1: return [f'ds_write_b64 v{17 if m_ else 9}, {vr(p,2)} offset:{oqk}']
        if q == 2: return [f'ds_write_b64 v10, {vr(p,2)} offset:{ov}']
        return [f's_mov_b64 exec, {s("m0a",2)}', f'ds_write_b64 v{18 if m_ else 11}, {vr(p,2)} offset:{oqk}',
                's_mov_b64 exec, s[58:59]', f'ds_write_b64 v12, {vr(p,2)} offset:{ov}', 's_mov_b64 exec, -1']
    n = len(units)
    a.stamp('C', 'epi setup')
    for k in range(n + 4):
        for f_, d in ((st1, 0), (st2, 1), (st3, 2), (st4, 3), (st5, 4)):
            kk = k - d
            if 'nodsw' in DBG and f_ is st5: continue
            if 'nomath' in DBG and f_ is not st5: continue
            if 0 <= kk < n:
                for x in f_(kk): a.e(x)
    a.stamp('C', 'epi issued')
    a.e('s_waitcnt lgkmcnt(0)')

def kv_copy_out(a):
    a.c('---- kv copy out')
    a.e(f"""
    s_lshl_b32 {s('t1')}, {s('blk')}, 5
    s_add_u32 {s('t1')}, {s('t1')}, {s('head')}
    s_mul_i32 {s('t1')}, {s('t1')}, 20480
    s_add_u32 {s('t1')}, {s('t1')}, {s('lb')}
    s_add_u32 {s('t1')}, {s('t1')}, {oKV}
    s_lshl_b32 {s('t2')}, {s('wave')}, 10
    s_add_u32 {s('t1')}, {s('t1')}, {s('t2')}
    s_add_u32 {s('t3')}, {s('t2')}, {KB + 10240}       ; i=0: p = wave (<8) -> K
    v_add_u32 v4, {s('t3')}, v1
    ds_read_b128 v[16:19], v4
    s_add_u32 {s('t3')}, {s('t2')}, {KB + 10240 + 8192}
    s_add_u32 {s('t4')}, {s('t2')}, {VB + 10240 - 2048}
    s_cmp_lt_u32 {s('wave')}, 2
    s_cselect_b32 {s('t3')}, {s('t3')}, {s('t4')}
    v_add_u32 v5, {s('t3')}, v1
    ds_read_b128 v[20:23], v5
    s_add_u32 {s('t3')}, {s('t2')}, {VB + 10240 + 6144}
    v_add_u32 v6, {s('t3')}, v1
    ds_read_b128 v[24:27], v6
    s_waitcnt lgkmcnt(2)
    buffer_store_dwordx4 v[16:19], v1, {s('WS',4)}, {s('t1')} offen {SC1}
    s_add_u32 {s('t1')}, {s('t1')}, 8192
    s_waitcnt lgkmcnt(1)
    buffer_store_dwordx4 v[20:23], v1, {s('WS',4)}, {s('t1')} offen {SC1}
    s_add_u32 {s('t1')}, {s('t1')}, 8192
    s_waitcnt lgkmcnt(0)
    """)
    lab = a.newlabel('Lkv')
    a.e(f"""
    s_cmp_ge_u32 {s('wave')}, 4
    s_cbranch_scc1 {lab}
    buffer_store_dwordx4 v[24:27], v1, {s('WS',4)}, {s('t1')} offen {SC1}
    {lab}:
    s_waitcnt vmcnt(0)
    """)

def epilogue_P4(a, m):
    acc, FR, CSR = m['acc'], m['FR'], m['CSR']
    a.c('---- epilogue P4')
    MM, RR = FR, FR + 8
    CG, CU = CSR, CSR + 12
    a.e(f"""
    s_and_b32 {s('t1')}, {s('lw')}, 1
    s_lshr_b32 {s('t2')}, {s('lw')}, 1
    s_lshl_b32 {s('t3')}, {s('t1')}, 8
    v_lshl_add_u32 v4, v2, 2, {s('t3')}
    """)
    for tt in range(4):
        a.e(f'ds_read_b32 v{MM+2*tt}, v4 offset:{M_ROWM + tt*64}')
        a.e(f'ds_read_b32 v{RR+2*tt}, v4 offset:{M_ROWR + tt*64}')
    a.e(f"""
    s_mul_i32 {s('t3')}, {s('t2')}, 192
    v_lshl_add_u32 v5, v3, 4, {s('t3')}
    """)
    for q in range(3):
        a.e(f'ds_read_b128 {vr(CG+q*4,4)}, v5 offset:{M_CS + q*64}')
        a.e(f'ds_read_b128 {vr(CU+q*4,4)}, v5 offset:{M_CS + 384 + q*64}')
    a.e(f"""
    s_lshl_b32 {s('t3')}, {s('r')}, 1
    s_add_u32 {s('t3')}, {s('t3')}, {s('t1')}
    s_mul_i32 {s('t3')}, {s('t3')}, 196608
    s_add_u32 {s('t3')}, {s('t3')}, {s('lb')}
    s_add_u32 {s('t3')}, {s('t3')}, {oH}
    s_mul_i32 {s('t4')}, {s('j')}, 12
    s_mul_i32 {s('t5')}, {s('t2')}, 6
    s_add_u32 {s('t4')}, {s('t4')}, {s('t5')}
    v_lshrrev_b32 v4, 1, v3
    v_add_u32 v4, {s('t4')}, v4
    v_and_b32 v5, 1, v3
    v_lshlrev_b32 v5, 10, v5
    v_lshl_add_u32 v5, v2, 4, v5
    """)
    AD = 8
    for q in range(3):
        a.e(f"""
        v_add_u32 v6, {2*q}, v4
        v_lshrrev_b32 v7, 2, v6
        v_lshlrev_b32 v7, 12, v7
        v_and_b32 v6, 3, v6
        v_lshl_add_u32 v7, v6, 8, v7
        v_add_u32 v{AD+q}, v7, v5
        """)
    a.e('s_waitcnt vmcnt(0) lgkmcnt(0)')
    for tt in range(4):
        a.e(f'v_mul_f32 v{RR+2*tt}, v{RR+2*tt}, v{RR+2*tt}')
    PK = FR + 16
    def pk(u, q): return PK + (u*3 + q)*4
    for u in range(2):
        for q in range(3):
            for tt in (2*u, 2*u+1):
                G, U = acc(tt, q), acc(tt, 3+q)
                for i in (0, 2):
                    a.e(f'v_pk_fma_f32 {vr(G+i,2)}, {vr(MM+2*tt,2)}, {vr(CG+q*4+i,2)}, {vr(G+i,2)} op_sel_hi:[0,1,1] neg_lo:[1,0,0] neg_hi:[1,0,0]')
                    a.e(f'v_pk_fma_f32 {vr(U+i,2)}, {vr(MM+2*tt,2)}, {vr(CU+q*4+i,2)}, {vr(U+i,2)} op_sel_hi:[0,1,1] neg_lo:[1,0,0] neg_hi:[1,0,0]')
                for i in (0, 2):
                    a.e(f'v_pk_mul_f32 {vr(G+i,2)}, {vr(G+i,2)}, {vr(U+i,2)}')
                for i in (0, 2):
                    a.e(f'v_pk_mul_f32 {vr(G+i,2)}, {vr(G+i,2)}, {vr(RR+2*tt,2)} op_sel_hi:[1,0]')
                p = pk(u, q) + 2*(tt & 1)
                a.e(f'v_cvt_pk_bf16_f32 v{p}, v{G}, v{G+1}')
                a.e(f'v_cvt_pk_bf16_f32 v{p+1}, v{G+2}, v{G+3}')
            p = pk(u, q)
            o = f' offset:{u*2048}' if u else ''
            a.e(f"""
            s_nop 1
            v_permlane16_swap_b32 v{p}, v{p+2}
            v_permlane16_swap_b32 v{p+1}, v{p+3}
            s_nop 1
            buffer_store_dwordx4 {vr(p,4)}, v{AD+q}, {s("WS",4)}, {s("t3")} offen{o} {SC1}
            """)

def epilogue_P35(a, m, ph):
    acc, FR = m['acc'], m['FR']
    a.c(f'---- epilogue {ph}')
    if ph == 'P3':
        a.e('s_waitcnt vmcnt(0)')
    for ct in range(5):
        A = acc(0, ct)
        R = RESID + 2*ct
        a.e(f"""
        v_lshlrev_b32 v4, 16, v{R}
        v_and_b32 v5, 0xffff0000, v{R}
        v_lshlrev_b32 v6, 16, v{R+1}
        v_and_b32 v7, 0xffff0000, v{R+1}
        v_pk_add_f32 {vr(A,2)}, {vr(A,2)}, v[4:5]
        v_pk_add_f32 {vr(A+2,2)}, {vr(A+2,2)}, v[6:7]
        v_cvt_pk_bf16_f32 v{R}, v{A}, v{A+1}
        v_cvt_pk_bf16_f32 v{R+1}, v{A+2}, v{A+3}
        """)
    PK = FR
    for pr in range(2):
        for i in range(4):
            a.e(f'v_mov_b32 v{PK+pr*4+i}, v{RESID+pr*4+i}')
    AD = FR + 8
    lo = a.newlabel('Lout'); le = a.newlabel('Le35')
    if ph == 'P5':
        a.e(f's_cmp_eq_u32 {s("layer")}, 1\ns_cbranch_scc1 {lo}')
    xo = oX1 if ph == 'P3' else oX2
    sto = oST1 if ph == 'P3' else oST2
    a.e(f"""
    s_mul_i32 {s('t3')}, {s('r')}, 163840
    s_add_u32 {s('t3')}, {s('t3')}, {s('lb')}
    s_add_u32 {s('t3')}, {s('t3')}, {xo}
    s_and_b32 {s('t4')}, {s('rb64')}, 1
    s_lshl_b32 {s('t4')}, {s('t4')}, 2
    s_add_u32 {s('t4')}, {s('t4')}, {s('lw')}
    s_lshl_b32 {s('t4')}, {s('t4')}, 11
    s_add_u32 {s('t3')}, {s('t3')}, {s('t4')}
    s_mul_i32 {s('t4')}, {s('cb')}, 10
    v_and_b32 v4, 1, v3
    v_lshrrev_b32 v5, 1, v3
    v_lshl_add_u32 v6, v4, 1, v5
    v_add_u32 v6, {s('t4')}, v6
    v_add_u32 v7, {s('t4')}, v5
    v_permlane16_swap_b32 v{PK}, v{PK+2}
    v_permlane16_swap_b32 v{PK+1}, v{PK+3}
    v_permlane16_swap_b32 v{PK+4}, v{PK+6}
    v_permlane16_swap_b32 v{PK+5}, v{PK+7}
    """)
    for pr in range(2):
        a.e(f"""
        v_add_u32 v8, {4*pr}, v6
        v_lshrrev_b32 v9, 3, v8
        v_lshlrev_b32 v9, 14, v9
        v_and_b32 v8, 7, v8
        v_lshl_add_u32 v9, v8, 8, v9
        v_lshl_add_u32 v{AD+pr}, v2, 4, v9
        buffer_store_dwordx4 {vr(PK+pr*4,4)}, v{AD+pr}, {s("WS",4)}, {s("t3")} offen {SC1}
        """)
    a.e(f"""
    v_add_u32 v8, 8, v7
    v_lshrrev_b32 v9, 3, v8
    v_lshlrev_b32 v9, 14, v9
    v_and_b32 v8, 7, v8
    v_lshl_add_u32 v9, v8, 8, v9
    v_lshl_add_u32 v9, v2, 4, v9
    v_lshl_add_u32 v{AD+2}, v4, 3, v9
    buffer_store_dwordx2 {vr(RESID+8,2)}, v{AD+2}, {s("WS",4)}, {s("t3")} offen {SC1}
    s_mov_b32 {s('c0')}, 0x3f803f80
    v_mov_b32 v12, 0
    v_mov_b32 v13, 0
    """)
    for i in range(10):
        a.e(f'v_dot2_f32_bf16 v12, v{RESID+i}, {s("c0")}, v12')
        a.e(f'v_dot2_f32_bf16 v13, v{RESID+i}, v{RESID+i}, v13')
    a.e(f"""
    s_nop 2
    v_mov_b32 v14, v12
    v_mov_b32 v15, v13
    s_nop 1
    v_permlane16_swap_b32 v12, v14
    v_permlane16_swap_b32 v13, v15
    s_nop 1
    v_add_f32 v12, v12, v14
    v_add_f32 v13, v13, v15
    v_mov_b32 v14, v12
    v_mov_b32 v15, v13
    s_nop 1
    v_permlane32_swap_b32 v12, v14
    v_permlane32_swap_b32 v13, v15
    s_nop 1
    v_add_f32 v12, v12, v14
    v_add_f32 v13, v13, v15
    s_lshl_b32 {s('t3')}, {s('rb64')}, 2
    s_add_u32 {s('t3')}, {s('t3')}, {s('lw')}
    s_lshl_b32 {s('t3')}, {s('t3')}, 3
    s_add_u32 {s('t3')}, {s('t3')}, {s('cb')}
    s_lshl_b32 {s('t3')}, {s('t3')}, 7
    s_add_u32 {s('t3')}, {s('t3')}, {s('lb')}
    s_add_u32 {s('t3')}, {s('t3')}, {sto}
    v_lshlrev_b32 v4, 3, v2
    s_mov_b64 exec, 0xffff
    buffer_store_dwordx2 v[12:13], v4, {s("WS",4)}, {s("t3")} offen {SC1}
    s_mov_b64 exec, -1
    """)
    if ph == 'P5':
        a.e(f"""
        s_branch {le}
        {lo}:
        s_lshl_b32 {s('t3')}, {s('rb64')}, 2
        s_add_u32 {s('t3')}, {s('t3')}, {s('lw')}
        s_mul_i32 {s('t3')}, {s('t3')}, {16*1280}
        s_mul_i32 {s('t4')}, {s('cb')}, 160
        s_add_u32 {s('t3')}, {s('t3')}, {s('t4')}
        v_mul_u32_u24 v6, 1280, v2
        v_and_b32 v4, 1, v3
        v_lshrrev_b32 v5, 1, v3
        v_lshl_add_u32 v7, v4, 5, v6
        v_lshl_add_u32 v7, v5, 4, v7
        v_lshl_add_u32 v8, v3, 3, v6
        v_permlane16_swap_b32 v{PK}, v{PK+2}
        v_permlane16_swap_b32 v{PK+1}, v{PK+3}
        v_permlane16_swap_b32 v{PK+4}, v{PK+6}
        v_permlane16_swap_b32 v{PK+5}, v{PK+7}
        s_nop 1
        buffer_store_dwordx4 {vr(PK,4)}, v7, {s('OUT',4)}, {s('t3')} offen
        buffer_store_dwordx4 {vr(PK+4,4)}, v7, {s('OUT',4)}, {s('t3')} offen offset:64
        buffer_store_dwordx2 {vr(RESID+8,2)}, v8, {s('OUT',4)}, {s('t3')} offen offset:128
        {le}:
        """)

M_SIG = MISC + 2048
M_CS = MISC + 2304
def lds_spin(a, addr_off, val_s):
    lp = a.newlabel('Lspin')
    a.e(f"""
    v_mov_b32 v4, {addr_off}
    {lp}:
    ds_read_b32 v5, v4
    s_waitcnt lgkmcnt(0)
    v_readfirstlane_b32 {s('t0')}, v5
    s_cmp_lg_u32 {s('t0')}, {val_s}
    s_cbranch_scc1 {lp}
    """)

def attention_phase(a, role, prefetch_cb=None):
    a.c('---- attention')
    SA, SBt = 16, 32
    CM = 48
    C0, C8 = 64, 80
    OB = 96
    KF = 112
    VF = 168
    QF = 184
    PB = 192
    vKa, vKb, vVa, vq, vneg, vzero, vm = 'v8', 'v9', 'v10', 'v11', 'v12', 'v13', 'v14'
    if role == 'C':
        ls = a.newlabel('Lsa')
        a.e(f"""
        s_cmp_ge_u32 {s('wave')}, 2
        s_cbranch_scc1 {ls}
        s_lshl_b32 {s('t1')}, {s('blk')}, 5
        s_add_u32 {s('t1')}, {s('t1')}, {s('head')}
        s_mul_i32 {s('t1')}, {s('t1')}, 20480
        s_add_u32 {s('t1')}, {s('t1')}, {s('lb')}
        s_add_u32 {s('t1')}, {s('t1')}, {oKV}
        s_mul_i32 {s('t2')}, {s('wave')}, 10240
        s_add_u32 {s('t1')}, {s('t1')}, {s('t2')}
        s_mul_i32 {s('t3')}, {s('wave')}, 20480
        s_add_u32 {s('t3')}, {s('t3')}, {KB + 10240}
        v_add_u32 v4, {s('t3')}, v1
        """)
        for p in range(10):
            a.e(f'ds_read_b128 {vr(16+4*p,4)}, v4 offset:{p*1024}')
        for p in range(10):
            if p % 4 == 0 and p: a.e(f's_add_u32 {s("t1")}, {s("t1")}, 4096')
            a.e(f's_waitcnt lgkmcnt({9-p})')
            o = f' offset:{(p%4)*1024}' if p % 4 else ''
            a.e(f'buffer_store_dwordx4 {vr(16+4*p,4)}, v1, {s("WS",4)}, {s("t1")} offen{o} {SC1}')
        a.e('s_nop 1')
        a.label(ls)
    a.e(f"""
    s_sub_u32 {s('t2')}, 11, {s('wave')}
    s_cmp_lt_u32 {s('wave')}, 4
    s_cselect_b32 {s('qt')}, {s('wave')}, {s('t2')}
    s_mul_i32 {s('t4')}, {s('qt')}, 1280
    s_add_u32 {s('t3')}, {s('t4')}, {KB}
    v_lshrrev_b32 v4, 1, v3
    v_bfe_u32 v5, v0, 2, 2
    v_and_b32 v6, 3, v0
    v_and_b32 v7, 1, v3
    v_lshl_add_u32 v7, v7, 2, v6
    v_xor_b32 v7, v7, v5
    v_lshlrev_b32 v7, 3, v7
    v_lshl_add_u32 v6, v4, 3, v5
    v_lshl_add_u32 {vKa}, v6, 6, v7
    v_add_u32 v6, 16, v5
    v_lshl_add_u32 {vKb}, v6, 6, v7
    s_add_u32 {s('t5')}, {s('t4')}, {QB_}
    v_add_u32 v208, {s('t5')}, {vKa}
    v_add_u32 v209, {s('t5')}, {vKb}
    v_xor_b32 v210, 32, v208
    v_add_u32 {vKa}, {s('t3')}, {vKa}
    v_add_u32 {vKb}, {s('t3')}, {vKb}
    v_xor_b32 v15, 32, {vKa}
    ds_read_b64_tr_b16 {vr(QF,2)}, v208
    ds_read_b64_tr_b16 {vr(QF+2,2)}, v210 offset:256
    ds_read_b64_tr_b16 {vr(QF+4,2)}, v209
    v_and_b32 v6, 31, v0
    v_mul_u32_u24 v7, 320, v4
    v_lshl_add_u32 {vVa}, v6, 4, v7
    s_add_u32 {s('t3')}, {s('t3')}, 20480
    v_add_u32 {vVa}, {s('t3')}, {vVa}
    v_lshlrev_b32 v7, 2, v4
    v_sub_u32 {vq}, v6, v7
    v_mov_b32 {vneg}, {f32(NEG)}
    v_mov_b32 {vzero}, 0
    s_sub_u32 {s('c2')}, 8, {s('qt')}
    s_sub_u32 {s('c3')}, 7, {s('qt')}
    v_mov_b32 v7, 0x3f803f80
    v_cmp_eq_u32 vcc, 20, v6
    s_nop 1
    v_cndmask_b32 v7, 0, v7, vcc
    s_mov_b32 {s('m0a')}, 0xfffff
    s_mov_b32 s{S['m0a']+1}, 0xfffff
    """)
    def kf(t): return KF + t*6
    def kreads(t):
        k = kf(t)
        return [f'ds_read_b64_tr_b16 {vr(k,2)}, {vKa} offset:{t*1280}',
                f'ds_read_b64_tr_b16 {vr(k+2,2)}, v15 offset:{t*1280+256}',
                f'ds_read_b64_tr_b16 {vr(k+4,2)}, {vKb} offset:{t*1280}']
    def vreads(t, st):
        v = VF + st*8
        return [f's_mov_b64 exec, {s("m0a",2)}',
                f'ds_read_b128 {vr(v,4)}, {vVa} offset:{t*1280}',
                f'ds_read_b128 {vr(v+4,4)}, {vVa} offset:{t*1280+640}',
                's_mov_b64 exec, -1']
    def qk(t, D, C):
        k = kf(t)
        return [f'v_mfma_f32_32x32x16_bf16 {vr(D,16)}, {vr(k,4)}, {vr(QF,4)}, {C}',
                f'v_mfma_f32_32x32x8_bf16 {vr(D,16)}, {vr(k+4,2)}, {vr(QF+4,2)}, {vr(D,16)}']
    seqA = [8, 7, 6, 5, 4, 3, 2, 1]
    seqB = [0, 1, 2, 3, 4, 5, 6, 7]
    for t in seqA[:3]:
        for r_ in kreads(t): a.e(r_)
    for i in range(16):
        a.e(f'v_mov_b32 v{VF+i}, v7')
    for i in range(16):
        a.e(f'v_mov_b32 v{OB+i}, 0')
    for b in range(4):
        for i in range(4):
            reg = b*4 + i
            creg = 8*(reg >> 2) + (reg & 3)
            a.e(f'v_cmp_gt_i32 s[{64+2*i}:{65+2*i}], {creg}, {vq}')
        a.e('s_nop 1')
        for i in range(4):
            reg = b*4 + i
            a.e(f'v_cndmask_b32 v{C0+reg}, {vneg}, {vzero}, s[{64+2*i}:{65+2*i}]')
            a.e(f'v_cndmask_b32 v{C8+reg}, {vzero}, {vneg}, s[{64+2*i}:{65+2*i}]')
    a.e(f"""
    s_waitcnt lgkmcnt(9)
    s_mov_b32 exec_lo, 0
    v_mov_b32 v{QF+4}, 0
    v_mov_b32 v{QF+5}, 0
    s_mov_b32 exec_lo, -1
    """)
    ch = ['v4', 'v5', 'v6', 'v7']
    buf = [SA, SBt]
    def maxes(D):
        return [f'v_max3_f32 {ch[i & 3]}, {ch[i & 3]}, v{D+2*i}, v{D+2*i+1}' for i in range(8)]
    def part(seq, lim, masked_t, Cmask, first_reads_done):
        n = len(seq)
        ex1 = a.newlabel('Lx1'); ex2 = a.newlabel('Lx2')
        if not first_reads_done:
            for t in seq[:3]:
                for r_ in kreads(t): a.e(r_)
        for c_ in ch: a.e(f'v_mov_b32 {c_}, {vneg}')
        for i in range(16): a.e(f'v_mov_b32 v{buf[1]+i}, {vneg}')
        for k, t in enumerate(seq):
            a.e(f's_waitcnt lgkmcnt({min(6, (n - 1 - k) * 3)})')
            D = buf[k & 1]
            C = vr(Cmask, 16) if t == masked_t else '0'
            q1, q2 = qk(t, D, C)
            mx = maxes(buf[(k - 1) & 1]) if k >= 1 else []
            a.e(q1)
            if k + 3 < n:
                for r_ in kreads(seq[k + 3]): a.e(r_)
                if mx: a.nop(1)
            elif mx: a.nop(4)
            for x in mx[:4]: a.e(x)
            a.e(q2)
            for x in mx[4:]: a.e(x)
            if k < n - 1:
                a.e(f's_cmp_eq_u32 {lim}, {t}\ns_cbranch_scc1 {ex1}')
        a.label(ex1)
        a.nop(14)
        for x in maxes(buf[0]): a.e(x)
        for x in maxes(buf[1]): a.e(x)
        a.e(f"""
        v_max3_f32 v4, v4, v5, v6
        v_max_f32 v4, v4, v7
        v_mov_b32 v5, v4
        s_nop 1
        v_permlane32_swap_b32 v4, v5
        s_nop 1
        v_max_f32 v4, v4, v5
        """)
        if masked_t == 8:
            a.e(f'v_mov_b32 {vm}, v4')
        else:
            a.e(f"""
            v_max_f32 v4, v4, {vm}
            v_sub_f32 v5, {vm}, v4
            v_exp_f32 v5, v5
            v_mov_b32 {vm}, v4
            s_nop 0
            """)
            for i in range(16):
                a.e(f'v_mul_f32 v{OB+i}, v{OB+i}, v5')
        for i in range(16):
            a.e(f'v_sub_f32 v{CM+i}, 0, {vm}')
        for i in range(16):
            a.e(f'v_sub_f32 v{Cmask+i}, v{Cmask+i}, {vm}')
        a.e('s_waitcnt lgkmcnt(0)')
        def C2(t): return vr(Cmask, 16) if t == masked_t else vr(CM, 16)
        def pv(k):
            v = VF + (k & 1)*8; P = PB + (k & 1)*8
            return [f'v_mfma_f32_32x32x16_bf16 {vr(OB,16)}, {vr(v,4)}, {vr(P,4)}, {vr(OB,16)}',
                    f'v_mfma_f32_32x32x16_bf16 {vr(OB,16)}, {vr(v+4,4)}, {vr(P+4,4)}, {vr(OB,16)}']
        for r_ in vreads(seq[0], 0): a.e(r_)
        for x in qk(seq[0], buf[0], C2(seq[0])): a.e(x)
        stubs = []
        for k, t in enumerate(seq):
            D = buf[k & 1]
            P = PB + (k & 1)*8
            nq = qk(seq[k+1], buf[(k+1) & 1], C2(seq[k+1])) if k < n - 1 else []
            pp = pv(k - 1) if k >= 1 else []
            ml = []
            if nq: ml.append(nq[0])
            if pp: ml.append(('wait', pp[0]))
            if nq: ml.append(nq[1])
            if pp: ml.append(pp[1])
            if k == 0: a.nop(12)
            slots = {0: [], 4: [], 8: [], 12: []}
            for idx, m_ in enumerate(ml): slots[4*idx].append(m_)
            for i in range(16):
                for m_ in slots.get(i, []):
                    if isinstance(m_, tuple):
                        a.e('s_waitcnt lgkmcnt(2)')
                        a.e(m_[1])
                    else:
                        a.e(m_)
                if i == 9 and k < n - 1:
                    pass
                a.e(f'v_exp_f32 v{D+i}, v{D+i}')
                if i % 2 == 1 and i >= 3:
                    a.e(f'v_cvt_pk_bf16_f32 v{P+(i-3)//2}, v{D+i-3}, v{D+i-2}')
            a.e('s_nop 0')
            a.e(f'v_cvt_pk_bf16_f32 v{P+7}, v{D+14}, v{D+15}')
            if k < n - 1:
                for r_ in vreads(seq[k+1], (k+1) & 1): a.e(r_)
                st = a.newlabel('Lst')
                a.e(f's_cmp_eq_u32 {lim}, {t}\ns_cbranch_scc1 {st}')
                stubs.append((st, k))
            else:
                a.e('s_waitcnt lgkmcnt(0)\ns_nop 0')
                for x in pv(k): a.e(x)
        a.e(f's_branch {ex2}')
        for st, k in stubs:
            a.label(st)
            a.e('s_waitcnt lgkmcnt(0)\ns_nop 0')
            for x in pv(k): a.e(x)
            a.e(f's_branch {ex2}')
        a.label(ex2)
        a.e('s_waitcnt lgkmcnt(0)')
    part(seqA, s('c2'), 8, C8, True)
    a.stamp(role, 'attn partA')
    if role == 'C':
        pass
        ls = a.newlabel('Lsb'); l1 = a.newlabel('Lsb1'); lj = a.newlabel('Lsbj'); lnp = a.newlabel('Lsbn')
        a.e(f"""
        s_cmp_ge_u32 {s('wave')}, 2
        s_cbranch_scc1 {ls}
        s_waitcnt vmcnt(0)
        s_add_u32 {s('t5')}, {s('layer')}, 1
        s_cmp_eq_u32 {s('wave')}, 0
        s_cbranch_scc0 {l1}
        """)
        lds_spin(a, M_SIG, s('t5'))
        flag_store(a, 0)
        lp = a.newlabel('Lpp')
        a.e(f"""
        s_cmp_eq_u32 {s('blk')}, 0
        s_cbranch_scc1 {lnp}
        s_lshl_b32 {s('t0')}, {s('j')}, 2
        s_add_u32 {s('t0')}, {s('t0')}, {s('flb')}
        s_sub_u32 {s('t0')}, {s('t0')}, 1024
        v_mov_b32 v4, {s('t0')}
        s_mov_b64 exec, 1
        {lp}:
        buffer_load_dword v5, v4, {s('WS',4)}, 0 offen sc1
        s_waitcnt vmcnt(0)
        v_cmp_ne_u32 vcc, {s('tag')}, v5
        s_cmp_eq_u64 vcc, 0
        s_cbranch_scc0 {lp}
        s_mov_b64 exec, -1
        {lnp}:
        v_mov_b32 v4, {M_SIG + 4}
        v_mov_b32 v5, {s('t5')}
        ds_write_b32 v4, v5
        s_branch {lj}
        {l1}:
        v_mov_b32 v4, {M_SIG}
        v_mov_b32 v5, {s('t5')}
        ds_write_b32 v4, v5
        """)
        lds_spin(a, M_SIG + 4, s('t5'))
        a.label(lj)
        La = Loader(a)
        lnd = a.newlabel('Lsbd')
        a.e(f"""
        s_cmp_eq_u32 {s('blk')}, 0
        s_cbranch_scc1 {lnd}
        s_lshl_b32 {s('t1')}, {s('blk')}, 5
        s_add_u32 {s('t1')}, {s('t1')}, {s('head')}
        s_sub_u32 {s('t1')}, {s('t1')}, 32
        s_mul_i32 {s('t1')}, {s('t1')}, 20480
        s_add_u32 {s('t1')}, {s('t1')}, {s('lb')}
        s_add_u32 {s('t1')}, {s('t1')}, {oKV}
        s_mul_i32 {s('t2')}, {s('wave')}, 10240
        s_add_u32 {s('t1')}, {s('t1')}, {s('t2')}
        s_mul_i32 {s('t3')}, {s('wave')}, 20480
        """)
        dma_linear(a, La, 'PK', s('WS', 4), s('t1'), 0, s('t3'), KB, 10, flags=SC1)
        a.e(f"""
        s_waitcnt vmcnt(0)
        {lnd}:
        """)
        a.label(ls)
    a.e('s_waitcnt lgkmcnt(0)')
    a.e('s_barrier')
    a.stamp(role, 'attn A1')
    if role == 'L' and prefetch_cb:
        prefetch_cb()
    lfin = a.newlabel('Lafin')
    a.e(f's_cmp_eq_u32 {s("blk")}, 0\ns_cbranch_scc1 {lfin}')
    part(seqB, s('c3'), 0, C0, False)
    a.label(lfin)
    a.nop(14)
    a.e(f"""
    v_mov_b32 v4, v{OB+8}
    v_mov_b32 v5, v{OB+8}
    s_nop 1
    v_permlane32_swap_b32 v4, v5
    s_nop 1
    v_rcp_f32 v5, v5
    s_nop 0
    """)
    for i in range(12):
        a.e(f'v_mul_f32 v{OB+i}, v{OB+i}, v5')
    P = PB
    for i in range(6):
        a.e(f'v_cvt_pk_bf16_f32 v{P+i}, v{OB+2*i}, v{OB+2*i+1}')
    a.e(f"""
    s_and_b32 {s('t1')}, {s('head')}, 1
    s_lshl_b32 {s('t3')}, {s('blk')}, 2
    s_lshr_b32 {s('t4')}, {s('qt')}, 1
    s_add_u32 {s('t3')}, {s('t3')}, {s('t4')}
    s_mul_i32 {s('t3')}, {s('t3')}, 81920
    s_add_u32 {s('t3')}, {s('t3')}, {s('lb')}
    s_add_u32 {s('t3')}, {s('t3')}, {oO}
    s_and_b32 {s('t4')}, {s('qt')}, 1
    s_lshl_b32 {s('t4')}, {s('t4')}, 11
    s_add_u32 {s('t3')}, {s('t3')}, {s('t4')}
    v_permlane32_swap_b32 v{P}, v{P+2}
    v_permlane32_swap_b32 v{P+1}, v{P+3}
    s_lshr_b32 {s('t4')}, {s('head')}, 1
    s_mul_i32 {s('t4')}, {s('t4')}, 5
    s_lshl_b32 {s('t5')}, {s('t1')}, 1
    s_add_u32 {s('t5')}, {s('t5')}, {s('t4')}
    v_and_b32 v4, 1, v3
    v_lshlrev_b32 v4, 10, v4
    v_lshl_add_u32 v4, v2, 4, v4
    v_lshrrev_b32 v5, 1, v3
    v_add_u32 v5, {s('t5')}, v5
    v_lshrrev_b32 v6, 2, v5
    v_lshlrev_b32 v6, 12, v6
    v_and_b32 v5, 3, v5
    v_lshl_add_u32 v6, v5, 8, v6
    v_add_u32 v6, v6, v4
    buffer_store_dwordx4 {vr(P,4)}, v6, {s('WS',4)}, {s('t3')} offen {SC1}
    s_add_u32 {s('t4')}, {s('t4')}, 4
    s_lshr_b32 {s('t5')}, {s('t4')}, 2
    s_lshl_b32 {s('t5')}, {s('t5')}, 12
    s_and_b32 {s('t4')}, {s('t4')}, 3
    s_lshl_b32 {s('t4')}, {s('t4')}, 8
    s_add_u32 {s('t5')}, {s('t5')}, {s('t4')}
    s_lshl_b32 {s('t4')}, {s('t1')}, 3
    s_add_u32 {s('t5')}, {s('t5')}, {s('t4')}
    v_add_u32 v7, {s('t5')}, v4
    s_mov_b32 exec_hi, 0
    buffer_store_dwordx2 {vr(P+4,2)}, v7, {s('WS',4)}, {s('t3')} offen {SC1}
    s_mov_b32 exec_hi, -1
    """)
    a.stamp(role, 'attn stores')
    a.e('s_waitcnt vmcnt(0)')
    a.stamp(role, 'attn drained')

PW = dict(wo=76, wg=78, wu=80, wd=82)
def emit_unit_A(a, su, srd, dst, csp, vo, ldsoff):
    k, cg, pitch, typ, base, per, x, y = [f's{i}' for i in range(92, 100)]
    L = lambda p: a.newlabel(p)
    lwg, lwu, lwd, lgo5, lgu, lld, lnp = L('Ug'), L('Uu'), L('Ud'), L('U5'), L('Ugu'), L('Uld'), L('Unp')
    S0, S1, S2, S3 = f's{srd}', f's{srd+1}', f's{srd+2}', f's{srd+3}'
    a.e(f"""
    s_mov_b32 {S3}, 0x20000
    s_cmp_lt_u32 {su}, 480
    s_cbranch_scc1 {lwg}
    s_cmp_lt_u32 {su}, 960
    s_cbranch_scc1 {lwu}
    s_cmp_lt_u32 {su}, 1440
    s_cbranch_scc1 {lwd}
    s_sub_u32 {x}, {su}, 1440
    s_mov_b32 {S0}, s{PW['wo']}
    s_mov_b32 {S1}, s{PW['wo']+1}
    s_mov_b32 {S2}, 819200
    s_mov_b32 {typ}, 1
    s_mov_b32 {base}, {WO_P}
    s_mov_b32 {per}, {20*5*1024}
    s_branch {lgo5}
    {lwd}:
    s_sub_u32 {x}, {su}, 960
    s_mov_b32 {S0}, s{PW['wd']}
    s_mov_b32 {S1}, s{PW['wd']+1}
    s_mov_b32 {S2}, 1966080
    s_mov_b32 {typ}, 0
    s_mov_b32 {base}, {WD_P}
    s_mov_b32 {per}, {48*5*1024}
    {lgo5}:
    s_mul_i32 {k}, {x}, 6554
    s_lshr_b32 {k}, {k}, 16
    s_mul_i32 {y}, {k}, 10
    s_sub_u32 {cg}, {x}, {y}
    s_movk_i32 {pitch}, 1280
    s_mov_b32 s{csp}, -1
    s_mul_i32 {y}, {k}, 5120
    s_add_u32 {base}, {base}, {y}
    """)
    for i in range(4):
        a.e(f"""
        s_lshl_b32 {x}, {cg}, 2
        s_add_u32 {x}, {x}, {i}
        s_mul_i32 {y}, {x}, 13108
        s_lshr_b32 {y}, {y}, 16
        s_mul_i32 s{dst+i}, {y}, {per}
        s_mul_i32 {y}, {y}, 5
        s_sub_u32 {x}, {x}, {y}
        s_lshl_b32 {x}, {x}, 10
        s_add_u32 s{dst+i}, s{dst+i}, {x}
        s_add_u32 s{dst+i}, s{dst+i}, {base}
        """)
    a.e(f"""
    s_branch {lld}
    {lwg}:
    s_mov_b32 {x}, {su}
    s_mov_b32 {S0}, s{PW['wg']}
    s_mov_b32 {S1}, s{PW['wg']+1}
    s_mov_b32 {per}, 0
    s_branch {lgu}
    {lwu}:
    s_sub_u32 {x}, {su}, 480
    s_mov_b32 {S0}, s{PW['wu']}
    s_mov_b32 {S1}, s{PW['wu']+1}
    s_mov_b32 {per}, 1
    {lgu}:
    s_mov_b32 {S2}, 1966080
    s_movk_i32 {pitch}, 3072
    s_mov_b32 {typ}, 0
    s_mul_i32 {k}, {x}, 2731
    s_lshr_b32 {k}, {k}, 16
    s_mul_i32 {y}, {k}, 24
    s_sub_u32 {cg}, {x}, {y}
    s_lshl_b32 {y}, {k}, 1
    s_add_u32 {y}, {y}, {per}
    s_mul_i32 s{csp}, {y}, 6144
    s_lshl_b32 {y}, {cg}, 8
    s_add_u32 s{csp}, s{csp}, {y}
    s_add_u32 s{csp}, s{csp}, {CSP}
    s_mul_i32 {base}, {k}, 12288
    s_mul_i32 {y}, {per}, 6144
    s_add_u32 {base}, {base}, {y}
    s_add_u32 {base}, {base}, {WGU_P}
    """)
    for i in range(4):
        a.e(f"""
        s_lshl_b32 {x}, {cg}, 2
        s_add_u32 {x}, {x}, {i}
        s_mul_i32 {y}, {x}, 10923
        s_lshr_b32 {y}, {y}, 16
        s_mul_i32 s{dst+i}, {y}, 245760
        s_mul_i32 {y}, {y}, 6
        s_sub_u32 {x}, {x}, {y}
        s_lshl_b32 {x}, {x}, 10
        s_add_u32 s{dst+i}, s{dst+i}, {x}
        s_add_u32 s{dst+i}, s{dst+i}, {base}
        """)
    a.label(lld)
    for p in range(4):
        np_ = a.newlabel('Unp')
        a.e(f"""
        v_lshrrev_b32 v4, 3, v0
        s_lshl_b32 {x}, {k}, 5
        s_add_u32 {x}, {x}, {8*p}
        v_add_u32 v4, {x}, v4
        s_cmp_eq_u32 {typ}, 1
        s_cbranch_scc0 {np_}
        s_movk_i32 {x}, 1639
        v_mul_u32_u24 v5, {x}, v4
        v_lshrrev_b32 v5, 16, v5
        v_mul_u32_u24 v5, 40, v5
        v_sub_u32 v6, v4, v5
        v_mov_b32 v4, v6
        v_add_u32 v7, 4, v6
        v_cmp_le_u32 vcc, 16, v6
        s_nop 1
        v_cndmask_b32 v4, v4, v7, vcc
        v_subrev_u32 v7, 16, v6
        v_cmp_le_u32 vcc, 32, v6
        s_nop 1
        v_cndmask_b32 v4, v4, v7, vcc
        v_cmp_le_u32 vcc, 36, v6
        s_nop 1
        v_cndmask_b32 v4, v4, v6, vcc
        v_add_u32 v4, v5, v4
        {np_}:
        v_mul_lo_u32 v4, v4, {pitch}
        v_and_b32 v5, 7, v0
        v_lshl_add_u32 v{vo+p}, v5, 4, v4
        s_lshl_b32 {x}, {cg}, 7
        s_add_u32 m0, {s('c0')}, {ldsoff + p*1024}
        s_nop 0
        buffer_load_dwordx4 v{vo+p}, s[{srd}:{srd+3}], {x} offen lds
        """)

def emit_unit_A_out(a, dst, csp, ldsoff):
    a.e(f's_add_u32 {s("t1")}, {s("c0")}, {ldsoff}\nv_add_u32 v4, {s("t1")}, v20')
    for i in range(4):
        a.e(f'ds_read_b64_tr_b16 {vr(24+4*i,2)}, v4 offset:{i*32}')
        a.e(f'ds_read_b64_tr_b16 {vr(26+4*i,2)}, v4 offset:{i*32 + 512}')
    a.e('s_waitcnt lgkmcnt(0)')
    for i in range(4):
        a.e(f'buffer_store_dwordx4 {vr(24+4*i,4)}, v1, {s("WS",4)}, s{dst+i} offen {SC1}')
    nc = a.newlabel('Unc')
    a.e(f's_cmp_eq_u32 s{csp}, -1\ns_cbranch_scc1 {nc}')
    a.e(f's_mov_b32 {s("t2")}, 0x3f803f80')
    for i in range(4):
        a.e(f'v_mov_b32 v{40+i}, 0')
    for r_ in range(4):
        for i in range(4):
            a.e(f'v_dot2_f32_bf16 v{40+i}, v{24+4*i+r_}, {s("t2")}, v{40+i}')
    a.e('s_nop 3')
    for i in range(4):
        a.e(f"""
        v_mov_b32 v5, v{40+i}
        s_nop 1
        v_permlane16_swap_b32 v{40+i}, v5
        s_nop 1
        v_add_f32 v{40+i}, v{40+i}, v5
        v_mov_b32 v5, v{40+i}
        s_nop 1
        v_permlane32_swap_b32 v{40+i}, v5
        s_nop 1
        v_add_f32 v{40+i}, v{40+i}, v5
        """)
    a.e(f"""
    v_cmp_eq_u32 vcc, 1, v3
    s_nop 1
    v_cndmask_b32 v40, v40, v41, vcc
    v_cmp_eq_u32 vcc, 2, v3
    s_nop 1
    v_cndmask_b32 v40, v40, v42, vcc
    v_cmp_eq_u32 vcc, 3, v3
    s_nop 1
    v_cndmask_b32 v40, v40, v43, vcc
    v_lshlrev_b32 v5, 2, v0
    buffer_store_dword v40, v5, {s("WS",4)}, s{csp} offen {SC1}
    {nc}:
    """)

def prep_common(a, scratch_base, per_wave):
    a.e(f"""
    s_load_dwordx2 s[76:77], s[0:1], 16
    s_load_dwordx4 s[68:71], s[0:1], 32
    s_load_dwordx2 s[82:83], s[0:1], 48
    s_mul_i32 {s('c0')}, {s('lw')}, {per_wave}
    s_add_u32 {s('c0')}, {s('c0')}, {scratch_base}
    v_bfe_u32 v4, v0, 2, 2
    v_lshl_add_u32 v4, v3, 3, v4
    v_lshlrev_b32 v4, 7, v4
    v_and_b32 v5, 3, v0
    v_lshl_add_u32 v20, v5, 3, v4
    s_waitcnt lgkmcnt(0)
    s_mov_b32 s78, s68
    s_mov_b32 s79, s69
    s_mov_b32 s80, s70
    s_mov_b32 s81, s71
    """)

def prep_A2(a, n):
    l1 = a.newlabel('Up1'); l2 = a.newlabel('Up2'); l3 = a.newlabel('Up3'); l4 = a.newlabel('Up4')
    a.e(f's_cmp_lt_u32 s73, 1640\ns_cbranch_scc0 {l1}')
    emit_unit_A(a, 's73', 84, 88, 74, 8, 0)
    a.label(l1)
    if n == 2:
        a.e(f's_cmp_lt_u32 s59, 1640\ns_cbranch_scc0 {l2}')
        emit_unit_A(a, 's59', 64, 68, 75, 12, 4096)
        a.label(l2)
    a.e('s_waitcnt vmcnt(0)')
    a.e(f's_cmp_lt_u32 s73, 1640\ns_cbranch_scc0 {l3}')
    emit_unit_A_out(a, 88, 74, 0)
    a.label(l3)
    if n == 2:
        a.e(f's_cmp_lt_u32 s59, 1640\ns_cbranch_scc0 {l4}')
        emit_unit_A_out(a, 68, 75, 4096)
        a.label(l4)

def prep_B(a):
    sk = a.newlabel('Ub')
    a.e(f"""
    s_cmp_lt_u32 s92, 640
    s_cbranch_scc0 {sk}
    s_lshr_b32 s93, s92, 5
    s_and_b32 s94, s92, 31
    s_mul_i32 s95, s94, 40
    s_and_b32 s58, s95, 15
    s_andn2_b32 s95, s95, 15
    s_mul_i32 s96, s93, {32*3840}
    s_add_u32 s96, s96, s95
    v_lshrrev_b32 v4, 2, v0
    v_mul_u32_u24 v4, 3840, v4
    v_and_b32 v5, 3, v0
    v_lshl_add_u32 v16, v5, 4, v4
    s_mul_i32 s57, s94, 81920
    s_lshl_b32 s98, s93, 12
    s_add_u32 s57, s57, s98
    s_add_u32 s57, s57, {WQ_P}
    """)
    for part in range(3):
        for p in range(2):
            a.e(f"""
            s_add_u32 m0, {s('c0')}, {part*2048 + p*1024}
            s_add_u32 s98, s96, {part*1280 + p*16*3840}
            buffer_load_dwordx4 v16, {s('WQKV',4)}, s98 offen lds
            """)
    a.e(f"""
    s_waitcnt vmcnt(0)
    v_bfe_u32 v4, v0, 2, 2
    v_lshl_add_u32 v6, v3, 3, v4
    v_lshlrev_b32 v6, 6, v6
    s_add_u32 s97, {s('c0')}, s58
    v_add_u32 v6, s97, v6
    v_and_b32 v5, 3, v0
    v_lshl_add_u32 v7, v5, 3, v6
    v_min_u32 v5, 2, v5
    v_lshl_add_u32 v6, v5, 11, v6
    ds_read_b64_tr_b16 v[24:25], v7
    ds_read_b64_tr_b16 v[26:27], v7 offset:256
    ds_read_b64_tr_b16 v[28:29], v7 offset:2048
    ds_read_b64_tr_b16 v[30:31], v7 offset:2304
    ds_read_b64_tr_b16 v[32:33], v7 offset:4096
    ds_read_b64_tr_b16 v[34:35], v7 offset:4352
    ds_read_b64_tr_b16 v[36:37], v6 offset:32
    ds_read_b64_tr_b16 v[38:39], v6 offset:288
    s_waitcnt lgkmcnt(0)
    buffer_store_dwordx4 v[24:27], v1, {s('WS',4)}, s57 offen {SC1}
    buffer_store_dwordx4 v[28:31], v1, {s('WS',4)}, s57 offen offset:1024 {SC1}
    buffer_store_dwordx4 v[32:35], v1, {s('WS',4)}, s57 offen offset:2048 {SC1}
    buffer_store_dwordx4 v[36:39], v1, {s('WS',4)}, s57 offen offset:3072 {SC1}
    s_nop 1
    {sk}:
    """)

def emit_prep0(a):
    a.c('---- prep 0 (wo)')
    sk = a.newlabel('Up0')
    a.e(f"""
    s_cmp_lg_u32 {s('lw')}, 0
    s_cbranch_scc1 {sk}
    s_cmp_lt_u32 s2, 200
    s_cbranch_scc0 {sk}
    """)
    prep_common(a, 53248 + 2*32768, 8192)
    a.e('s_add_u32 s73, s2, 1440')
    prep_A2(a, 1)
    a.label(sk)

def emit_stats0(a):
    a.c('---- stats0')
    sk = a.newlabel('Ls0')
    a.e(f"""
    s_cmp_lg_u32 {s('lw')}, 1
    s_cbranch_scc1 {sk}
    s_lshl_b32 {s('t1')}, {s('blk')}, 5
    s_add_u32 {s('t1')}, {s('t1')}, {s('head')}
    s_mul_i32 {s('t1')}, {s('t1')}, {8*1280}
    v_lshrrev_b32 v4, 3, v0
    v_mul_u32_u24 v4, 1280, v4
    v_and_b32 v5, 7, v0
    v_mul_u32_u24 v6, 160, v5
    v_add_u32 v4, v4, v6
    """)
    for i in range(10):
        a.e(f'buffer_load_dwordx4 {vr(24+4*i,4)}, v4, {s("XIN",4)}, {s("t1")} offen offset:{16*i}')
    a.e(f"""
    v_mov_b32 v8, 0
    v_mov_b32 v9, 0
    s_mov_b32 {s('t2')}, 0x3f803f80
    s_waitcnt vmcnt(0)
    """)
    for i in range(40):
        a.e(f'v_dot2_f32_bf16 v8, v{24+i}, {s("t2")}, v8')
        a.e(f'v_dot2_f32_bf16 v9, v{24+i}, v{24+i}, v9')
    a.e('s_nop 4')
    for mod in ('quad_perm:[1,0,3,2]', 'quad_perm:[2,3,0,1]', 'row_half_mirror'):
        a.e(f"""
        v_add_f32_dpp v10, v8, v8 {mod}
        v_add_f32_dpp v11, v9, v9 {mod}
        s_nop 1
        v_mov_b32 v8, v10
        v_mov_b32 v9, v11
        s_nop 1
        """)
    a.e(f"""
    v_cmp_eq_u32 vcc, 0, v5
    s_nop 1
    v_cndmask_b32 v8, 0, v8, vcc
    v_cndmask_b32 v9, 0, v9, vcc
    s_lshl_b32 {s('t1')}, {s('blk')}, 4
    s_lshr_b32 {s('t2')}, {s('head')}, 1
    s_add_u32 {s('t1')}, {s('t1')}, {s('t2')}
    s_lshl_b32 {s('t1')}, {s('t1')}, 10
    s_and_b32 {s('t2')}, {s('head')}, 1
    s_lshl_b32 {s('t2')}, {s('t2')}, 6
    s_add_u32 {s('t1')}, {s('t1')}, {s('t2')}
    s_add_u32 {s('t1')}, {s('t1')}, {ST0}
    v_lshrrev_b32 v4, 3, v0
    v_lshlrev_b32 v4, 3, v4
    v_lshl_add_u32 v4, v5, 7, v4
    buffer_store_dwordx2 v[8:9], v4, {s('WS',4)}, {s('t1')} offen {SC1}
    s_waitcnt vmcnt(0)
    s_lshl_b32 {s('t1')}, {s('blk')}, 7
    s_lshl_b32 {s('t2')}, {s('head')}, 2
    s_add_u32 {s('t1')}, {s('t1')}, {s('t2')}
    s_add_u32 {s('t1')}, {s('t1')}, {FLAGS + 90112}
    v_mov_b32 v4, {s('t1')}
    v_mov_b32 v5, {s('tag')}
    s_mov_b64 exec, 1
    buffer_store_dword v5, v4, {s('WS',4)}, 0 offen sc1
    s_mov_b64 exec, -1
    {sk}:
    """)

def emit_warm(a):
    a.c('---- warm-up touch')
    sk = a.newlabel('Lwm')
    a.e(f"""
    s_cmp_lt_u32 {s('lw')}, 2
    s_cbranch_scc1 {sk}
    s_load_dwordx4 s[68:71], s[0:1], 32
    s_load_dwordx2 s[82:83], s[0:1], 48
    s_lshl_b32 s73, s2, 1
    s_add_u32 s73, s73, {s('lw')}
    s_sub_u32 s73, s73, 2
    s_lshl_b32 s73, s73, 12
    s_mov_b32 s86, 1966080
    s_mov_b32 s87, 0x20000
    s_waitcnt lgkmcnt(0)
    """)
    for m, (lo, hi) in enumerate(((68, 69), (70, 71), (82, 83))):
        a.e(f's_mov_b32 s84, s{lo}\ns_mov_b32 s85, s{hi}')
        for i in range(4):
            o = f' offset:{i*1024}' if i else ''
            a.e(f'buffer_load_dwordx4 {vr(196+(m*4+i)*4,4)}, v1, s[84:87], s73 offen{o}')
    a.label(sk)

def emit_prep1(a):
    a.c('---- prep 1 (wgu)')
    prep_common(a, 4096, 8192)
    a.e(f"""
    s_lshl_b32 s73, s2, 1
    s_add_u32 s73, s73, {s('wave')}
    s_sub_u32 s73, s73, 2
    s_lshl_b32 s73, s73, 1
    s_add_u32 s59, s73, 1
    s_cmp_lt_u32 s73, 960
    s_cselect_b32 s73, s73, 2000
    s_cmp_lt_u32 s59, 960
    s_cselect_b32 s59, s59, 2000
    """)
    prep_A2(a, 2)

def emit_prep2(a):
    a.c('---- prep 2 (wd)')
    prep_common(a, 135168, 7168)
    a.e(f"""
    s_lshl_b32 s73, s2, 1
    s_add_u32 s73, s73, {s('lw')}
    s_add_u32 s73, s73, 960
    s_cmp_lt_u32 s73, 1440
    s_cselect_b32 s73, s73, 2000
    s_cmp_lt_u32 {s('lw')}, 2
    s_cselect_b32 s73, s73, 2000
    """)
    prep_A2(a, 1)

def emit_prep3(a):
    a.c('---- prep 3 (wq)')
    a.e(f"""
    s_mov_b32 {s('c0')}, 151552
    s_cmp_eq_u32 {s('lw')}, 1
    s_cselect_b32 {s('c0')}, 157696, {s('c0')}
    s_cmp_eq_u32 {s('lw')}, 2
    s_cselect_b32 {s('c0')}, 77824, {s('c0')}
    s_mul_i32 s92, s2, 3
    s_add_u32 s92, s92, {s('lw')}
    s_cmp_lt_u32 {s('lw')}, 3
    s_cselect_b32 s92, s92, 2000
    """)
    prep_B(a)


def emit_phase0(a, role, L=None):
    a.c('---- phase 0')
    if role == 'L':
        issue_X(a, L, 'P1R', 0)
    a.e(f"""
    s_load_dwordx2 s[76:77], s[0:1], 16
    s_load_dwordx4 s[68:71], s[0:1], 32
    s_load_dwordx2 s[82:83], s[0:1], 48
    s_lshl_b32 s73, s2, 3
    s_add_u32 s73, s73, {s('wave')}              ; W8
    s_lshl_b32 {s('c0')}, {s('wave')}, 12
    s_add_u32 {s('c0')}, {s('c0')}, 4096          ; A scratch
    v_bfe_u32 v4, v0, 2, 2
    v_lshl_add_u32 v4, v3, 3, v4
    v_lshlrev_b32 v4, 7, v4
    v_and_b32 v5, 3, v0
    v_lshl_add_u32 v20, v5, 3, v4
    s_waitcnt lgkmcnt(0)
    s_mov_b32 s78, s68
    s_mov_b32 s79, s69
    s_mov_b32 s80, s70
    s_mov_b32 s81, s71
    """)
    l1 = a.newlabel('P01'); l2 = a.newlabel('P02'); l3 = a.newlabel('P03'); l4 = a.newlabel('P04')
    a.e(f's_cmp_lt_u32 s73, 1640\ns_cbranch_scc0 {l1}')
    emit_unit_A(a, 's73', 84, 88, 74, 8, 0)
    a.label(l1)
    a.e(f"""
    s_cmp_ge_u32 s73, 1408
    s_cbranch_scc0 {l2}
    s_sub_u32 s92, s73, 1408
    s_lshr_b32 s93, s92, 5
    s_and_b32 s94, s92, 31
    s_mul_i32 s95, s94, 40
    s_and_b32 s58, s95, 15
    s_andn2_b32 s95, s95, 15
    s_mul_i32 s96, s93, {32*3840}
    s_add_u32 s96, s96, s95
    v_lshrrev_b32 v4, 2, v0
    v_mul_u32_u24 v4, 3840, v4
    v_and_b32 v5, 3, v0
    v_lshl_add_u32 v16, v5, 4, v4
    s_mul_i32 s57, s94, 81920
    s_lshl_b32 s98, s93, 12
    s_add_u32 s57, s57, s98
    s_add_u32 s57, s57, {WQ_P}
    s_mul_i32 s56, {s('wave')}, 6144
    s_add_u32 s56, s56, 86016
    """)
    for part in range(3):
        for p in range(2):
            a.e(f"""
            s_add_u32 m0, s56, {part*2048 + p*1024}
            s_add_u32 s98, s96, {part*1280 + p*16*3840}
            buffer_load_dwordx4 v16, {s('WQKV',4)}, s98 offen lds
            """)
    a.label(l2)
    ls1 = a.newlabel('P0s1'); ls2 = a.newlabel('P0s2')
    a.e(f"""
    s_cmp_lg_u32 {s('wave')}, 7
    s_cbranch_scc1 {ls1}
    s_lshl_b32 {s('t1')}, {s('blk')}, 5
    s_add_u32 {s('t1')}, {s('t1')}, {s('head')}
    s_mul_i32 {s('t1')}, {s('t1')}, {8*1280}
    v_lshrrev_b32 v4, 3, v0
    v_mul_u32_u24 v4, 1280, v4
    v_and_b32 v5, 7, v0
    v_mul_u32_u24 v6, 160, v5
    v_add_u32 v4, v4, v6
    """)
    for i in range(10):
        a.e(f'buffer_load_dwordx4 {vr(48+4*i,4)}, v4, {s("XIN",4)}, {s("t1")} offen offset:{16*i}')
    a.label(ls1)
    a.e('s_waitcnt vmcnt(0)')
    a.e(f's_cmp_lt_u32 s73, 1640\ns_cbranch_scc0 {l3}')
    emit_unit_A_out(a, 88, 74, 0)
    a.label(l3)
    a.e(f"""
    s_cmp_ge_u32 s73, 1408
    s_cbranch_scc0 {l4}
    v_bfe_u32 v4, v0, 2, 2
    v_lshl_add_u32 v6, v3, 3, v4
    v_lshlrev_b32 v6, 6, v6
    s_add_u32 s56, s56, s58
    v_add_u32 v6, s56, v6
    v_and_b32 v5, 3, v0
    v_lshl_add_u32 v7, v5, 3, v6
    v_min_u32 v5, 2, v5
    v_lshl_add_u32 v6, v5, 11, v6
    ds_read_b64_tr_b16 v[24:25], v7
    ds_read_b64_tr_b16 v[26:27], v7 offset:256
    ds_read_b64_tr_b16 v[28:29], v7 offset:2048
    ds_read_b64_tr_b16 v[30:31], v7 offset:2304
    ds_read_b64_tr_b16 v[32:33], v7 offset:4096
    ds_read_b64_tr_b16 v[34:35], v7 offset:4352
    ds_read_b64_tr_b16 v[36:37], v6 offset:32
    ds_read_b64_tr_b16 v[38:39], v6 offset:288
    s_waitcnt lgkmcnt(0)
    buffer_store_dwordx4 v[24:27], v1, {s('WS',4)}, s57 offen {SC1}
    buffer_store_dwordx4 v[28:31], v1, {s('WS',4)}, s57 offen offset:1024 {SC1}
    buffer_store_dwordx4 v[32:35], v1, {s('WS',4)}, s57 offen offset:2048 {SC1}
    buffer_store_dwordx4 v[36:39], v1, {s('WS',4)}, s57 offen offset:3072 {SC1}
    {l4}:
    s_cmp_lg_u32 {s('wave')}, 7
    s_cbranch_scc1 {ls2}
    v_mov_b32 v8, 0
    v_mov_b32 v9, 0
    s_mov_b32 {s('t2')}, 0x3f803f80
    """)
    for i in range(40):
        a.e(f'v_dot2_f32_bf16 v8, v{48+i}, {s("t2")}, v8')
        a.e(f'v_dot2_f32_bf16 v9, v{48+i}, v{48+i}, v9')
    a.e('s_nop 4')
    for mod in ('quad_perm:[1,0,3,2]', 'quad_perm:[2,3,0,1]', 'row_half_mirror'):
        a.e(f"""
        v_add_f32_dpp v10, v8, v8 {mod}
        v_add_f32_dpp v11, v9, v9 {mod}
        s_nop 1
        v_mov_b32 v8, v10
        v_mov_b32 v9, v11
        s_nop 1
        """)
    a.e(f"""
    v_and_b32 v5, 7, v0
    v_cmp_eq_u32 vcc, 0, v5
    s_nop 1
    v_cndmask_b32 v8, 0, v8, vcc
    v_cndmask_b32 v9, 0, v9, vcc
    s_lshl_b32 {s('t1')}, {s('blk')}, 4
    s_lshr_b32 {s('t2')}, {s('head')}, 1
    s_add_u32 {s('t1')}, {s('t1')}, {s('t2')}
    s_lshl_b32 {s('t1')}, {s('t1')}, 10
    s_and_b32 {s('t2')}, {s('head')}, 1
    s_lshl_b32 {s('t2')}, {s('t2')}, 6
    s_add_u32 {s('t1')}, {s('t1')}, {s('t2')}
    s_add_u32 {s('t1')}, {s('t1')}, {ST0}
    v_lshrrev_b32 v4, 3, v0
    v_lshlrev_b32 v4, 3, v4
    v_lshl_add_u32 v4, v5, 7, v4
    buffer_store_dwordx2 v[8:9], v4, {s('WS',4)}, {s('t1')} offen {SC1}
    {ls2}:
    s_waitcnt vmcnt(0) lgkmcnt(0)
    s_barrier
    """)
    a.stamp(role, 'ph0 drained')
    if role == 'L':
        sk = a.newlabel('P0k'); lp = a.newlabel('P0p')
        a.e(f"""
        s_cmp_lg_u32 {s('lw')}, 0
        s_cbranch_scc1 {sk}
        s_lshl_b32 {s('t0')}, s2, 2
        s_add_u32 {s('t0')}, {s('t0')}, {FLAGS + 90112}
        v_mov_b32 v4, {s('t0')}
        v_mov_b32 v5, {s('tag')}
        s_mov_b64 exec, 1
        buffer_store_dword v5, v4, {s('WS',4)}, 0 offen sc1
        s_mov_b64 exec, -1
        v_add_u32 v4, {FLAGS + 90112}, v1
        {lp}:
        buffer_load_dwordx4 v[24:27], v4, {s('WS',4)}, 0 offen sc1
        s_waitcnt vmcnt(0)
        v_cmp_ne_u32 vcc, {s('tag')}, v24
        v_cmp_ne_u32 s[64:65], {s('tag')}, v25
        s_or_b64 vcc, vcc, s[64:65]
        v_cmp_ne_u32 s[64:65], {s('tag')}, v26
        s_or_b64 vcc, vcc, s[64:65]
        v_cmp_ne_u32 s[64:65], {s('tag')}, v27
        s_or_b64 vcc, vcc, s[64:65]
        s_cmp_eq_u64 vcc, 0
        s_cbranch_scc0 {lp}
        {sk}:
        """)
        L.drained()
    a.e('s_barrier')
    a.stamp(role, 'ph0 done')

def emit_allprep_poll(a, ph=0):
    sk = a.newlabel('Lap'); lp = a.newlabel('Lapp')
    a.e(f"""
    s_cmp_lg_u32 {s('layer')}, 0
    s_cbranch_scc1 {sk}
    v_lshrrev_b32 v4, 2, v0
    v_lshlrev_b32 v4, 9, v4
    v_and_b32 v5, 3, v0
    v_lshl_add_u32 v4, v5, 4, v4
    v_add_u32 v4, {FLAGS + ph*8192}, v4
    {lp}:
    buffer_load_dwordx4 v[212:215], v4, {s('WS',4)}, 0 offen sc1
    s_waitcnt vmcnt(0)
    v_cmp_ne_u32 vcc, {s('tag')}, v212
    v_cmp_ne_u32 s[64:65], {s('tag')}, v213
    s_or_b64 vcc, vcc, s[64:65]
    v_cmp_ne_u32 s[64:65], {s('tag')}, v214
    s_or_b64 vcc, vcc, s[64:65]
    v_cmp_ne_u32 s[64:65], {s('tag')}, v215
    s_or_b64 vcc, vcc, s[64:65]
    s_cmp_eq_u64 vcc, 0
    s_cbranch_scc0 {lp}
    {sk}:
    """)

def gen_main(a, stop_after=None, name='main_kernel'):
    a.begin_kernel(name)
    a.e(f"""
    s_cmp_ge_u32 s2, 256
    s_cbranch_scc1 LM_exit
    s_load_dwordx4 s[4:7], s[0:1], 0
    s_load_dwordx2 s[34:35], s[0:1], 56
    s_load_dwordx2 s[36:37], s[0:1], 72
    v_lshrrev_b32 v1, 6, v0
    s_nop 0
    v_readfirstlane_b32 {s('wave')}, v1
    v_and_b32 v0, 63, v0
    v_lshlrev_b32 v1, 4, v0
    v_and_b32 v2, 15, v0
    v_lshrrev_b32 v3, 4, v0
    s_waitcnt lgkmcnt(0)
    s_mov_b32 s8, s4
    s_mov_b32 s9, s5
    s_mov_b32 s10, 2621440
    s_mov_b32 s11, 0x20000
    s_mov_b32 s12, s6
    s_mov_b32 s13, s7
    s_mov_b32 s14, 2457600
    s_mov_b32 s15, 0x20000
    s_mov_b32 s16, s36
    s_mov_b32 s17, s37
    s_mov_b32 s18, {WS_BYTES}
    s_mov_b32 s19, 0x20000
    s_mov_b32 s20, s34
    s_mov_b32 s21, s35
    s_mov_b32 s22, 2621440
    s_mov_b32 s23, 0x20000
    s_mov_b32 s24, s4
    s_mov_b32 s25, s5
    s_mov_b32 s26, 2621440
    s_mov_b32 s27, 0x20000
    s_and_b32 {s('t0')}, s2, 7
    s_lshr_b32 {s('t1')}, s2, 3
    s_lshl_b32 {s('t2')}, {s('t0')}, 1
    s_lshr_b32 {s('t3')}, {s('t1')}, 4
    s_add_u32 {s('r')}, {s('t2')}, {s('t3')}
    s_and_b32 {s('j')}, {s('t1')}, 15
    s_mov_b32 {s('blk')}, {s('t0')}
    s_mov_b32 {s('head')}, {s('t1')}
    s_and_b32 {s('t2')}, {s('j')}, 1
    s_lshl_b32 {s('rb64')}, {s('r')}, 1
    s_add_u32 {s('rb64')}, {s('rb64')}, {s('t2')}
    s_lshr_b32 {s('cb')}, {s('j')}, 1
    s_and_b32 {s('lw')}, {s('wave')}, 3
    s_mov_b32 {s('layer')}, 0
    s_mov_b32 {s('lb')}, {LB0}
    s_lshl_b32 {s('flb')}, {s('r')}, 9
    s_add_u32 {s('flb')}, {s('flb')}, {FLAGS}
    s_mov_b32 s72, 0
    v_mov_b32 v245, 0
    s_mov_b32 {s('tag')}, 1
    """)
    a.stamp('C', 'start'); a.stampnames['L'].append('start')
    a.e(f"""
    s_cmp_ge_u32 {s('wave')}, 4
    s_cbranch_scc1 LM_loader
    """)
    a.e(f"""
    s_lshl_b32 {s('t0')}, {s('rb64')}, 2
    s_add_u32 {s('t0')}, {s('t0')}, {s('lw')}
    s_mul_i32 {s('t0')}, {s('t0')}, {16*1280}
    s_mul_i32 {s('t1')}, {s('cb')}, 160
    s_add_u32 {s('t0')}, {s('t0')}, {s('t1')}
    v_mul_u32_u24 v4, 1280, v2
    v_lshl_add_u32 v4, v3, 3, v4
    """)
    for ct in range(5):
        a.e(f'buffer_load_dwordx2 {vr(RESID+2*ct,2)}, v4, {s("XIN",4)}, {s("t0")} offen offset:{32*ct}')
    a.e(f"""
    v_mov_b32 v4, {M_SIG}
    v_mov_b32 v6, 0
    v_mov_b32 v7, 0
    ds_write_b64 v4, v[6:7]
    """)
    a.e('s_waitcnt lgkmcnt(0)')
    m = compute_gemm(a, 'P1R'); epilogue_P1(a, m)
    a.stamp('C', 'P1 epi done')
    nC0 = len(a.stampnames['C'])
    a.label('LC_common')
    def cfin(ph_idx):
        a.stamp('C', 'stores issued')
        a.e('s_waitcnt vmcnt(0)')
        a.stamp('C', 'drained')
        if ph_idx == 4:
            a.e(f's_cmp_eq_u32 {s("layer")}, 1\ns_cbranch_scc1 LM_fin')
        a.e('s_barrier\ns_barrier')
    a.e('s_barrier')
    attention_phase(a, 'C')
    a.e('s_barrier\ns_barrier')
    m = compute_gemm(a, 'P3'); epilogue_P35(a, m, 'P3'); cfin(2)
    m = compute_gemm(a, 'P4'); epilogue_P4(a, m); cfin(3)
    m = compute_gemm(a, 'P5'); epilogue_P35(a, m, 'P5'); cfin(4)
    a.e(f"""
    s_mov_b32 {s('layer')}, 1
    s_add_u32 {s('lb')}, {s('lb')}, {LSTRIDE}
    s_add_u32 {s('flb')}, {s('flb')}, {5*8192}
    """)
    nC1 = len(a.stampnames['C'])
    m = compute_gemm(a, 'P1'); epilogue_P1(a, m)
    a.stamp('C', 'P1 epi done')
    a.e('s_branch LC_common')
    a.label('LM_fin')
    a.e('s_branch LM_done')
    a.c_struct = (nC0, nC1)
    a.label('LM_loader')
    L = Loader(a)
    setup_W(a, 'P1R')
    setup_X(a, 'P1R')
    loader_gemm(a, L, 'P1R', first=True)
    nL0 = len(a.stampnames['L'])
    a.label('LL_afterP1')
    L = Loader(a)
    def prefetch(nxt):
        setup_W(a, nxt)
        for t in range(min(GE[nxt]['CW'], GE[nxt]['T'])):
            issue_W(a, L, nxt, t)
    a.e('s_barrier')
    attention_phase(a, 'L', prefetch_cb=lambda: prefetch('P3'))
    L.drained()
    emit_sync(a, L, 1, 'pair', pre=lambda: setup_X(a, 'P3'))
    loader_gemm(a, L, 'P3')
    prefetch('P4')
    emit_sync(a, L, 2, 'own', pre=lambda: setup_X(a, 'P4'))
    loader_gemm(a, L, 'P4')
    prefetch('P5')
    emit_sync(a, L, 3, 'own', pre=lambda: setup_X(a, 'P5'))
    loader_gemm(a, L, 'P5')
    a.e(f's_cmp_eq_u32 {s("layer")}, 1\ns_cbranch_scc1 LM_done')
    prefetch('P1')
    emit_sync(a, L, 4, 'pair', pre=lambda: setup_X(a, 'P1'))
    a.e(f"""
    s_mov_b32 {s('layer')}, 1
    s_add_u32 {s('lb')}, {s('lb')}, {LSTRIDE}
    s_add_u32 {s('flb')}, {s('flb')}, {5*8192}
    """)
    nL1 = len(a.stampnames['L'])
    loader_gemm(a, L, 'P1')
    a.e('s_branch LL_afterP1')
    a.l_struct = (nL0, nL1)
    a.label('LM_done')
    if a.stamps:
        a.stamp('X', 'end')
        a.e(f"""
        s_lshl_b32 {s('t0')}, s2, 3
        s_add_u32 {s('t0')}, {s('t0')}, {s('wave')}
        s_lshl_b32 {s('t0')}, {s('t0')}, 8
        s_add_u32 {s('t0')}, {s('t0')}, {TSB}
        v_lshlrev_b32 v4, 2, v0
        buffer_store_dword v245, v4, {s('WS',4)}, {s('t0')} offen
        """)
    a.e('LM_exit:\ns_endpgm')
    a.end_kernel(name, 256, 102, 256)
    a.launch(name, (256, 1, 1), (512, 1, 1), LDS_TOTAL)

if __name__ == '__main__':
    out = sys.argv[2] if len(sys.argv) > 2 else 'main.s'
    a = Gen()
    a.stampnames['X'] = []
    if len(sys.argv) > 3 and sys.argv[3] == 'stamps':
        a.stamps = True
    if len(sys.argv) > 4:
        DBG.update(sys.argv[4].split(','))
    gen_prep(a)
    gen_main(a)
    open(out, 'w').write(a.text())
    if a.stamps:
        C = a.stampnames['C']; Ln = a.stampnames['L']
        nC0, nC1 = a.c_struct
        cn = C[:nC1] + C[nC1:] + C[nC0:nC1] + ['end']
        nL0, nL1 = a.l_struct
        mid = Ln[nL0:nL1]
        ln = Ln[:nL1] + Ln[nL1:] + mid[:-1] + ['end']
        json.dump({'C': cn, 'L': ln}, open('stampnames.json', 'w'))
    print('lines', len(a.lines))
```

```python
import sys, struct, json
sys.path.insert(0, 'gen')
from asmlib import *

FLAGS = 0
CS_QKV = 0x20000
CS_GU = 0x22000
ST0 = 0x30000
CSP = 0xA00000
EPOCH = 0x1F000
WO_P = 0x60000
WGU_P = WO_P + 819200
WD_P = WGU_P + 3932160
WQ_P = 0x700000
LB0 = 12 << 20
LSTRIDE = 24 << 20
oQ, oK, oV, oO, oX1, oH, oX2 = 0, 2621440, 5242880, 7864320, 10485760, 13107200, 19398656
oST1, oST2 = 22020096, 22151168
oKV = 0
WS_BYTES = 268435456
TSB = 200 << 20

MISC = 0
M_ROWM = MISC
M_ROWR = MISC + 1024
WPOOL, WPOOL_SZ = 4096, 81920
XPOOL, XPOOL_SZ = 86016, 77824
LDS_TOTAL = 163840
AD = 86016
KB, VB, QB_ = AD, AD + 20480, AD + 40960

LOG2E = 1.4426950408889634
QSCALE = LOG2E / (20 ** 0.5)
NEG = -1.0e30
SC1 = 'sc1'

def f32(x):
    return '0x%08x' % struct.unpack('<I', struct.pack('<f', x))[0]

S = dict(
    wg=2, wave=3,
    XIN=8, WQKV=12, WS=16, OUT=20, XCUR=24,
    r=28, j=29, layer=30, tag=31, lb=32, lw=33,
    t0=34, t1=35, t2=36, t3=37, t4=38, t5=39,
    wsrc=40, xsrc=41, wlds=42, xlds=43, xstride=44,
    stsrc=45, flb=46, xg2=47, blk=48, head=49, qt=50,
    rb64=52, cb=53,
    m0a=56, c0=60, c1=61, c2=62, c3=63,
)
def s(n, k=1):
    b = S[n]
    return f's{b}' if k == 1 else f's[{b}:{b+k-1}]'
def vr(b, n=1):
    return f'v{b}' if n == 1 else f'v[{b}:{b+n-1}]'

class Gen(Asm):
    stamps = False
    def __init__(self):
        super().__init__()
        self.stampnames = {'C': [], 'L': []}
    def nop(self, n):
        while n > 0:
            k = min(n, 16)
            self.e(f's_nop {k-1}')
            n -= k
    def stamp(self, role, name):
        if not self.stamps: return
        self.e("""
        s_memtime s[70:71]
        s_waitcnt lgkmcnt(0)
        s_mov_b32 m0, s72
        s_nop 0
        v_writelane_b32 v245, s70, m0
        s_add_u32 s72, s72, 1
        """)
        self.stampnames[role].append(name)

DBG = set()
class Loader:
    def __init__(self, a):
        self.a = a; self.q = []
    def issued(self, tag, n=1):
        self.q += [tag] * n
    def wait(self, tags):
        idx = -1
        for i, t in enumerate(self.q):
            if t in tags: idx = i
        if idx < 0: return
        n = len(self.q) - 1 - idx
        assert n <= 63, n
        if 'nowait' not in DBG: self.a.e(f's_waitcnt vmcnt({n})')
        self.q = self.q[idx+1:]
    def drained(self):
        self.q = []

GE = dict(
    P1=dict(T=10, KS=2, Wb=8192, CW=6, Xb=32768, CX=3, WP=4096, XP=53248),
    P1R=dict(T=10, KS=2, Wb=8192, CW=6, Xb=32768, CX=3, WP=4096, XP=53248),
    P3=dict(T=5, KS=4, Wb=20480, CW=4, Xb=16384, CX=4, WP=4096, XP=86016),
    P4=dict(T=10, KS=2, Wb=24576, CW=3, Xb=16384, CX=4, WP=4096, XP=86016),
    P5=dict(T=12, KS=4, Wb=20480, CW=4, Xb=16384, CX=4, WP=4096, XP=86016),
)

def dma_linear(a, L, tag, srd, sbase, goff, ldsbase_s, ldsoff, npieces, voff='v1', flags=''):
    p = 0
    while p < npieces:
        n = min(4, npieces - p)
        a.e(f's_add_u32 m0, {ldsbase_s}, {ldsoff + p*1024}')
        a.e(f's_add_u32 {s("t0")}, {sbase}, {goff + p*1024}')
        for i in range(n):
            o = f' offset:{i*1024}' if i else ''
            a.e(f'buffer_load_dwordx4 {voff}, {srd}, {s("t0")} offen{o} {flags} lds')
        L.issued(tag, n)
        p += n

def bf16_round(a, v, t):
    a.e(f'v_cvt_pk_bf16_f32 {t}, {v}, {v}\nv_lshlrev_b32 {v}, 16, {t}')

def gen_prep(a):
    name = 'prep_kernel'
    a.begin_kernel(name)
    NA = 410
    NQ = 160
    NS = 128
    NT = NA + NQ + NS
    a.e(f"""
    s_cmp_ge_u32 s2, {NT}
    s_cbranch_scc1 LP_done
    s_load_dwordx4 s[40:43], s[0:1], 0     ; x, wqkv
    s_load_dwordx2 s[76:77], s[0:1], 16
    s_load_dwordx4 s[68:71], s[0:1], 32
    s_load_dwordx2 s[82:83], s[0:1], 48
    s_load_dwordx2 s[36:37], s[0:1], 72
    v_mov_b32 v50, v0
    v_lshrrev_b32 v1, 6, v0
    s_nop 0
    v_readfirstlane_b32 s3, v1
    v_and_b32 v0, 63, v0
    v_lshlrev_b32 v1, 4, v0
    v_and_b32 v2, 15, v0
    v_lshrrev_b32 v3, 4, v0
    s_waitcnt lgkmcnt(0)
    s_mov_b32 s16, s36
    s_mov_b32 s17, s37
    s_mov_b32 s18, {WS_BYTES}
    s_mov_b32 s19, 0x20000
    s_mov_b32 s78, s68
    s_mov_b32 s79, s69
    s_mov_b32 s80, s70
    s_mov_b32 s81, s71
    s_cmp_ge_u32 s2, {NA + NQ}
    s_cbranch_scc1 LP_rowstat
    s_cmp_ge_u32 s2, {NA}
    s_cbranch_scc1 LP_wq
    s_cmp_lt_u32 s2, 96
    s_cbranch_scc0 LP_noz
    s_cmp_eq_u32 s3, 0
    s_cbranch_scc0 LP_noz
    s_lshl_b32 s20, s2, 10
    v_mov_b32 v4, 0
    v_mov_b32 v5, 0
    v_mov_b32 v6, 0
    v_mov_b32 v7, 0
    buffer_store_dwordx4 v[4:7], v1, s[16:19], s20 offen
    LP_noz:
    s_lshl_b32 s73, s2, 2
    s_add_u32 s73, s73, s3
    s_mul_i32 {s('c0')}, s3, 6144
    v_bfe_u32 v4, v0, 2, 2
    v_lshl_add_u32 v4, v3, 3, v4
    v_lshlrev_b32 v4, 7, v4
    v_and_b32 v5, 3, v0
    v_lshl_add_u32 v20, v5, 3, v4
    """)
    global SC1
    sv = SC1; SC1 = ''
    emit_unit_A(a, 's73', 84, 88, 74, 8, 0)
    a.e('s_waitcnt vmcnt(0)')
    emit_unit_A_out(a, 88, 74, 0)
    SC1 = sv
    a.e(f"""
    s_endpgm
    LP_wq:
    s_sub_u32 s24, s2, {NA}
    s_lshl_b32 s24, s24, 2
    s_add_u32 s24, s24, s3
    s_lshr_b32 s22, s24, 5
    s_and_b32 s23, s24, 31
    s_mov_b32 s12, s42
    s_mov_b32 s13, s43
    s_mov_b32 s14, 2457600
    s_mov_b32 s15, 0x20000
    s_mul_i32 s25, s23, 40
    s_and_b32 s26, s25, 15
    s_andn2_b32 s25, s25, 15
    s_mul_i32 s27, s22, {32*3840}
    s_add_u32 s27, s27, s25
    v_lshrrev_b32 v2, 2, v0
    v_mul_u32_u24 v2, 3840, v2
    v_and_b32 v3, 3, v0
    v_lshl_add_u32 v2, v3, 4, v2
    s_mul_i32 s28, s3, 6144
    """)
    for part in range(3):
        for p in range(2):
            a.e(f"""
            s_add_u32 m0, s28, {part*2048 + p*1024}
            s_add_u32 s29, s27, {part*1280 + p*16*3840}
            buffer_load_dwordx4 v2, s[12:15], s29 offen lds
            """)
    a.e(f"""
    s_waitcnt vmcnt(0)
    v_lshrrev_b32 v3, 4, v0
    v_bfe_u32 v4, v0, 2, 2
    v_and_b32 v5, 3, v0
    v_lshl_add_u32 v6, v3, 3, v4
    v_lshlrev_b32 v6, 6, v6
    s_add_u32 s28, s28, s26
    v_add_u32 v6, s28, v6
    v_lshl_add_u32 v7, v5, 3, v6
    v_min_u32 v5, 2, v5
    v_lshl_add_u32 v9, v5, 11, v6
    ds_read_b64_tr_b16 v[12:13], v7
    ds_read_b64_tr_b16 v[14:15], v7 offset:256
    ds_read_b64_tr_b16 v[16:17], v7 offset:2048
    ds_read_b64_tr_b16 v[18:19], v7 offset:2304
    ds_read_b64_tr_b16 v[20:21], v7 offset:4096
    ds_read_b64_tr_b16 v[22:23], v7 offset:4352
    ds_read_b64_tr_b16 v[24:25], v9 offset:32
    ds_read_b64_tr_b16 v[26:27], v9 offset:288
    s_waitcnt lgkmcnt(0)
    s_mul_i32 s27, s23, 81920
    s_lshl_b32 s29, s22, 12
    s_add_u32 s27, s27, s29
    s_add_u32 s27, s27, {WQ_P}
    buffer_store_dwordx4 v[12:15], v1, s[16:19], s27 offen
    buffer_store_dwordx4 v[16:19], v1, s[16:19], s27 offen offset:1024
    buffer_store_dwordx4 v[20:23], v1, s[16:19], s27 offen offset:2048
    buffer_store_dwordx4 v[24:27], v1, s[16:19], s27 offen offset:3072
    s_endpgm
    LP_rowstat:
    s_sub_u32 s24, s2, {NA + NQ}
    s_mov_b32 s12, s40
    s_mov_b32 s13, s41
    s_mov_b32 s14, 2621440
    s_mov_b32 s15, 0x20000
    v_lshrrev_b32 v2, 4, v50
    v_and_b32 v3, 15, v50
    v_mul_u32_u24 v4, 1280, v2
    v_mul_u32_u24 v5, 80, v3
    v_add_u32 v4, v4, v5
    s_mul_i32 s25, s24, {16*1280}
    """)
    for i in range(5):
        a.e(f'buffer_load_dwordx4 v[{24+4*i}:{27+4*i}], v4, s[12:15], s25 offen offset:{16*i}')
    a.e("""
    v_mov_b32 v8, 0
    v_mov_b32 v9, 0
    s_mov_b32 s26, 0x3f803f80
    s_waitcnt vmcnt(0)
    """)
    for i in range(20):
        a.e(f'v_dot2_f32_bf16 v8, v{24+i}, s26, v8')
        a.e(f'v_dot2_f32_bf16 v9, v{24+i}, v{24+i}, v9')
    a.e('s_nop 4')
    for sh in (8, 4, 2, 1):
        a.e(f"""
        v_add_f32_dpp v8, v8, v8 row_ror:{sh}
        v_add_f32_dpp v9, v9, v9 row_ror:{sh}
        s_nop 1
        """)
    a.e(f"""
    v_cmp_eq_u32 vcc, 0, v3
    s_nop 1
    v_cndmask_b32 v8, 0, v8, vcc
    v_cndmask_b32 v9, 0, v9, vcc
    v_lshlrev_b32 v6, 7, v3
    v_lshl_add_u32 v6, v2, 3, v6
    s_lshl_b32 s25, s24, 10
    s_add_u32 s25, s25, {ST0}
    v_cmp_gt_u32 vcc, 8, v3
    s_and_saveexec_b64 s[30:31], vcc
    buffer_store_dwordx2 v[8:9], v6, s[16:19], s25 offen
    LP_done:
    s_endpgm
    """)
    a.end_kernel(name, 56, 102)
    a.launch(name, (NT, 1, 1), (256, 1, 1), 24576)

def flag_store(a, ph):
    a.e(f"""
    s_lshl_b32 {s('t0')}, {s('j')}, 2
    s_add_u32 {s('t0')}, {s('t0')}, {s('flb')}
    s_add_u32 {s('t0')}, {s('t0')}, {ph*8192}
    v_mov_b32 v4, {s('t0')}
    v_mov_b32 v5, {s('tag')}
    s_mov_b64 exec, 1
    buffer_store_dword v5, v4, {s('WS',4)}, 0 offen offset:128
    buffer_store_dword v5, v4, {s('WS',4)}, 0 offen sc1
    s_mov_b64 exec, -1
    """)

def emit_sync(a, L, ph, kind='own', pre=None, mid=None):
    if pre: pre()
    a.e('s_barrier')
    skip = a.newlabel('Lnp')
    if mid is None:
        a.e(f's_cmp_lg_u32 {s("lw")}, 0\ns_cbranch_scc1 {skip}')
        flag_store(a, ph)
    else:
        nf = a.newlabel('Lnf')
        a.e(f's_cmp_lg_u32 {s("lw")}, 0\ns_cbranch_scc1 {nf}')
        flag_store(a, ph)
        a.label(nf)
        mid()
        a.e(f's_cmp_lg_u32 {s("lw")}, 0\ns_cbranch_scc1 {skip}')
    ld = a.newlabel('Lpolled')
    if kind == 'own':
        a.e(f"""
        s_add_u32 {s('t0')}, {s('flb')}, {ph*8192}
        v_lshl_add_u32 v48, v0, 2, {s('t0')}
        s_mov_b64 exec, 0xffff
        """)
    elif kind == 'pair':
        a.e(f"""
        s_and_b32 {s('t1')}, {s('r')}, 1
        s_lshl_b32 {s('t1')}, {s('t1')}, 9
        s_sub_u32 {s('t0')}, {s('flb')}, {s('t1')}
        s_add_u32 {s('t0')}, {s('t0')}, {ph*8192}
        v_lshlrev_b32 v5, 9, v3
        v_lshl_add_u32 v5, v2, 2, v5
        v_add_u32 v48, {s('t0')}, v5
        s_mov_b32 exec_lo, -1
        s_mov_b32 exec_hi, 0
        """)
    else:
        a.e(f"""
        s_cmp_lt_u32 {s('r')}, 2
        s_cbranch_scc1 {ld}
        s_lshl_b32 {s('t0')}, {s('j')}, 2
        s_add_u32 {s('t0')}, {s('t0')}, {s('flb')}
        s_add_u32 {s('t0')}, {s('t0')}, {ph*8192 - 1024}
        v_mov_b32 v48, {s('t0')}
        s_mov_b64 exec, 1
        """)
    lp = a.newlabel('Lpoll')
    a.label(lp)
    if kind != 'prev':
        for i in range(3):
            a.e(f"""
            buffer_load_dword v24, v48, {s('WS',4)}, 0 offen offset:128 sc1
            s_waitcnt vmcnt(0)
            v_cmp_ne_u32 vcc, {s('tag')}, v24
            s_cmp_eq_u64 vcc, 0
            s_cbranch_scc1 {ld}
            """)
    a.e(f"""
    buffer_load_dword v24, v48, {s('WS',4)}, 0 offen sc1
    s_waitcnt vmcnt(0)
    v_cmp_ne_u32 vcc, {s('tag')}, v24
    s_cmp_eq_u64 vcc, 0
    s_cbranch_scc0 {lp}
    """)
    a.label(ld)
    a.e('s_mov_b64 exec, -1')
    a.label(skip)
    a.e('s_barrier')
    a.stamp('L', f'polled{ph}')

def issue_W(a, L, ph, t):
    c = GE[ph]
    lds = c['WP'] + (t % c['CW']) * c['Wb']
    dma_linear(a, L, ('W', ph, t), s('WS', 4), s('wsrc'), t * c['Wb'], s('wlds'), lds, c['Wb'] // 4096, flags=SC1)

def issue_X(a, L, ph, t):
    c = GE[ph]
    lds = c['XP'] + (t % c['CX']) * c['Xb']
    if ph in ('P1', 'P1R'):
        a.e(f's_mul_i32 {s("t5")}, {s("xstride")}, {t}')
        a.e(f's_add_u32 {s("t5")}, {s("t5")}, {s("xsrc")}')
        for gq in range(2):
            a.e(f's_add_u32 m0, {s("xlds")}, {lds + gq*4096}')
            if gq: a.e(f's_add_u32 {s("t5")}, {s("t5")}, {s("xg2")}')
            else: a.e('s_nop 0')
            for p in range(4):
                o = f' offset:{p*1024}' if p else ''
                a.e(f'buffer_load_dwordx4 v{12+p}, {s("XCUR",4)}, {s("t5")} offen{o} {SC1} lds')
        L.issued(('X', ph, t), 8)
    else:
        dma_linear(a, L, ('X', ph, t), s('WS', 4), s('xsrc'), t * c['Xb'], s('xlds'), lds, 4, flags=SC1)

def setup_W(a, ph):
    c = GE[ph]
    per = c['Wb'] // 4
    a.e(f's_mul_i32 {s("wlds")}, {s("lw")}, {per}')
    base, idx, stride = {'P1': (WQ_P, 'head', 81920), 'P1R': (WQ_P, 'head', 81920), 'P3': (WO_P, 'cb', 5*20480), 'P4': (WGU_P, 'j', 245760), 'P5': (WD_P, 'cb', 245760)}[ph]
    a.e(f"""
    s_mul_i32 {s('wsrc')}, {s(idx)}, {stride}
    s_add_u32 {s('wsrc')}, {s('wsrc')}, {base}
    s_add_u32 {s('wsrc')}, {s('wsrc')}, {s('wlds')}
    """)

def setup_X(a, ph, layer1=False):
    if ph == 'P1R':
        ph = 'P1'; layer1 = False
    elif ph == 'P1':
        layer1 = True
    if ph == 'P1':
        a.e(f's_lshl_b32 {s("xlds")}, {s("lw")}, 13')
    else:
        a.e(f's_lshl_b32 {s("xlds")}, {s("lw")}, 12')
    if ph == 'P1' and not layer1:
        a.e(f"""
        s_lshl_b32 {s('t1')}, {s('blk')}, 2
        s_add_u32 {s('t1')}, {s('t1')}, {s('lw')}
        s_mul_i32 {s('xsrc')}, {s('t1')}, {64*1280}
        s_movk_i32 {s('xstride')}, 128
        s_mov_b32 {s('xg2')}, {32*1280}
        s_mov_b32 {s('stsrc')}, {ST0}
        """)
        for p in range(4):
            a.e(f"""
            v_add_u32 v4, {4*p}, v3
            v_and_b32 v4, 7, v4
            v_and_b32 v5, 7, v0
            v_xor_b32 v4, v4, v5
            v_lshrrev_b32 v5, 3, v0
            v_add_u32 v5, {8*p}, v5
            v_mul_u32_u24 v5, 1280, v5
            v_lshl_add_u32 v5, v4, 4, v5
            v_subrev_u32 v{12+p}, {1024*p}, v5
            """)
    elif ph == 'P1':
        a.e(f"""
        s_mov_b32 s{S['XCUR']}, s{S['WS']}
        s_mov_b32 s{S['XCUR']+1}, s{S['WS']+1}
        s_mov_b32 s{S['XCUR']+2}, s{S['WS']+2}
        s_lshl_b32 {s('t1')}, {s('blk')}, 1
        s_lshr_b32 {s('t2')}, {s('lw')}, 1
        s_add_u32 {s('t1')}, {s('t1')}, {s('t2')}
        s_mul_i32 {s('xsrc')}, {s('t1')}, 163840
        s_and_b32 {s('t2')}, {s('lw')}, 1
        s_lshl_b32 {s('t2')}, {s('t2')}, 13
        s_add_u32 {s('xsrc')}, {s('xsrc')}, {s('t2')}
        s_add_u32 {s('xsrc')}, {s('xsrc')}, {LB0 + oX2}
        s_movk_i32 {s('xstride')}, 16384
        s_movk_i32 {s('xg2')}, 4096
        s_mov_b32 {s('stsrc')}, {LB0 + oST2}
        v_mov_b32 v12, v1
        v_mov_b32 v13, v1
        v_mov_b32 v14, v1
        v_mov_b32 v15, v1
        """)
    else:
        idx, stride, off = {'P3': ('rb64', 81920, oO), 'P4': ('r', 163840, oX1), 'P5': ('rb64', 196608, oH)}[ph]
        a.e(f"""
        s_mul_i32 {s('xsrc')}, {s(idx)}, {stride}
        s_add_u32 {s('xsrc')}, {s('xsrc')}, {s('lb')}
        s_add_u32 {s('xsrc')}, {s('xsrc')}, {off}
        s_add_u32 {s('xsrc')}, {s('xsrc')}, {s('xlds')}
        """)
        if ph == 'P4':
            a.e(f's_add_u32 {s("stsrc")}, {s("lb")}, {oST1}')

def loader_gemm(a, L, ph, first=False):
    c = GE[ph]
    T, CW, CX = c['T'], c['CW'], c['CX']
    stats = ph in ('P1', 'P4', 'P1R')
    tfin = 3
    a.c(f'---- loader {ph}')
    if first:
        issue_X(a, L, ph, 0); issue_W(a, L, ph, 0)
        issue_X(a, L, ph, 1); issue_W(a, L, ph, 1)
        pend = []
        for t in range(2, max(CW, CX)):
            if t < CX: pend.append(('X', t))
            if t < CW: pend.append(('W', t))
    else:
        if 'x01' in DBG:
            issue_X(a, L, ph, 0); issue_X(a, L, ph, 1)
            pend = [('X', t) for t in range(2, min(CX, T))]
        else:
            issue_X(a, L, ph, 0)
            pend = [('X', t) for t in range(1, min(CX, T))]
    def p4_stat_loads():
        a.e(f"""
        v_lshrrev_b32 v4, 1, v3
        v_lshlrev_b32 v4, 10, v4
        v_and_b32 v5, 1, v3
        v_lshl_add_u32 v4, v5, 9, v4
        v_lshl_add_u32 v4, v2, 3, v4
        s_lshl_b32 {s('t1')}, {s('r')}, 13
        s_add_u32 {s('t1')}, {s('t1')}, {s('stsrc')}
        s_lshl_b32 {s('t2')}, {s('lw')}, 11
        s_add_u32 {s('t1')}, {s('t1')}, {s('t2')}
        """)
        for i in range(4):
            a.e(f'buffer_load_dwordx2 {vr(16+2*i,2)}, v4, {s("WS",4)}, {s("t1")} offen offset:{i*128} {SC1}')
        L.issued('ST', 4)
        a.e(f"""
        v_mul_u32_u24 v4, 12288, v3
        v_lshl_add_u32 v4, v2, 2, v4
        s_lshr_b32 {s('t1')}, {s('lw')}, 1
        s_mul_i32 {s('t1')}, {s('t1')}, 6144
        s_mul_i32 {s('t2')}, {s('j')}, 384
        s_add_u32 {s('t1')}, {s('t1')}, {s('t2')}
        s_and_b32 {s('t2')}, {s('lw')}, 1
        s_mul_i32 {s('t2')}, {s('t2')}, 192
        s_add_u32 {s('t1')}, {s('t1')}, {s('t2')}
        s_add_u32 {s('t1')}, {s('t1')}, {CSP}
        """)
        for i in range(5):
            for e in range(3):
                a.e(f'buffer_load_dword v{28+i*3+e}, v4, {s("WS",4)}, {s("t1")} offen offset:{e*64} {SC1}')
            if i < 4: a.e(f's_add_u32 {s("t1")}, {s("t1")}, {4*12288}')
        L.issued('CS', 15)

    def p1_stat_loads():
        a.e(f"""
        v_lshlrev_b32 v4, 10, v3
        v_lshl_add_u32 v4, v2, 3, v4
        s_lshl_b32 {s('t1')}, {s('blk')}, 14
        s_add_u32 {s('t1')}, {s('t1')}, {s('stsrc')}
        s_lshl_b32 {s('t2')}, {s('lw')}, 12
        s_add_u32 {s('t1')}, {s('t1')}, {s('t2')}
        """)
        for i in range(8):
            a.e(f'buffer_load_dwordx2 {vr(28+2*i,2)}, v4, {s("WS",4)}, {s("t1")} offen offset:{i*128} {SC1}')
        L.issued('ST', 8)
    a.stamp('L', f'{ph} Xissued')
    for t in range(T):
        L.wait({('W', ph, t), ('X', ph, t)})
        a.e('s_barrier')
        if t == 0:
            a.stamp('L', f'{ph} B0')
            for k, tt in pend:
                (issue_X if k == 'X' else issue_W)(a, L, ph, tt)
            if ph == 'P4': p4_stat_loads()
            if ph in ('P1', 'P1R'): p1_stat_loads()
        else:
            if t - 1 + CW < T: issue_W(a, L, ph, t - 1 + CW)
            if t - 1 + CX < T: issue_X(a, L, ph, t - 1 + CX)
        if ph == 'P4' and t == 4:
            L.wait({'CS'})
            for e in range(3):
                a.e(f'v_add_f32 v{28+e}, v{28+e}, v{31+e}')
                a.e(f'v_add_f32 v{34+e}, v{34+e}, v{37+e}')
            for e in range(3):
                a.e(f'v_add_f32 v{28+e}, v{28+e}, v{40+e}')
            for e in range(3):
                a.e(f'v_add_f32 v{28+e}, v{28+e}, v{34+e}')
            for e in range(3):
                a.e(f"""
                v_mov_b32 v4, v{28+e}
                s_nop 1
                v_permlane16_swap_b32 v{28+e}, v4
                s_nop 1
                v_add_f32 v{28+e}, v{28+e}, v4
                v_mov_b32 v4, v{28+e}
                s_nop 1
                v_permlane32_swap_b32 v{28+e}, v4
                s_nop 1
                v_add_f32 v{28+e}, v{28+e}, v4
                """)
            a.e(f"""
            s_mul_i32 {s('t1')}, {s('lw')}, 192
            v_lshl_add_u32 v4, v2, 2, {s('t1')}
            s_mov_b64 exec, 0xffff
            ds_write_b32 v4, v28 offset:{M_CS}
            ds_write_b32 v4, v29 offset:{M_CS + 64}
            ds_write_b32 v4, v30 offset:{M_CS + 128}
            s_mov_b64 exec, -1
            """)
        if stats and t == tfin:
            L.wait({'ST'})
            if ph == 'P4':
                a.e(f"""
                v_add_f32 v16, v16, v18
                v_add_f32 v17, v17, v19
                v_add_f32 v20, v20, v22
                v_add_f32 v21, v21, v23
                v_add_f32 v16, v16, v20
                v_add_f32 v17, v17, v21
                v_mov_b32 v18, v16
                v_mov_b32 v19, v17
                s_nop 1
                v_permlane16_swap_b32 v16, v18
                v_permlane16_swap_b32 v17, v19
                s_nop 1
                v_add_f32 v16, v16, v18
                v_add_f32 v17, v17, v19
                """)
            else:
                a.e('v_add_f32 v16, v28, v30\nv_add_f32 v17, v29, v31')
                for i in range(2, 8):
                    a.e(f'v_add_f32 v16, v16, v{28+2*i}\nv_add_f32 v17, v17, v{29+2*i}')
            a.e(f"""
            s_mov_b32 {s('c1')}, {f32(1.0/640.0)}
            s_mov_b32 {s('c2')}, {f32(1e-5)}
            v_mul_f32 v16, {s('c1')}, v16
            v_mul_f32 v17, {s('c1')}, v17
            v_fma_f32 v17, -v16, v16, v17
            v_max_f32 v17, 0, v17
            """)
            bf16_round(a, 'v16', 'v4')
            bf16_round(a, 'v17', 'v4')
            a.e(f'v_add_f32 v17, {s("c2")}, v17')
            bf16_round(a, 'v17', 'v4')
            a.e('v_sqrt_f32 v17, v17\ns_nop 0')
            bf16_round(a, 'v17', 'v4')
            a.e('v_rcp_f32 v17, v17')
            if ph == 'P4':
                a.e(f"""
                v_lshrrev_b32 v4, 1, v3
                v_lshlrev_b32 v4, 6, v4
                v_lshl_add_u32 v4, v2, 2, v4
                s_lshl_b32 {s('t1')}, {s('lw')}, 7
                v_add_u32 v4, {s('t1')}, v4
                s_mov_b32 exec_lo, 0xffff
                s_mov_b32 exec_hi, 0xffff
                """)
            else:
                a.e(f"""
                v_lshlrev_b32 v4, 2, v0
                s_lshl_b32 {s('t1')}, {s('lw')}, 8
                v_add_u32 v4, {s('t1')}, v4
                """)
            a.e(f"""
            ds_write_b32 v4, v16 offset:{M_ROWM}
            ds_write_b32 v4, v17 offset:{M_ROWR}
            s_mov_b64 exec, -1
            """)
    a.e('s_waitcnt lgkmcnt(0)')
    a.e('s_barrier')
    a.stamp('L', f'{ph} E')

ACC = 24
RESID = 246
def compute_gemm(a, ph):
    c = GE[ph]
    T, KS, CW, CX, Wb, Xb = c['T'], c['KS'], c['CW'], c['CX'], c['Wb'], c['Xb']
    XPOOL, WPOOL = c['XP'], c['WP']
    a.c(f'---- compute {ph}')
    raw = ph == 'P1R'
    isP1 = ph in ('P1', 'P1R')
    ntt, nct, MS = {'P1': (4, 4, 1), 'P1R': (4, 4, 1), 'P4': (4, 6, 1), 'P3': (1, 5, 2), 'P5': (1, 5, 2)}[ph]
    nacc = ntt * nct * 4
    FR = ACC + nacc
    fsz = (ntt + nct) * 4 * MS
    def xf(st, ms, tt): return FR + st*fsz + ms*(ntt+nct)*4 + tt*4
    def wf(st, ms, q): return FR + st*fsz + ms*(ntt+nct)*4 + ntt*4 + q*4
    def acc(tt, q): return ACC + (tt*nct + q)*4
    CSR = FR + 2*fsz
    if raw:
        a.e(f"""
        v_lshrrev_b32 v4, 1, v2
        v_xor_b32 v4, v4, v3
        v_lshlrev_b32 v5, 7, v2
        v_lshl_add_u32 v8, v4, 4, v5
        v_xor_b32 v9, 64, v8
        """)
    elif ph == 'P1':
        a.e('v_mov_b32 v8, v1\nv_add_u32 v9, 1024, v1')
    elif ph == 'P4':
        a.e('v_mov_b32 v8, v1\nv_add_u32 v9, 1024, v1')
    if ph == 'P4':
        a.e(f"""
        s_and_b32 {s('t1')}, {s('lw')}, 1
        s_lshl_b32 {s('t1')}, {s('t1')}, 13
        s_add_u32 {s('t1')}, {s('t1')}, {XPOOL}
        v_add_u32 v8, {s('t1')}, v8
        v_add_u32 v9, {s('t1')}, v9
        v_add_u32 v22, 0x10000, v8
        v_add_u32 v23, 0x10000, v9
        s_lshr_b32 {s('t2')}, {s('lw')}, 1          ; wn
        """)
    ONES = CSR + 16
    SUMR, SQR = CSR + 20, CSR + 24
    if isP1:
        a.e(f"""
        s_lshl_b32 {s('t1')}, {s('lw')}, 13
        s_add_u32 {s('t1')}, {s('t1')}, {XPOOL}
        v_add_u32 v8, {s('t1')}, v8
        v_add_u32 v9, {s('t1')}, v9
        v_add_u32 v22, 0x10000, v8
        v_add_u32 v23, 0x10000, v9
        """)
        if False:
            a.e(f"""
            s_mul_i32 {s('t1')}, {s('head')}, 40
            s_and_b32 {s('t1')}, {s('t1')}, 15
            v_lshrrev_b32 v4, 1, v3
            v_mul_u32_u24 v4, 3072, v4
            v_and_b32 v5, 1, v3
            v_lshlrev_b32 v5, 3, v5
            v_bfe_u32 v6, v0, 2, 2
            v_add_u32 v5, v5, v6
            v_lshl_add_u32 v4, v5, 6, v4
            v_add_u32 v4, {s('t1')}, v4
            v_and_b32 v5, 3, v0
            v_lshl_add_u32 v10, v5, 3, v4
            v_min_u32 v5, 2, v5
            v_lshl_add_u32 v11, v5, 10, v4
            v_add_u32 v11, 32, v11
            s_mov_b32 {s('c0')}, 0x3f803f80
            """)
            for i in range(8): a.e(f'v_mov_b32 v{SUMR+i}, 0')
        else:
            a.e('v_mov_b32 v10, v1\nv_add_u32 v11, 0x10000, v1')
        for i in range(16): a.e(f'v_mov_b32 v{CSR+i}, 0')
        for i in range(4): a.e(f'v_mov_b32 v{ONES+i}, 0x3f803f80')
    elif ph == 'P4':
        a.e(f"""
        s_mul_i32 {s('t1')}, {s('t2')}, 3072
        v_add_u32 v10, {s('t1')}, v1
        v_add_u32 v11, 0x10000, v10
        """)
    else:
        a.e(f"""
        s_lshl_b32 {s('t1')}, {s('lw')}, 10
        s_add_u32 {s('t1')}, {s('t1')}, {XPOOL}
        v_add_u32 v8, {s('t1')}, v1
        v_mov_b32 v10, v1
        v_add_u32 v11, 0x10000, v1
        """)
    for i in range(nacc):
        a.e(f'v_mov_b32 v{ACC+i}, 0')
    def wa(lo, hi, off):
        return (f'v{hi}', off - 0x10000) if off >= 0x10000 else (f'v{lo}', off)
    def reads(st, t, m):
        xo = (t % CX) * Xb
        wo = WPOOL + (t % CW) * Wb
        xs, ws = [], []
        for ms in range(MS):
            sx = m*MS + ms
            if ph in ('P1', 'P1R', 'P4'):
                for tt in range(4):
                    r_, o_ = wa(8+sx, 22+sx, xo + tt*2048)
                    xs.append(f'ds_read_b128 {vr(xf(st,ms,tt),4)}, {r_} offset:{o_}')
            else:
                xs.append(f'ds_read_b128 {vr(xf(st,ms,0),4)}, v8 offset:{xo + sx*4096}')
            if False:
                for q in range(4):
                    for h in range(2):
                        if q < 3: ws.append(f'ds_read_b64_tr_b16 {vr(wf(st,ms,q)+2*h,2)}, v10 offset:{wo + sx*6144 + q*1024 + h*256}')
                        else: ws.append(f'ds_read_b64_tr_b16 {vr(wf(st,ms,q)+2*h,2)}, v11 offset:{wo + sx*6144 + h*256}')
            elif isP1:
                for q in range(4):
                    r_, o_ = wa(10, 11, wo + (sx*4 + q)*1024)
                    ws.append(f'ds_read_b128 {vr(wf(st,ms,q),4)}, {r_} offset:{o_}')
            elif ph == 'P4':
                for q in range(6):
                    ct = q if q < 3 else 6 + (q - 3)
                    r_, o_ = wa(10, 11, wo + (sx*12 + ct)*1024)
                    ws.append(f'ds_read_b128 {vr(wf(st,ms,q),4)}, {r_} offset:{o_}')
            else:
                for q in range(5):
                    r_, o_ = wa(10, 11, wo + (sx*5 + q)*1024)
                    ws.append(f'ds_read_b128 {vr(wf(st,ms,q),4)}, {r_} offset:{o_}')
        out = []
        if 'noreads' in DBG: return []
        while xs or ws:
            if xs: out.append(xs.pop(0))
            if ws: out.append(ws.pop(0))
        return out
    def mfmas(st):
        m = []
        if 'nomfma' in DBG: return ['s_nop 0'] * (MS*ntt*nct)
        for ms in range(MS):
            for tt in range(ntt):
                for q in range(nct):
                    A, B = (xf(st,ms,tt), wf(st,ms,q)) if isP1 else (wf(st,ms,q), xf(st,ms,tt))
                    m.append(f'v_mfma_f32_16x16x32_bf16 {vr(acc(tt,q),4)}, {vr(A,4)}, {vr(B,4)}, {vr(acc(tt,q),4)}')
                    if False and q in (1, 3):
                        for i in ((0, 1) if q == 1 else (2, 3)):
                            x = xf(st, ms, tt) + i
                            m.append(f'v_dot2_f32_bf16 v{SUMR+tt}, v{x}, {s("c0")}, v{SUMR+tt}')
                            m.append(f'v_dot2_f32_bf16 v{SQR+tt}, v{x}, v{x}, v{SQR+tt}')
            if isP1:
                for q in range(4):
                    m.append(f'v_mfma_f32_16x16x32_bf16 {vr(CSR+4*q,4)}, {vr(ONES,4)}, {vr(wf(st,ms,q),4)}, {vr(CSR+4*q,4)}')
        return m
    def interleave(ms_, rs, start=0):
        i = 0
        span = max(1, (len(ms_) - start) * 2 // 3)
        per = max(1, -(-len(rs) // span))
        for k, m in enumerate(ms_):
            a.e(m)
            if k >= start:
                for _ in range(per):
                    if i < len(rs):
                        a.e(rs[i]); i += 1
        while i < len(rs):
            a.e(rs[i]); i += 1
    NM = KS // MS
    a.e('s_barrier')
    a.stamp('C', f'{ph} B0')
    for r_ in reads(0, 0, 0): a.e(r_)
    st = 0
    for t in range(T):
        for m in range(NM):
            a.e('s_waitcnt lgkmcnt(0)')
            ms_ = mfmas(st)
            if m < NM - 1:
                interleave(ms_, reads(st ^ 1, t, m + 1))
            elif t < T - 1:
                nb = 2
                for x in ms_[:nb]: a.e(x)
                a.e('s_barrier')
                interleave(ms_[nb:], reads(st ^ 1, t + 1, 0))
            else:
                for x in ms_: a.e(x)
            st ^= 1
    a.stamp('C', f'{ph} loopend')
    a.e('s_barrier')
    a.nop(8)
    return dict(acc=acc, FR=FR, CSR=CSR, SUMR=CSR+20, SQR=CSR+24, raw=False)

def epilogue_P1(a, m):
    acc, FR, CSR = m['acc'], m['FR'], m['CSR']
    a.c('---- epilogue P1 (to LDS)')
    M4, R4 = FR, FR + 16
    if m['raw']:
        SUMR, SQR = m['SUMR'], m['SQR']
        a.e(f's_mov_b32 {s("c1")}, {f32(1.0/640.0)}\ns_mov_b32 {s("c2")}, {f32(1e-5)}')
        for tt in range(4):
            for v in (SUMR + tt, SQR + tt):
                a.e(f"""
                v_mov_b32 v4, v{v}
                s_nop 1
                v_permlane16_swap_b32 v{v}, v4
                s_nop 1
                v_add_f32 v{v}, v{v}, v4
                v_mov_b32 v4, v{v}
                s_nop 1
                v_permlane32_swap_b32 v{v}, v4
                s_nop 1
                v_add_f32 v{v}, v{v}, v4
                """)
            sm, sq = f'v{SUMR+tt}', f'v{SQR+tt}'
            a.e(f"""
            v_mul_f32 {sm}, {s('c1')}, {sm}
            v_mul_f32 {sq}, {s('c1')}, {sq}
            v_fma_f32 {sq}, -{sm}, {sm}, {sq}
            v_max_f32 {sq}, 0, {sq}
            """)
            bf16_round(a, sm, 'v4'); bf16_round(a, sq, 'v4')
            a.e(f'v_add_f32 {sq}, {s("c2")}, {sq}')
            bf16_round(a, sq, 'v4')
            a.e(f'v_sqrt_f32 {sq}, {sq}\ns_nop 0')
            bf16_round(a, sq, 'v4')
            a.e(f'v_rcp_f32 {sq}, {sq}')
        a.e(f"""
        s_lshl_b32 {s('t3')}, {s('lw')}, 8
        v_lshl_add_u32 v4, v2, 2, {s('t3')}
        s_mov_b64 exec, 0xffff
        """)
        for tt in range(4):
            a.e(f'ds_write_b32 v4, v{SUMR+tt} offset:{M_ROWM + tt*64}')
            a.e(f'ds_write_b32 v4, v{SQR+tt} offset:{M_ROWR + tt*64}')
        a.e('s_mov_b64 exec, -1\ns_waitcnt lgkmcnt(0)')
    a.e(f"""
    s_lshl_b32 {s('t3')}, {s('lw')}, 8
    v_lshl_add_u32 v4, v3, 4, {s('t3')}
    """)
    for tt in range(4):
        a.e(f'ds_read_b128 {vr(M4+tt*4,4)}, v4 offset:{M_ROWM + tt*64}')
        a.e(f'ds_read_b128 {vr(R4+tt*4,4)}, v4 offset:{M_ROWR + tt*64}')
    a.e(f"""
    s_mul_i32 {s('t3')}, {s('lw')}, 2560             ; 2w*1280
    v_and_b32 v5, 7, v2
    v_xor_b32 v5, v5, v3                             ; g ^ (j&7)
    v_lshlrev_b32 v5, 3, v5
    v_lshl_add_u32 v5, v2, 6, v5                     ; j*64 + phys*8
    s_add_u32 {s('t4')}, {s('t3')}, {QB_}
    v_add_u32 v8, {s('t4')}, v5
    v_xor_b32 v16, 32, v8
    s_add_u32 {s('t4')}, {s('t3')}, {KB + 10240}
    v_add_u32 v9, {s('t4')}, v5
    v_xor_b32 v17, 32, v9
    v_and_b32 v6, 1, v3
    v_mul_u32_u24 v6, 320, v6
    v_lshrrev_b32 v7, 1, v3
    v_lshl_add_u32 v6, v7, 3, v6                     ; (g&1)*320 + (g>>1)*8
    v_lshl_add_u32 v7, v2, 4, v6                     ; + j*16
    s_add_u32 {s('t4')}, {s('t3')}, {VB + 10240}
    v_add_u32 v10, {s('t4')}, v7
    ; tile3: d = 16 + (j&3) ; d&7 = j&3
    v_and_b32 v5, 3, v2
    v_add_u32 v7, 16, v5
    v_lshl_add_u32 v12, v7, 4, v6
    v_add_u32 v12, {s('t4')}, v12                    ; V lanes
    v_xor_b32 v5, v5, v3
    v_lshlrev_b32 v5, 3, v5
    v_lshl_add_u32 v11, v7, 6, v5                    ; d*64 + phys*8
    v_mov_b32 v5, {QB_}
    v_mov_b32 v6, {KB + 10240}
    v_cmp_gt_u32 vcc, 4, v2
    s_nop 1
    v_cndmask_b32 v5, v6, v5, vcc
    v_add_u32 v11, v11, v5
    v_add_u32 v11, {s('t3')}, v11
    v_xor_b32 v18, 32, v11
    v_mov_b32 v14, 1.0
    v_mov_b32 v15, {f32(QSCALE)}
    v_cndmask_b32 v14, v14, v15, vcc
    s_mov_b32 {s('c0')}, {f32(QSCALE)}
    s_mov_b32 s{S['c0']+1}, {f32(QSCALE)}
    s_mov_b32 {s('m0a')}, 0x00ff00ff
    s_mov_b32 s{S['m0a']+1}, 0x00ff00ff
    s_mov_b32 s58, 0x0f000f00
    s_mov_b32 s59, 0x0f000f00
    s_waitcnt vmcnt(0) lgkmcnt(0)
    """)
    for i in range(0, 16, 2):
        a.e(f'v_pk_mul_f32 {vr(M4+i,2)}, {vr(M4+i,2)}, {vr(R4+i,2)}')
    PK = FR + 32
    TMP = CSR + 28
    units = [(tt, q) for tt in range(4) for q in range(4)]
    def st1(k):
        tt, q = units[k]; T = TMP + (k & 1)*4
        return [f'v_pk_mul_f32 {vr(T+i,2)}, {vr(M4+tt*4+i,2)}, {vr(CSR+4*q,2)} op_sel_hi:[1,0]' for i in (0, 2)]
    def st2(k):
        tt, q = units[k]; T = TMP + (k & 1)*4; A = acc(tt, q)
        return [f'v_pk_fma_f32 {vr(A+i,2)}, {vr(R4+tt*4+i,2)}, {vr(A+i,2)}, {vr(T+i,2)} neg_lo:[0,0,1] neg_hi:[0,0,1]' for i in (0, 2)]
    def st3(k):
        tt, q = units[k]; A = acc(tt, q)
        if q == 0: return [f'v_pk_mul_f32 {vr(A+i,2)}, {vr(A+i,2)}, {s("c0",2)}' for i in (0, 2)]
        if q == 3: return [f'v_pk_mul_f32 {vr(A+i,2)}, {vr(A+i,2)}, v[14:15] op_sel_hi:[1,0]' for i in (0, 2)]
        return []
    def st4(k):
        tt, q = units[k]; A = acc(tt, q); p = PK + (k % 8)*2
        return [f'v_cvt_pk_bf16_f32 v{p}, v{A}, v{A+1}', f'v_cvt_pk_bf16_f32 v{p+1}, v{A+2}, v{A+3}']
    def st5(k):
        tt, q = units[k]; p = PK + (k % 8)*2
        oqk = (tt >> 1)*1280
        ov = (tt >> 1)*1280 + (tt & 1)*640
        m_ = tt & 1
        if q == 0: return [f'ds_write_b64 v{16 if m_ else 8}, {vr(p,2)} offset:{oqk}']
        if q == 1: return [f'ds_write_b64 v{17 if m_ else 9}, {vr(p,2)} offset:{oqk}']
        if q == 2: return [f'ds_write_b64 v10, {vr(p,2)} offset:{ov}']
        return [f's_mov_b64 exec, {s("m0a",2)}', f'ds_write_b64 v{18 if m_ else 11}, {vr(p,2)} offset:{oqk}',
                's_mov_b64 exec, s[58:59]', f'ds_write_b64 v12, {vr(p,2)} offset:{ov}', 's_mov_b64 exec, -1']
    n = len(units)
    a.stamp('C', 'epi setup')
    for k in range(n + 4):
        for f_, d in ((st1, 0), (st2, 1), (st3, 2), (st4, 3), (st5, 4)):
            kk = k - d
            if 'nodsw' in DBG and f_ is st5: continue
            if 'nomath' in DBG and f_ is not st5: continue
            if 0 <= kk < n:
                for x in f_(kk): a.e(x)
    a.stamp('C', 'epi issued')
    a.e('s_waitcnt lgkmcnt(0)')

def kv_copy_out(a):
    a.c('---- kv copy out')
    a.e(f"""
    s_lshl_b32 {s('t1')}, {s('blk')}, 5
    s_add_u32 {s('t1')}, {s('t1')}, {s('head')}
    s_mul_i32 {s('t1')}, {s('t1')}, 20480
    s_add_u32 {s('t1')}, {s('t1')}, {s('lb')}
    s_add_u32 {s('t1')}, {s('t1')}, {oKV}
    s_lshl_b32 {s('t2')}, {s('wave')}, 10
    s_add_u32 {s('t1')}, {s('t1')}, {s('t2')}
    s_add_u32 {s('t3')}, {s('t2')}, {KB + 10240}       ; i=0: p = wave (<8) -> K
    v_add_u32 v4, {s('t3')}, v1
    ds_read_b128 v[16:19], v4
    s_add_u32 {s('t3')}, {s('t2')}, {KB + 10240 + 8192}
    s_add_u32 {s('t4')}, {s('t2')}, {VB + 10240 - 2048}
    s_cmp_lt_u32 {s('wave')}, 2
    s_cselect_b32 {s('t3')}, {s('t3')}, {s('t4')}
    v_add_u32 v5, {s('t3')}, v1
    ds_read_b128 v[20:23], v5
    s_add_u32 {s('t3')}, {s('t2')}, {VB + 10240 + 6144}
    v_add_u32 v6, {s('t3')}, v1
    ds_read_b128 v[24:27], v6
    s_waitcnt lgkmcnt(2)
    buffer_store_dwordx4 v[16:19], v1, {s('WS',4)}, {s('t1')} offen {SC1}
    s_add_u32 {s('t1')}, {s('t1')}, 8192
    s_waitcnt lgkmcnt(1)
    buffer_store_dwordx4 v[20:23], v1, {s('WS',4)}, {s('t1')} offen {SC1}
    s_add_u32 {s('t1')}, {s('t1')}, 8192
    s_waitcnt lgkmcnt(0)
    """)
    lab = a.newlabel('Lkv')
    a.e(f"""
    s_cmp_ge_u32 {s('wave')}, 4
    s_cbranch_scc1 {lab}
    buffer_store_dwordx4 v[24:27], v1, {s('WS',4)}, {s('t1')} offen {SC1}
    {lab}:
    s_waitcnt vmcnt(0)
    """)

def epilogue_P4(a, m):
    acc, FR, CSR = m['acc'], m['FR'], m['CSR']
    a.c('---- epilogue P4')
    MM, RR = FR, FR + 8
    CG, CU = CSR, CSR + 12
    a.e(f"""
    s_and_b32 {s('t1')}, {s('lw')}, 1
    s_lshr_b32 {s('t2')}, {s('lw')}, 1
    s_lshl_b32 {s('t3')}, {s('t1')}, 8
    v_lshl_add_u32 v4, v2, 2, {s('t3')}
    """)
    for tt in range(4):
        a.e(f'ds_read_b32 v{MM+2*tt}, v4 offset:{M_ROWM + tt*64}')
        a.e(f'ds_read_b32 v{RR+2*tt}, v4 offset:{M_ROWR + tt*64}')
    a.e(f"""
    s_mul_i32 {s('t3')}, {s('t2')}, 192
    v_lshl_add_u32 v5, v3, 4, {s('t3')}
    """)
    for q in range(3):
        a.e(f'ds_read_b128 {vr(CG+q*4,4)}, v5 offset:{M_CS + q*64}')
        a.e(f'ds_read_b128 {vr(CU+q*4,4)}, v5 offset:{M_CS + 384 + q*64}')
    a.e(f"""
    s_lshl_b32 {s('t3')}, {s('r')}, 1
    s_add_u32 {s('t3')}, {s('t3')}, {s('t1')}
    s_mul_i32 {s('t3')}, {s('t3')}, 196608
    s_add_u32 {s('t3')}, {s('t3')}, {s('lb')}
    s_add_u32 {s('t3')}, {s('t3')}, {oH}
    s_mul_i32 {s('t4')}, {s('j')}, 12
    s_mul_i32 {s('t5')}, {s('t2')}, 6
    s_add_u32 {s('t4')}, {s('t4')}, {s('t5')}
    v_lshrrev_b32 v4, 1, v3
    v_add_u32 v4, {s('t4')}, v4
    v_and_b32 v5, 1, v3
    v_lshlrev_b32 v5, 10, v5
    v_lshl_add_u32 v5, v2, 4, v5
    """)
    AD = 8
    for q in range(3):
        a.e(f"""
        v_add_u32 v6, {2*q}, v4
        v_lshrrev_b32 v7, 2, v6
        v_lshlrev_b32 v7, 12, v7
        v_and_b32 v6, 3, v6
        v_lshl_add_u32 v7, v6, 8, v7
        v_add_u32 v{AD+q}, v7, v5
        """)
    a.e('s_waitcnt vmcnt(0) lgkmcnt(0)')
    for tt in range(4):
        a.e(f'v_mul_f32 v{RR+2*tt}, v{RR+2*tt}, v{RR+2*tt}')
    PK = FR + 16
    def pk(u, q): return PK + (u*3 + q)*4
    for u in range(2):
        for q in range(3):
            for tt in (2*u, 2*u+1):
                G, U = acc(tt, q), acc(tt, 3+q)
                for i in (0, 2):
                    a.e(f'v_pk_fma_f32 {vr(G+i,2)}, {vr(MM+2*tt,2)}, {vr(CG+q*4+i,2)}, {vr(G+i,2)} op_sel_hi:[0,1,1] neg_lo:[1,0,0] neg_hi:[1,0,0]')
                    a.e(f'v_pk_fma_f32 {vr(U+i,2)}, {vr(MM+2*tt,2)}, {vr(CU+q*4+i,2)}, {vr(U+i,2)} op_sel_hi:[0,1,1] neg_lo:[1,0,0] neg_hi:[1,0,0]')
                for i in (0, 2):
                    a.e(f'v_pk_mul_f32 {vr(G+i,2)}, {vr(G+i,2)}, {vr(U+i,2)}')
                for i in (0, 2):
                    a.e(f'v_pk_mul_f32 {vr(G+i,2)}, {vr(G+i,2)}, {vr(RR+2*tt,2)} op_sel_hi:[1,0]')
                p = pk(u, q) + 2*(tt & 1)
                a.e(f'v_cvt_pk_bf16_f32 v{p}, v{G}, v{G+1}')
                a.e(f'v_cvt_pk_bf16_f32 v{p+1}, v{G+2}, v{G+3}')
            p = pk(u, q)
            o = f' offset:{u*2048}' if u else ''
            a.e(f"""
            s_nop 1
            v_permlane16_swap_b32 v{p}, v{p+2}
            v_permlane16_swap_b32 v{p+1}, v{p+3}
            s_nop 1
            buffer_store_dwordx4 {vr(p,4)}, v{AD+q}, {s("WS",4)}, {s("t3")} offen{o} {SC1}
            """)

def epilogue_P35(a, m, ph):
    acc, FR = m['acc'], m['FR']
    a.c(f'---- epilogue {ph}')
    if ph == 'P3':
        a.e('s_waitcnt vmcnt(0)')
    for ct in range(5):
        A = acc(0, ct)
        R = RESID + 2*ct
        a.e(f"""
        v_lshlrev_b32 v4, 16, v{R}
        v_and_b32 v5, 0xffff0000, v{R}
        v_lshlrev_b32 v6, 16, v{R+1}
        v_and_b32 v7, 0xffff0000, v{R+1}
        v_pk_add_f32 {vr(A,2)}, {vr(A,2)}, v[4:5]
        v_pk_add_f32 {vr(A+2,2)}, {vr(A+2,2)}, v[6:7]
        v_cvt_pk_bf16_f32 v{R}, v{A}, v{A+1}
        v_cvt_pk_bf16_f32 v{R+1}, v{A+2}, v{A+3}
        """)
    PK = FR
    for pr in range(2):
        for i in range(4):
            a.e(f'v_mov_b32 v{PK+pr*4+i}, v{RESID+pr*4+i}')
    AD = FR + 8
    lo = a.newlabel('Lout'); le = a.newlabel('Le35')
    if ph == 'P5':
        a.e(f's_cmp_eq_u32 {s("layer")}, 1\ns_cbranch_scc1 {lo}')
    xo = oX1 if ph == 'P3' else oX2
    sto = oST1 if ph == 'P3' else oST2
    a.e(f"""
    s_mul_i32 {s('t3')}, {s('r')}, 163840
    s_add_u32 {s('t3')}, {s('t3')}, {s('lb')}
    s_add_u32 {s('t3')}, {s('t3')}, {xo}
    s_and_b32 {s('t4')}, {s('rb64')}, 1
    s_lshl_b32 {s('t4')}, {s('t4')}, 2
    s_add_u32 {s('t4')}, {s('t4')}, {s('lw')}
    s_lshl_b32 {s('t4')}, {s('t4')}, 11
    s_add_u32 {s('t3')}, {s('t3')}, {s('t4')}
    s_mul_i32 {s('t4')}, {s('cb')}, 10
    v_and_b32 v4, 1, v3
    v_lshrrev_b32 v5, 1, v3
    v_lshl_add_u32 v6, v4, 1, v5
    v_add_u32 v6, {s('t4')}, v6
    v_add_u32 v7, {s('t4')}, v5
    v_permlane16_swap_b32 v{PK}, v{PK+2}
    v_permlane16_swap_b32 v{PK+1}, v{PK+3}
    v_permlane16_swap_b32 v{PK+4}, v{PK+6}
    v_permlane16_swap_b32 v{PK+5}, v{PK+7}
    """)
    for pr in range(2):
        a.e(f"""
        v_add_u32 v8, {4*pr}, v6
        v_lshrrev_b32 v9, 3, v8
        v_lshlrev_b32 v9, 14, v9
        v_and_b32 v8, 7, v8
        v_lshl_add_u32 v9, v8, 8, v9
        v_lshl_add_u32 v{AD+pr}, v2, 4, v9
        buffer_store_dwordx4 {vr(PK+pr*4,4)}, v{AD+pr}, {s("WS",4)}, {s("t3")} offen {SC1}
        """)
    a.e(f"""
    v_add_u32 v8, 8, v7
    v_lshrrev_b32 v9, 3, v8
    v_lshlrev_b32 v9, 14, v9
    v_and_b32 v8, 7, v8
    v_lshl_add_u32 v9, v8, 8, v9
    v_lshl_add_u32 v9, v2, 4, v9
    v_lshl_add_u32 v{AD+2}, v4, 3, v9
    buffer_store_dwordx2 {vr(RESID+8,2)}, v{AD+2}, {s("WS",4)}, {s("t3")} offen {SC1}
    s_mov_b32 {s('c0')}, 0x3f803f80
    v_mov_b32 v12, 0
    v_mov_b32 v13, 0
    """)
    for i in range(10):
        a.e(f'v_dot2_f32_bf16 v12, v{RESID+i}, {s("c0")}, v12')
        a.e(f'v_dot2_f32_bf16 v13, v{RESID+i}, v{RESID+i}, v13')
    a.e(f"""
    s_nop 2
    v_mov_b32 v14, v12
    v_mov_b32 v15, v13
    s_nop 1
    v_permlane16_swap_b32 v12, v14
    v_permlane16_swap_b32 v13, v15
    s_nop 1
    v_add_f32 v12, v12, v14
    v_add_f32 v13, v13, v15
    v_mov_b32 v14, v12
    v_mov_b32 v15, v13
    s_nop 1
    v_permlane32_swap_b32 v12, v14
    v_permlane32_swap_b32 v13, v15
    s_nop 1
    v_add_f32 v12, v12, v14
    v_add_f32 v13, v13, v15
    s_lshl_b32 {s('t3')}, {s('rb64')}, 2
    s_add_u32 {s('t3')}, {s('t3')}, {s('lw')}
    s_lshl_b32 {s('t3')}, {s('t3')}, 3
    s_add_u32 {s('t3')}, {s('t3')}, {s('cb')}
    s_lshl_b32 {s('t3')}, {s('t3')}, 7
    s_add_u32 {s('t3')}, {s('t3')}, {s('lb')}
    s_add_u32 {s('t3')}, {s('t3')}, {sto}
    v_lshlrev_b32 v4, 3, v2
    s_mov_b64 exec, 0xffff
    buffer_store_dwordx2 v[12:13], v4, {s("WS",4)}, {s("t3")} offen {SC1}
    s_mov_b64 exec, -1
    """)
    if ph == 'P5':
        a.e(f"""
        s_branch {le}
        {lo}:
        s_lshl_b32 {s('t3')}, {s('rb64')}, 2
        s_add_u32 {s('t3')}, {s('t3')}, {s('lw')}
        s_mul_i32 {s('t3')}, {s('t3')}, {16*1280}
        s_mul_i32 {s('t4')}, {s('cb')}, 160
        s_add_u32 {s('t3')}, {s('t3')}, {s('t4')}
        v_mul_u32_u24 v6, 1280, v2
        v_and_b32 v4, 1, v3
        v_lshrrev_b32 v5, 1, v3
        v_lshl_add_u32 v7, v4, 5, v6
        v_lshl_add_u32 v7, v5, 4, v7
        v_lshl_add_u32 v8, v3, 3, v6
        v_permlane16_swap_b32 v{PK}, v{PK+2}
        v_permlane16_swap_b32 v{PK+1}, v{PK+3}
        v_permlane16_swap_b32 v{PK+4}, v{PK+6}
        v_permlane16_swap_b32 v{PK+5}, v{PK+7}
        s_nop 1
        buffer_store_dwordx4 {vr(PK,4)}, v7, {s('OUT',4)}, {s('t3')} offen
        buffer_store_dwordx4 {vr(PK+4,4)}, v7, {s('OUT',4)}, {s('t3')} offen offset:64
        buffer_store_dwordx2 {vr(RESID+8,2)}, v8, {s('OUT',4)}, {s('t3')} offen offset:128
        {le}:
        """)

M_SIG = MISC + 2048
M_CS = MISC + 2304
def lds_spin(a, addr_off, val_s):
    lp = a.newlabel('Lspin')
    a.e(f"""
    v_mov_b32 v4, {addr_off}
    {lp}:
    ds_read_b32 v5, v4
    s_waitcnt lgkmcnt(0)
    v_readfirstlane_b32 {s('t0')}, v5
    s_cmp_lg_u32 {s('t0')}, {val_s}
    s_cbranch_scc1 {lp}
    """)

def attention_phase(a, role, prefetch_cb=None):
    a.c('---- attention')
    SA, SBt = 16, 32
    CM = 48
    C0, C8 = 64, 80
    OB = 96
    KF = 112
    VF = 168
    QF = 184
    PB = 192
    vKa, vKb, vVa, vq, vneg, vzero, vm = 'v8', 'v9', 'v10', 'v11', 'v12', 'v13', 'v14'
    if role == 'C':
        ls = a.newlabel('Lsa')
        a.e(f"""
        s_cmp_ge_u32 {s('wave')}, 2
        s_cbranch_scc1 {ls}
        s_lshl_b32 {s('t1')}, {s('blk')}, 5
        s_add_u32 {s('t1')}, {s('t1')}, {s('head')}
        s_mul_i32 {s('t1')}, {s('t1')}, 20480
        s_add_u32 {s('t1')}, {s('t1')}, {s('lb')}
        s_add_u32 {s('t1')}, {s('t1')}, {oKV}
        s_mul_i32 {s('t2')}, {s('wave')}, 10240
        s_add_u32 {s('t1')}, {s('t1')}, {s('t2')}
        s_mul_i32 {s('t3')}, {s('wave')}, 20480
        s_add_u32 {s('t3')}, {s('t3')}, {KB + 10240}
        v_add_u32 v4, {s('t3')}, v1
        """)
        for p in range(10):
            a.e(f'ds_read_b128 {vr(16+4*p,4)}, v4 offset:{p*1024}')
        for p in range(10):
            if p % 4 == 0 and p: a.e(f's_add_u32 {s("t1")}, {s("t1")}, 4096')
            a.e(f's_waitcnt lgkmcnt({9-p})')
            o = f' offset:{(p%4)*1024}' if p % 4 else ''
            a.e(f'buffer_store_dwordx4 {vr(16+4*p,4)}, v1, {s("WS",4)}, {s("t1")} offen{o} {SC1}')
        a.e('s_nop 1')
        a.label(ls)
    a.e(f"""
    s_sub_u32 {s('t2')}, 11, {s('wave')}
    s_cmp_lt_u32 {s('wave')}, 4
    s_cselect_b32 {s('qt')}, {s('wave')}, {s('t2')}
    s_mul_i32 {s('t4')}, {s('qt')}, 1280
    s_add_u32 {s('t3')}, {s('t4')}, {KB}
    v_lshrrev_b32 v4, 1, v3
    v_bfe_u32 v5, v0, 2, 2
    v_and_b32 v6, 3, v0
    v_and_b32 v7, 1, v3
    v_lshl_add_u32 v7, v7, 2, v6
    v_xor_b32 v7, v7, v5
    v_lshlrev_b32 v7, 3, v7
    v_lshl_add_u32 v6, v4, 3, v5
    v_lshl_add_u32 {vKa}, v6, 6, v7
    v_add_u32 v6, 16, v5
    v_lshl_add_u32 {vKb}, v6, 6, v7
    s_add_u32 {s('t5')}, {s('t4')}, {QB_}
    v_add_u32 v208, {s('t5')}, {vKa}
    v_add_u32 v209, {s('t5')}, {vKb}
    v_xor_b32 v210, 32, v208
    v_add_u32 {vKa}, {s('t3')}, {vKa}
    v_add_u32 {vKb}, {s('t3')}, {vKb}
    v_xor_b32 v15, 32, {vKa}
    ds_read_b64_tr_b16 {vr(QF,2)}, v208
    ds_read_b64_tr_b16 {vr(QF+2,2)}, v210 offset:256
    ds_read_b64_tr_b16 {vr(QF+4,2)}, v209
    v_and_b32 v6, 31, v0
    v_mul_u32_u24 v7, 320, v4
    v_lshl_add_u32 {vVa}, v6, 4, v7
    s_add_u32 {s('t3')}, {s('t3')}, 20480
    v_add_u32 {vVa}, {s('t3')}, {vVa}
    v_lshlrev_b32 v7, 2, v4
    v_sub_u32 {vq}, v6, v7
    v_mov_b32 {vneg}, {f32(NEG)}
    v_mov_b32 {vzero}, 0
    s_sub_u32 {s('c2')}, 8, {s('qt')}
    s_sub_u32 {s('c3')}, 7, {s('qt')}
    v_mov_b32 v7, 0x3f803f80
    v_cmp_eq_u32 vcc, 20, v6
    s_nop 1
    v_cndmask_b32 v7, 0, v7, vcc
    s_mov_b32 {s('m0a')}, 0xfffff
    s_mov_b32 s{S['m0a']+1}, 0xfffff
    """)
    def kf(t): return KF + t*6
    def kreads(t):
        k = kf(t)
        return [f'ds_read_b64_tr_b16 {vr(k,2)}, {vKa} offset:{t*1280}',
                f'ds_read_b64_tr_b16 {vr(k+2,2)}, v15 offset:{t*1280+256}',
                f'ds_read_b64_tr_b16 {vr(k+4,2)}, {vKb} offset:{t*1280}']
    def vreads(t, st):
        v = VF + st*8
        return [f's_mov_b64 exec, {s("m0a",2)}',
                f'ds_read_b128 {vr(v,4)}, {vVa} offset:{t*1280}',
                f'ds_read_b128 {vr(v+4,4)}, {vVa} offset:{t*1280+640}',
                's_mov_b64 exec, -1']
    def qk(t, D, C):
        k = kf(t)
        return [f'v_mfma_f32_32x32x16_bf16 {vr(D,16)}, {vr(k,4)}, {vr(QF,4)}, {C}',
                f'v_mfma_f32_32x32x8_bf16 {vr(D,16)}, {vr(k+4,2)}, {vr(QF+4,2)}, {vr(D,16)}']
    seqA = [8, 7, 6, 5, 4, 3, 2, 1]
    seqB = [0, 1, 2, 3, 4, 5, 6, 7]
    for t in seqA[:3]:
        for r_ in kreads(t): a.e(r_)
    for i in range(16):
        a.e(f'v_mov_b32 v{VF+i}, v7')
    for i in range(16):
        a.e(f'v_mov_b32 v{OB+i}, 0')
    for b in range(4):
        for i in range(4):
            reg = b*4 + i
            creg = 8*(reg >> 2) + (reg & 3)
            a.e(f'v_cmp_gt_i32 s[{64+2*i}:{65+2*i}], {creg}, {vq}')
        a.e('s_nop 1')
        for i in range(4):
            reg = b*4 + i
            a.e(f'v_cndmask_b32 v{C0+reg}, {vneg}, {vzero}, s[{64+2*i}:{65+2*i}]')
            a.e(f'v_cndmask_b32 v{C8+reg}, {vzero}, {vneg}, s[{64+2*i}:{65+2*i}]')
    a.e(f"""
    s_waitcnt lgkmcnt(9)
    s_mov_b32 exec_lo, 0
    v_mov_b32 v{QF+4}, 0
    v_mov_b32 v{QF+5}, 0
    s_mov_b32 exec_lo, -1
    """)
    ch = ['v4', 'v5', 'v6', 'v7']
    buf = [SA, SBt]
    def maxes(D):
        return [f'v_max3_f32 {ch[i & 3]}, {ch[i & 3]}, v{D+2*i}, v{D+2*i+1}' for i in range(8)]
    def part(seq, lim, masked_t, Cmask, first_reads_done):
        n = len(seq)
        ex1 = a.newlabel('Lx1'); ex2 = a.newlabel('Lx2')
        if not first_reads_done:
            for t in seq[:3]:
                for r_ in kreads(t): a.e(r_)
        for c_ in ch: a.e(f'v_mov_b32 {c_}, {vneg}')
        for i in range(16): a.e(f'v_mov_b32 v{buf[1]+i}, {vneg}')
        for k, t in enumerate(seq):
            a.e(f's_waitcnt lgkmcnt({min(6, (n - 1 - k) * 3)})')
            D = buf[k & 1]
            C = vr(Cmask, 16) if t == masked_t else '0'
            q1, q2 = qk(t, D, C)
            mx = maxes(buf[(k - 1) & 1]) if k >= 1 else []
            a.e(q1)
            if k + 3 < n:
                for r_ in kreads(seq[k + 3]): a.e(r_)
                if mx: a.nop(1)
            elif mx: a.nop(4)
            for x in mx[:4]: a.e(x)
            a.e(q2)
            for x in mx[4:]: a.e(x)
            if k < n - 1:
                a.e(f's_cmp_eq_u32 {lim}, {t}\ns_cbranch_scc1 {ex1}')
        a.label(ex1)
        a.nop(14)
        for x in maxes(buf[0]): a.e(x)
        for x in maxes(buf[1]): a.e(x)
        a.e(f"""
        v_max3_f32 v4, v4, v5, v6
        v_max_f32 v4, v4, v7
        v_mov_b32 v5, v4
        s_nop 1
        v_permlane32_swap_b32 v4, v5
        s_nop 1
        v_max_f32 v4, v4, v5
        """)
        if masked_t == 8:
            a.e(f'v_mov_b32 {vm}, v4')
        else:
            a.e(f"""
            v_max_f32 v4, v4, {vm}
            v_sub_f32 v5, {vm}, v4
            v_exp_f32 v5, v5
            v_mov_b32 {vm}, v4
            s_nop 0
            """)
            for i in range(16):
                a.e(f'v_mul_f32 v{OB+i}, v{OB+i}, v5')
        for i in range(16):
            a.e(f'v_sub_f32 v{CM+i}, 0, {vm}')
        for i in range(16):
            a.e(f'v_sub_f32 v{Cmask+i}, v{Cmask+i}, {vm}')
        a.e('s_waitcnt lgkmcnt(0)')
        def C2(t): return vr(Cmask, 16) if t == masked_t else vr(CM, 16)
        def pv(k):
            v = VF + (k & 1)*8; P = PB + (k & 1)*8
            return [f'v_mfma_f32_32x32x16_bf16 {vr(OB,16)}, {vr(v,4)}, {vr(P,4)}, {vr(OB,16)}',
                    f'v_mfma_f32_32x32x16_bf16 {vr(OB,16)}, {vr(v+4,4)}, {vr(P+4,4)}, {vr(OB,16)}']
        for r_ in vreads(seq[0], 0): a.e(r_)
        for x in qk(seq[0], buf[0], C2(seq[0])): a.e(x)
        stubs = []
        for k, t in enumerate(seq):
            D = buf[k & 1]
            P = PB + (k & 1)*8
            nq = qk(seq[k+1], buf[(k+1) & 1], C2(seq[k+1])) if k < n - 1 else []
            pp = pv(k - 1) if k >= 1 else []
            ml = []
            if nq: ml.append(nq[0])
            if pp: ml.append(('wait', pp[0]))
            if nq: ml.append(nq[1])
            if pp: ml.append(pp[1])
            if k == 0: a.nop(12)
            slots = {0: [], 4: [], 8: [], 12: []}
            for idx, m_ in enumerate(ml): slots[4*idx].append(m_)
            for i in range(16):
                for m_ in slots.get(i, []):
                    if isinstance(m_, tuple):
                        a.e('s_waitcnt lgkmcnt(2)')
                        a.e(m_[1])
                    else:
                        a.e(m_)
                if i == 9 and k < n - 1:
                    pass
                a.e(f'v_exp_f32 v{D+i}, v{D+i}')
                if i % 2 == 1 and i >= 3:
                    a.e(f'v_cvt_pk_bf16_f32 v{P+(i-3)//2}, v{D+i-3}, v{D+i-2}')
            a.e('s_nop 0')
            a.e(f'v_cvt_pk_bf16_f32 v{P+7}, v{D+14}, v{D+15}')
            if k < n - 1:
                for r_ in vreads(seq[k+1], (k+1) & 1): a.e(r_)
                st = a.newlabel('Lst')
                a.e(f's_cmp_eq_u32 {lim}, {t}\ns_cbranch_scc1 {st}')
                stubs.append((st, k))
            else:
                a.e('s_waitcnt lgkmcnt(0)\ns_nop 0')
                for x in pv(k): a.e(x)
        a.e(f's_branch {ex2}')
        for st, k in stubs:
            a.label(st)
            a.e('s_waitcnt lgkmcnt(0)\ns_nop 0')
            for x in pv(k): a.e(x)
            a.e(f's_branch {ex2}')
        a.label(ex2)
        a.e('s_waitcnt lgkmcnt(0)')
    part(seqA, s('c2'), 8, C8, True)
    a.stamp(role, 'attn partA')
    if role == 'C':
        pass
        ls = a.newlabel('Lsb'); l1 = a.newlabel('Lsb1'); lj = a.newlabel('Lsbj'); lnp = a.newlabel('Lsbn')
        a.e(f"""
        s_cmp_ge_u32 {s('wave')}, 2
        s_cbranch_scc1 {ls}
        s_waitcnt vmcnt(0)
        s_add_u32 {s('t5')}, {s('layer')}, 1
        s_cmp_eq_u32 {s('wave')}, 0
        s_cbranch_scc0 {l1}
        """)
        lds_spin(a, M_SIG, s('t5'))
        flag_store(a, 0)
        lp = a.newlabel('Lpp')
        a.e(f"""
        s_cmp_eq_u32 {s('blk')}, 0
        s_cbranch_scc1 {lnp}
        s_lshl_b32 {s('t0')}, {s('j')}, 2
        s_add_u32 {s('t0')}, {s('t0')}, {s('flb')}
        s_sub_u32 {s('t0')}, {s('t0')}, 1024
        v_mov_b32 v4, {s('t0')}
        s_mov_b64 exec, 1
        {lp}:
        buffer_load_dword v5, v4, {s('WS',4)}, 0 offen sc1
        s_waitcnt vmcnt(0)
        v_cmp_ne_u32 vcc, {s('tag')}, v5
        s_cmp_eq_u64 vcc, 0
        s_cbranch_scc0 {lp}
        s_mov_b64 exec, -1
        {lnp}:
        v_mov_b32 v4, {M_SIG + 4}
        v_mov_b32 v5, {s('t5')}
        ds_write_b32 v4, v5
        s_branch {lj}
        {l1}:
        v_mov_b32 v4, {M_SIG}
        v_mov_b32 v5, {s('t5')}
        ds_write_b32 v4, v5
        """)
        lds_spin(a, M_SIG + 4, s('t5'))
        a.label(lj)
        La = Loader(a)
        lnd = a.newlabel('Lsbd')
        a.e(f"""
        s_cmp_eq_u32 {s('blk')}, 0
        s_cbranch_scc1 {lnd}
        s_lshl_b32 {s('t1')}, {s('blk')}, 5
        s_add_u32 {s('t1')}, {s('t1')}, {s('head')}
        s_sub_u32 {s('t1')}, {s('t1')}, 32
        s_mul_i32 {s('t1')}, {s('t1')}, 20480
        s_add_u32 {s('t1')}, {s('t1')}, {s('lb')}
        s_add_u32 {s('t1')}, {s('t1')}, {oKV}
        s_mul_i32 {s('t2')}, {s('wave')}, 10240
        s_add_u32 {s('t1')}, {s('t1')}, {s('t2')}
        s_mul_i32 {s('t3')}, {s('wave')}, 20480
        """)
        dma_linear(a, La, 'PK', s('WS', 4), s('t1'), 0, s('t3'), KB, 10, flags=SC1)
        a.e(f"""
        s_waitcnt vmcnt(0)
        {lnd}:
        """)
        a.label(ls)
    a.e('s_waitcnt lgkmcnt(0)')
    a.e('s_barrier')
    a.stamp(role, 'attn A1')
    if role == 'L' and prefetch_cb:
        prefetch_cb()
    lfin = a.newlabel('Lafin')
    a.e(f's_cmp_eq_u32 {s("blk")}, 0\ns_cbranch_scc1 {lfin}')
    part(seqB, s('c3'), 0, C0, False)
    a.label(lfin)
    a.nop(14)
    a.e(f"""
    v_mov_b32 v4, v{OB+8}
    v_mov_b32 v5, v{OB+8}
    s_nop 1
    v_permlane32_swap_b32 v4, v5
    s_nop 1
    v_rcp_f32 v5, v5
    s_nop 0
    """)
    for i in range(12):
        a.e(f'v_mul_f32 v{OB+i}, v{OB+i}, v5')
    P = PB
    for i in range(6):
        a.e(f'v_cvt_pk_bf16_f32 v{P+i}, v{OB+2*i}, v{OB+2*i+1}')
    a.e(f"""
    s_and_b32 {s('t1')}, {s('head')}, 1
    s_lshl_b32 {s('t3')}, {s('blk')}, 2
    s_lshr_b32 {s('t4')}, {s('qt')}, 1
    s_add_u32 {s('t3')}, {s('t3')}, {s('t4')}
    s_mul_i32 {s('t3')}, {s('t3')}, 81920
    s_add_u32 {s('t3')}, {s('t3')}, {s('lb')}
    s_add_u32 {s('t3')}, {s('t3')}, {oO}
    s_and_b32 {s('t4')}, {s('qt')}, 1
    s_lshl_b32 {s('t4')}, {s('t4')}, 11
    s_add_u32 {s('t3')}, {s('t3')}, {s('t4')}
    v_permlane32_swap_b32 v{P}, v{P+2}
    v_permlane32_swap_b32 v{P+1}, v{P+3}
    s_lshr_b32 {s('t4')}, {s('head')}, 1
    s_mul_i32 {s('t4')}, {s('t4')}, 5
    s_lshl_b32 {s('t5')}, {s('t1')}, 1
    s_add_u32 {s('t5')}, {s('t5')}, {s('t4')}
    v_and_b32 v4, 1, v3
    v_lshlrev_b32 v4, 10, v4
    v_lshl_add_u32 v4, v2, 4, v4
    v_lshrrev_b32 v5, 1, v3
    v_add_u32 v5, {s('t5')}, v5
    v_lshrrev_b32 v6, 2, v5
    v_lshlrev_b32 v6, 12, v6
    v_and_b32 v5, 3, v5
    v_lshl_add_u32 v6, v5, 8, v6
    v_add_u32 v6, v6, v4
    buffer_store_dwordx4 {vr(P,4)}, v6, {s('WS',4)}, {s('t3')} offen {SC1}
    s_add_u32 {s('t4')}, {s('t4')}, 4
    s_lshr_b32 {s('t5')}, {s('t4')}, 2
    s_lshl_b32 {s('t5')}, {s('t5')}, 12
    s_and_b32 {s('t4')}, {s('t4')}, 3
    s_lshl_b32 {s('t4')}, {s('t4')}, 8
    s_add_u32 {s('t5')}, {s('t5')}, {s('t4')}
    s_lshl_b32 {s('t4')}, {s('t1')}, 3
    s_add_u32 {s('t5')}, {s('t5')}, {s('t4')}
    v_add_u32 v7, {s('t5')}, v4
    s_mov_b32 exec_hi, 0
    buffer_store_dwordx2 {vr(P+4,2)}, v7, {s('WS',4)}, {s('t3')} offen {SC1}
    s_mov_b32 exec_hi, -1
    """)
    a.stamp(role, 'attn stores')
    a.e('s_waitcnt vmcnt(0)')
    a.stamp(role, 'attn drained')

PW = dict(wo=76, wg=78, wu=80, wd=82)
def emit_unit_A(a, su, srd, dst, csp, vo, ldsoff):
    k, cg, pitch, typ, base, per, x, y = [f's{i}' for i in range(92, 100)]
    L = lambda p: a.newlabel(p)
    lwg, lwu, lwd, lgo5, lgu, lld, lnp = L('Ug'), L('Uu'), L('Ud'), L('U5'), L('Ugu'), L('Uld'), L('Unp')
    S0, S1, S2, S3 = f's{srd}', f's{srd+1}', f's{srd+2}', f's{srd+3}'
    a.e(f"""
    s_mov_b32 {S3}, 0x20000
    s_cmp_lt_u32 {su}, 480
    s_cbranch_scc1 {lwg}
    s_cmp_lt_u32 {su}, 960
    s_cbranch_scc1 {lwu}
    s_cmp_lt_u32 {su}, 1440
    s_cbranch_scc1 {lwd}
    s_sub_u32 {x}, {su}, 1440
    s_mov_b32 {S0}, s{PW['wo']}
    s_mov_b32 {S1}, s{PW['wo']+1}
    s_mov_b32 {S2}, 819200
    s_mov_b32 {typ}, 1
    s_mov_b32 {base}, {WO_P}
    s_mov_b32 {per}, {20*5*1024}
    s_branch {lgo5}
    {lwd}:
    s_sub_u32 {x}, {su}, 960
    s_mov_b32 {S0}, s{PW['wd']}
    s_mov_b32 {S1}, s{PW['wd']+1}
    s_mov_b32 {S2}, 1966080
    s_mov_b32 {typ}, 0
    s_mov_b32 {base}, {WD_P}
    s_mov_b32 {per}, {48*5*1024}
    {lgo5}:
    s_mul_i32 {k}, {x}, 6554
    s_lshr_b32 {k}, {k}, 16
    s_mul_i32 {y}, {k}, 10
    s_sub_u32 {cg}, {x}, {y}
    s_movk_i32 {pitch}, 1280
    s_mov_b32 s{csp}, -1
    s_mul_i32 {y}, {k}, 5120
    s_add_u32 {base}, {base}, {y}
    """)
    for i in range(4):
        a.e(f"""
        s_lshl_b32 {x}, {cg}, 2
        s_add_u32 {x}, {x}, {i}
        s_mul_i32 {y}, {x}, 13108
        s_lshr_b32 {y}, {y}, 16
        s_mul_i32 s{dst+i}, {y}, {per}
        s_mul_i32 {y}, {y}, 5
        s_sub_u32 {x}, {x}, {y}
        s_lshl_b32 {x}, {x}, 10
        s_add_u32 s{dst+i}, s{dst+i}, {x}
        s_add_u32 s{dst+i}, s{dst+i}, {base}
        """)
    a.e(f"""
    s_branch {lld}
    {lwg}:
    s_mov_b32 {x}, {su}
    s_mov_b32 {S0}, s{PW['wg']}
    s_mov_b32 {S1}, s{PW['wg']+1}
    s_mov_b32 {per}, 0
    s_branch {lgu}
    {lwu}:
    s_sub_u32 {x}, {su}, 480
    s_mov_b32 {S0}, s{PW['wu']}
    s_mov_b32 {S1}, s{PW['wu']+1}
    s_mov_b32 {per}, 1
    {lgu}:
    s_mov_b32 {S2}, 1966080
    s_movk_i32 {pitch}, 3072
    s_mov_b32 {typ}, 0
    s_mul_i32 {k}, {x}, 2731
    s_lshr_b32 {k}, {k}, 16
    s_mul_i32 {y}, {k}, 24
    s_sub_u32 {cg}, {x}, {y}
    s_lshl_b32 {y}, {k}, 1
    s_add_u32 {y}, {y}, {per}
    s_mul_i32 s{csp}, {y}, 6144
    s_lshl_b32 {y}, {cg}, 8
    s_add_u32 s{csp}, s{csp}, {y}
    s_add_u32 s{csp}, s{csp}, {CSP}
    s_mul_i32 {base}, {k}, 12288
    s_mul_i32 {y}, {per}, 6144
    s_add_u32 {base}, {base}, {y}
    s_add_u32 {base}, {base}, {WGU_P}
    """)
    for i in range(4):
        a.e(f"""
        s_lshl_b32 {x}, {cg}, 2
        s_add_u32 {x}, {x}, {i}
        s_mul_i32 {y}, {x}, 10923
        s_lshr_b32 {y}, {y}, 16
        s_mul_i32 s{dst+i}, {y}, 245760
        s_mul_i32 {y}, {y}, 6
        s_sub_u32 {x}, {x}, {y}
        s_lshl_b32 {x}, {x}, 10
        s_add_u32 s{dst+i}, s{dst+i}, {x}
        s_add_u32 s{dst+i}, s{dst+i}, {base}
        """)
    a.label(lld)
    for p in range(4):
        np_ = a.newlabel('Unp')
        a.e(f"""
        v_lshrrev_b32 v4, 3, v0
        s_lshl_b32 {x}, {k}, 5
        s_add_u32 {x}, {x}, {8*p}
        v_add_u32 v4, {x}, v4
        s_cmp_eq_u32 {typ}, 1
        s_cbranch_scc0 {np_}
        s_movk_i32 {x}, 1639
        v_mul_u32_u24 v5, {x}, v4
        v_lshrrev_b32 v5, 16, v5
        v_mul_u32_u24 v5, 40, v5
        v_sub_u32 v6, v4, v5
        v_mov_b32 v4, v6
        v_add_u32 v7, 4, v6
        v_cmp_le_u32 vcc, 16, v6
        s_nop 1
        v_cndmask_b32 v4, v4, v7, vcc
        v_subrev_u32 v7, 16, v6
        v_cmp_le_u32 vcc, 32, v6
        s_nop 1
        v_cndmask_b32 v4, v4, v7, vcc
        v_cmp_le_u32 vcc, 36, v6
        s_nop 1
        v_cndmask_b32 v4, v4, v6, vcc
        v_add_u32 v4, v5, v4
        {np_}:
        v_mul_lo_u32 v4, v4, {pitch}
        v_and_b32 v5, 7, v0
        v_lshl_add_u32 v{vo+p}, v5, 4, v4
        s_lshl_b32 {x}, {cg}, 7
        s_add_u32 m0, {s('c0')}, {ldsoff + p*1024}
        s_nop 0
        buffer_load_dwordx4 v{vo+p}, s[{srd}:{srd+3}], {x} offen lds
        """)

def emit_unit_A_out(a, dst, csp, ldsoff):
    a.e(f's_add_u32 {s("t1")}, {s("c0")}, {ldsoff}\nv_add_u32 v4, {s("t1")}, v20')
    for i in range(4):
        a.e(f'ds_read_b64_tr_b16 {vr(24+4*i,2)}, v4 offset:{i*32}')
        a.e(f'ds_read_b64_tr_b16 {vr(26+4*i,2)}, v4 offset:{i*32 + 512}')
    a.e('s_waitcnt lgkmcnt(0)')
    for i in range(4):
        a.e(f'buffer_store_dwordx4 {vr(24+4*i,4)}, v1, {s("WS",4)}, s{dst+i} offen {SC1}')
    nc = a.newlabel('Unc')
    a.e(f's_cmp_eq_u32 s{csp}, -1\ns_cbranch_scc1 {nc}')
    a.e(f's_mov_b32 {s("t2")}, 0x3f803f80')
    for i in range(4):
        a.e(f'v_mov_b32 v{40+i}, 0')
    for r_ in range(4):
        for i in range(4):
            a.e(f'v_dot2_f32_bf16 v{40+i}, v{24+4*i+r_}, {s("t2")}, v{40+i}')
    a.e('s_nop 3')
    for i in range(4):
        a.e(f"""
        v_mov_b32 v5, v{40+i}
        s_nop 1
        v_permlane16_swap_b32 v{40+i}, v5
        s_nop 1
        v_add_f32 v{40+i}, v{40+i}, v5
        v_mov_b32 v5, v{40+i}
        s_nop 1
        v_permlane32_swap_b32 v{40+i}, v5
        s_nop 1
        v_add_f32 v{40+i}, v{40+i}, v5
        """)
    a.e(f"""
    v_cmp_eq_u32 vcc, 1, v3
    s_nop 1
    v_cndmask_b32 v40, v40, v41, vcc
    v_cmp_eq_u32 vcc, 2, v3
    s_nop 1
    v_cndmask_b32 v40, v40, v42, vcc
    v_cmp_eq_u32 vcc, 3, v3
    s_nop 1
    v_cndmask_b32 v40, v40, v43, vcc
    v_lshlrev_b32 v5, 2, v0
    buffer_store_dword v40, v5, {s("WS",4)}, s{csp} offen {SC1}
    {nc}:
    """)

def prep_common(a, scratch_base, per_wave):
    a.e(f"""
    s_load_dwordx2 s[76:77], s[0:1], 16
    s_load_dwordx4 s[68:71], s[0:1], 32
    s_load_dwordx2 s[82:83], s[0:1], 48
    s_mul_i32 {s('c0')}, {s('lw')}, {per_wave}
    s_add_u32 {s('c0')}, {s('c0')}, {scratch_base}
    v_bfe_u32 v4, v0, 2, 2
    v_lshl_add_u32 v4, v3, 3, v4
    v_lshlrev_b32 v4, 7, v4
    v_and_b32 v5, 3, v0
    v_lshl_add_u32 v20, v5, 3, v4
    s_waitcnt lgkmcnt(0)
    s_mov_b32 s78, s68
    s_mov_b32 s79, s69
    s_mov_b32 s80, s70
    s_mov_b32 s81, s71
    """)

def prep_A2(a, n):
    l1 = a.newlabel('Up1'); l2 = a.newlabel('Up2'); l3 = a.newlabel('Up3'); l4 = a.newlabel('Up4')
    a.e(f's_cmp_lt_u32 s73, 1640\ns_cbranch_scc0 {l1}')
    emit_unit_A(a, 's73', 84, 88, 74, 8, 0)
    a.label(l1)
    if n == 2:
        a.e(f's_cmp_lt_u32 s59, 1640\ns_cbranch_scc0 {l2}')
        emit_unit_A(a, 's59', 64, 68, 75, 12, 4096)
        a.label(l2)
    a.e('s_waitcnt vmcnt(0)')
    a.e(f's_cmp_lt_u32 s73, 1640\ns_cbranch_scc0 {l3}')
    emit_unit_A_out(a, 88, 74, 0)
    a.label(l3)
    if n == 2:
        a.e(f's_cmp_lt_u32 s59, 1640\ns_cbranch_scc0 {l4}')
        emit_unit_A_out(a, 68, 75, 4096)
        a.label(l4)

def prep_B(a):
    sk = a.newlabel('Ub')
    a.e(f"""
    s_cmp_lt_u32 s92, 640
    s_cbranch_scc0 {sk}
    s_lshr_b32 s93, s92, 5
    s_and_b32 s94, s92, 31
    s_mul_i32 s95, s94, 40
    s_and_b32 s58, s95, 15
    s_andn2_b32 s95, s95, 15
    s_mul_i32 s96, s93, {32*3840}
    s_add_u32 s96, s96, s95
    v_lshrrev_b32 v4, 2, v0
    v_mul_u32_u24 v4, 3840, v4
    v_and_b32 v5, 3, v0
    v_lshl_add_u32 v16, v5, 4, v4
    s_mul_i32 s57, s94, 81920
    s_lshl_b32 s98, s93, 12
    s_add_u32 s57, s57, s98
    s_add_u32 s57, s57, {WQ_P}
    """)
    for part in range(3):
        for p in range(2):
            a.e(f"""
            s_add_u32 m0, {s('c0')}, {part*2048 + p*1024}
            s_add_u32 s98, s96, {part*1280 + p*16*3840}
            buffer_load_dwordx4 v16, {s('WQKV',4)}, s98 offen lds
            """)
    a.e(f"""
    s_waitcnt vmcnt(0)
    v_bfe_u32 v4, v0, 2, 2
    v_lshl_add_u32 v6, v3, 3, v4
    v_lshlrev_b32 v6, 6, v6
    s_add_u32 s97, {s('c0')}, s58
    v_add_u32 v6, s97, v6
    v_and_b32 v5, 3, v0
    v_lshl_add_u32 v7, v5, 3, v6
    v_min_u32 v5, 2, v5
    v_lshl_add_u32 v6, v5, 11, v6
    ds_read_b64_tr_b16 v[24:25], v7
    ds_read_b64_tr_b16 v[26:27], v7 offset:256
    ds_read_b64_tr_b16 v[28:29], v7 offset:2048
    ds_read_b64_tr_b16 v[30:31], v7 offset:2304
    ds_read_b64_tr_b16 v[32:33], v7 offset:4096
    ds_read_b64_tr_b16 v[34:35], v7 offset:4352
    ds_read_b64_tr_b16 v[36:37], v6 offset:32
    ds_read_b64_tr_b16 v[38:39], v6 offset:288
    s_waitcnt lgkmcnt(0)
    buffer_store_dwordx4 v[24:27], v1, {s('WS',4)}, s57 offen {SC1}
    buffer_store_dwordx4 v[28:31], v1, {s('WS',4)}, s57 offen offset:1024 {SC1}
    buffer_store_dwordx4 v[32:35], v1, {s('WS',4)}, s57 offen offset:2048 {SC1}
    buffer_store_dwordx4 v[36:39], v1, {s('WS',4)}, s57 offen offset:3072 {SC1}
    s_nop 1
    {sk}:
    """)

def emit_prep0(a):
    a.c('---- prep 0 (wo)')
    sk = a.newlabel('Up0')
    a.e(f"""
    s_cmp_lg_u32 {s('lw')}, 0
    s_cbranch_scc1 {sk}
    s_cmp_lt_u32 s2, 200
    s_cbranch_scc0 {sk}
    """)
    prep_common(a, 53248 + 2*32768, 8192)
    a.e('s_add_u32 s73, s2, 1440')
    prep_A2(a, 1)
    a.label(sk)

def emit_stats0(a):
    a.c('---- stats0')
    sk = a.newlabel('Ls0')
    a.e(f"""
    s_cmp_lg_u32 {s('lw')}, 1
    s_cbranch_scc1 {sk}
    s_lshl_b32 {s('t1')}, {s('blk')}, 5
    s_add_u32 {s('t1')}, {s('t1')}, {s('head')}
    s_mul_i32 {s('t1')}, {s('t1')}, {8*1280}
    v_lshrrev_b32 v4, 3, v0
    v_mul_u32_u24 v4, 1280, v4
    v_and_b32 v5, 7, v0
    v_mul_u32_u24 v6, 160, v5
    v_add_u32 v4, v4, v6
    """)
    for i in range(10):
        a.e(f'buffer_load_dwordx4 {vr(24+4*i,4)}, v4, {s("XIN",4)}, {s("t1")} offen offset:{16*i}')
    a.e(f"""
    v_mov_b32 v8, 0
    v_mov_b32 v9, 0
    s_mov_b32 {s('t2')}, 0x3f803f80
    s_waitcnt vmcnt(0)
    """)
    for i in range(40):
        a.e(f'v_dot2_f32_bf16 v8, v{24+i}, {s("t2")}, v8')
        a.e(f'v_dot2_f32_bf16 v9, v{24+i}, v{24+i}, v9')
    a.e('s_nop 4')
    for mod in ('quad_perm:[1,0,3,2]', 'quad_perm:[2,3,0,1]', 'row_half_mirror'):
        a.e(f"""
        v_add_f32_dpp v10, v8, v8 {mod}
        v_add_f32_dpp v11, v9, v9 {mod}
        s_nop 1
        v_mov_b32 v8, v10
        v_mov_b32 v9, v11
        s_nop 1
        """)
    a.e(f"""
    v_cmp_eq_u32 vcc, 0, v5
    s_nop 1
    v_cndmask_b32 v8, 0, v8, vcc
    v_cndmask_b32 v9, 0, v9, vcc
    s_lshl_b32 {s('t1')}, {s('blk')}, 4
    s_lshr_b32 {s('t2')}, {s('head')}, 1
    s_add_u32 {s('t1')}, {s('t1')}, {s('t2')}
    s_lshl_b32 {s('t1')}, {s('t1')}, 10
    s_and_b32 {s('t2')}, {s('head')}, 1
    s_lshl_b32 {s('t2')}, {s('t2')}, 6
    s_add_u32 {s('t1')}, {s('t1')}, {s('t2')}
    s_add_u32 {s('t1')}, {s('t1')}, {ST0}
    v_lshrrev_b32 v4, 3, v0
    v_lshlrev_b32 v4, 3, v4
    v_lshl_add_u32 v4, v5, 7, v4
    buffer_store_dwordx2 v[8:9], v4, {s('WS',4)}, {s('t1')} offen {SC1}
    s_waitcnt vmcnt(0)
    s_lshl_b32 {s('t1')}, {s('blk')}, 7
    s_lshl_b32 {s('t2')}, {s('head')}, 2
    s_add_u32 {s('t1')}, {s('t1')}, {s('t2')}
    s_add_u32 {s('t1')}, {s('t1')}, {FLAGS + 90112}
    v_mov_b32 v4, {s('t1')}
    v_mov_b32 v5, {s('tag')}
    s_mov_b64 exec, 1
    buffer_store_dword v5, v4, {s('WS',4)}, 0 offen sc1
    s_mov_b64 exec, -1
    {sk}:
    """)

def emit_warm(a):
    a.c('---- warm-up touch')
    sk = a.newlabel('Lwm')
    a.e(f"""
    s_cmp_lt_u32 {s('lw')}, 2
    s_cbranch_scc1 {sk}
    s_load_dwordx4 s[68:71], s[0:1], 32
    s_load_dwordx2 s[82:83], s[0:1], 48
    s_lshl_b32 s73, s2, 1
    s_add_u32 s73, s73, {s('lw')}
    s_sub_u32 s73, s73, 2
    s_lshl_b32 s73, s73, 12
    s_mov_b32 s86, 1966080
    s_mov_b32 s87, 0x20000
    s_waitcnt lgkmcnt(0)
    """)
    for m, (lo, hi) in enumerate(((68, 69), (70, 71), (82, 83))):
        a.e(f's_mov_b32 s84, s{lo}\ns_mov_b32 s85, s{hi}')
        for i in range(4):
            o = f' offset:{i*1024}' if i else ''
            a.e(f'buffer_load_dwordx4 {vr(196+(m*4+i)*4,4)}, v1, s[84:87], s73 offen{o}')
    a.label(sk)

def emit_prep1(a):
    a.c('---- prep 1 (wgu)')
    prep_common(a, 4096, 8192)
    a.e(f"""
    s_lshl_b32 s73, s2, 1
    s_add_u32 s73, s73, {s('wave')}
    s_sub_u32 s73, s73, 2
    s_lshl_b32 s73, s73, 1
    s_add_u32 s59, s73, 1
    s_cmp_lt_u32 s73, 960
    s_cselect_b32 s73, s73, 2000
    s_cmp_lt_u32 s59, 960
    s_cselect_b32 s59, s59, 2000
    """)
    prep_A2(a, 2)

def emit_prep2(a):
    a.c('---- prep 2 (wd)')
    prep_common(a, 135168, 7168)
    a.e(f"""
    s_lshl_b32 s73, s2, 1
    s_add_u32 s73, s73, {s('lw')}
    s_add_u32 s73, s73, 960
    s_cmp_lt_u32 s73, 1440
    s_cselect_b32 s73, s73, 2000
    s_cmp_lt_u32 {s('lw')}, 2
    s_cselect_b32 s73, s73, 2000
    """)
    prep_A2(a, 1)

def emit_prep3(a):
    a.c('---- prep 3 (wq)')
    a.e(f"""
    s_mov_b32 {s('c0')}, 151552
    s_cmp_eq_u32 {s('lw')}, 1
    s_cselect_b32 {s('c0')}, 157696, {s('c0')}
    s_cmp_eq_u32 {s('lw')}, 2
    s_cselect_b32 {s('c0')}, 77824, {s('c0')}
    s_mul_i32 s92, s2, 3
    s_add_u32 s92, s92, {s('lw')}
    s_cmp_lt_u32 {s('lw')}, 3
    s_cselect_b32 s92, s92, 2000
    """)
    prep_B(a)


def emit_phase0(a, role, L=None):
    a.c('---- phase 0')
    if role == 'L':
        issue_X(a, L, 'P1R', 0)
    a.e(f"""
    s_load_dwordx2 s[76:77], s[0:1], 16
    s_load_dwordx4 s[68:71], s[0:1], 32
    s_load_dwordx2 s[82:83], s[0:1], 48
    s_lshl_b32 s73, s2, 3
    s_add_u32 s73, s73, {s('wave')}              ; W8
    s_lshl_b32 {s('c0')}, {s('wave')}, 12
    s_add_u32 {s('c0')}, {s('c0')}, 4096          ; A scratch
    v_bfe_u32 v4, v0, 2, 2
    v_lshl_add_u32 v4, v3, 3, v4
    v_lshlrev_b32 v4, 7, v4
    v_and_b32 v5, 3, v0
    v_lshl_add_u32 v20, v5, 3, v4
    s_waitcnt lgkmcnt(0)
    s_mov_b32 s78, s68
    s_mov_b32 s79, s69
    s_mov_b32 s80, s70
    s_mov_b32 s81, s71
    """)
    l1 = a.newlabel('P01'); l2 = a.newlabel('P02'); l3 = a.newlabel('P03'); l4 = a.newlabel('P04')
    a.e(f's_cmp_lt_u32 s73, 1640\ns_cbranch_scc0 {l1}')
    emit_unit_A(a, 's73', 84, 88, 74, 8, 0)
    a.label(l1)
    a.e(f"""
    s_cmp_ge_u32 s73, 1408
    s_cbranch_scc0 {l2}
    s_sub_u32 s92, s73, 1408
    s_lshr_b32 s93, s92, 5
    s_and_b32 s94, s92, 31
    s_mul_i32 s95, s94, 40
    s_and_b32 s58, s95, 15
    s_andn2_b32 s95, s95, 15
    s_mul_i32 s96, s93, {32*3840}
    s_add_u32 s96, s96, s95
    v_lshrrev_b32 v4, 2, v0
    v_mul_u32_u24 v4, 3840, v4
    v_and_b32 v5, 3, v0
    v_lshl_add_u32 v16, v5, 4, v4
    s_mul_i32 s57, s94, 81920
    s_lshl_b32 s98, s93, 12
    s_add_u32 s57, s57, s98
    s_add_u32 s57, s57, {WQ_P}
    s_mul_i32 s56, {s('wave')}, 6144
    s_add_u32 s56, s56, 86016
    """)
    for part in range(3):
        for p in range(2):
            a.e(f"""
            s_add_u32 m0, s56, {part*2048 + p*1024}
            s_add_u32 s98, s96, {part*1280 + p*16*3840}
            buffer_load_dwordx4 v16, {s('WQKV',4)}, s98 offen lds
            """)
    a.label(l2)
    ls1 = a.newlabel('P0s1'); ls2 = a.newlabel('P0s2')
    a.e(f"""
    s_cmp_lg_u32 {s('wave')}, 7
    s_cbranch_scc1 {ls1}
    s_lshl_b32 {s('t1')}, {s('blk')}, 5
    s_add_u32 {s('t1')}, {s('t1')}, {s('head')}
    s_mul_i32 {s('t1')}, {s('t1')}, {8*1280}
    v_lshrrev_b32 v4, 3, v0
    v_mul_u32_u24 v4, 1280, v4
    v_and_b32 v5, 7, v0
    v_mul_u32_u24 v6, 160, v5
    v_add_u32 v4, v4, v6
    """)
    for i in range(10):
        a.e(f'buffer_load_dwordx4 {vr(48+4*i,4)}, v4, {s("XIN",4)}, {s("t1")} offen offset:{16*i}')
    a.label(ls1)
    a.e('s_waitcnt vmcnt(0)')
    a.e(f's_cmp_lt_u32 s73, 1640\ns_cbranch_scc0 {l3}')
    emit_unit_A_out(a, 88, 74, 0)
    a.label(l3)
    a.e(f"""
    s_cmp_ge_u32 s73, 1408
    s_cbranch_scc0 {l4}
    v_bfe_u32 v4, v0, 2, 2
    v_lshl_add_u32 v6, v3, 3, v4
    v_lshlrev_b32 v6, 6, v6
    s_add_u32 s56, s56, s58
    v_add_u32 v6, s56, v6
    v_and_b32 v5, 3, v0
    v_lshl_add_u32 v7, v5, 3, v6
    v_min_u32 v5, 2, v5
    v_lshl_add_u32 v6, v5, 11, v6
    ds_read_b64_tr_b16 v[24:25], v7
    ds_read_b64_tr_b16 v[26:27], v7 offset:256
    ds_read_b64_tr_b16 v[28:29], v7 offset:2048
    ds_read_b64_tr_b16 v[30:31], v7 offset:2304
    ds_read_b64_tr_b16 v[32:33], v7 offset:4096
    ds_read_b64_tr_b16 v[34:35], v7 offset:4352
    ds_read_b64_tr_b16 v[36:37], v6 offset:32
    ds_read_b64_tr_b16 v[38:39], v6 offset:288
    s_waitcnt lgkmcnt(0)
    buffer_store_dwordx4 v[24:27], v1, {s('WS',4)}, s57 offen {SC1}
    buffer_store_dwordx4 v[28:31], v1, {s('WS',4)}, s57 offen offset:1024 {SC1}
    buffer_store_dwordx4 v[32:35], v1, {s('WS',4)}, s57 offen offset:2048 {SC1}
    buffer_store_dwordx4 v[36:39], v1, {s('WS',4)}, s57 offen offset:3072 {SC1}
    {l4}:
    s_cmp_lg_u32 {s('wave')}, 7
    s_cbranch_scc1 {ls2}
    v_mov_b32 v8, 0
    v_mov_b32 v9, 0
    s_mov_b32 {s('t2')}, 0x3f803f80
    """)
    for i in range(40):
        a.e(f'v_dot2_f32_bf16 v8, v{48+i}, {s("t2")}, v8')
        a.e(f'v_dot2_f32_bf16 v9, v{48+i}, v{48+i}, v9')
    a.e('s_nop 4')
    for mod in ('quad_perm:[1,0,3,2]', 'quad_perm:[2,3,0,1]', 'row_half_mirror'):
        a.e(f"""
        v_add_f32_dpp v10, v8, v8 {mod}
        v_add_f32_dpp v11, v9, v9 {mod}
        s_nop 1
        v_mov_b32 v8, v10
        v_mov_b32 v9, v11
        s_nop 1
        """)
    a.e(f"""
    v_and_b32 v5, 7, v0
    v_cmp_eq_u32 vcc, 0, v5
    s_nop 1
    v_cndmask_b32 v8, 0, v8, vcc
    v_cndmask_b32 v9, 0, v9, vcc
    s_lshl_b32 {s('t1')}, {s('blk')}, 4
    s_lshr_b32 {s('t2')}, {s('head')}, 1
    s_add_u32 {s('t1')}, {s('t1')}, {s('t2')}
    s_lshl_b32 {s('t1')}, {s('t1')}, 10
    s_and_b32 {s('t2')}, {s('head')}, 1
    s_lshl_b32 {s('t2')}, {s('t2')}, 6
    s_add_u32 {s('t1')}, {s('t1')}, {s('t2')}
    s_add_u32 {s('t1')}, {s('t1')}, {ST0}
    v_lshrrev_b32 v4, 3, v0
    v_lshlrev_b32 v4, 3, v4
    v_lshl_add_u32 v4, v5, 7, v4
    buffer_store_dwordx2 v[8:9], v4, {s('WS',4)}, {s('t1')} offen {SC1}
    {ls2}:
    s_waitcnt vmcnt(0) lgkmcnt(0)
    s_barrier
    """)
    a.stamp(role, 'ph0 drained')
    if role == 'L':
        sk = a.newlabel('P0k'); lp = a.newlabel('P0p')
        a.e(f"""
        s_cmp_lg_u32 {s('lw')}, 0
        s_cbranch_scc1 {sk}
        s_lshl_b32 {s('t0')}, s2, 2
        s_add_u32 {s('t0')}, {s('t0')}, {FLAGS + 90112}
        v_mov_b32 v4, {s('t0')}
        v_mov_b32 v5, {s('tag')}
        s_mov_b64 exec, 1
        buffer_store_dword v5, v4, {s('WS',4)}, 0 offen sc1
        s_mov_b64 exec, -1
        v_add_u32 v4, {FLAGS + 90112}, v1
        {lp}:
        buffer_load_dwordx4 v[24:27], v4, {s('WS',4)}, 0 offen sc1
        s_waitcnt vmcnt(0)
        v_cmp_ne_u32 vcc, {s('tag')}, v24
        v_cmp_ne_u32 s[64:65], {s('tag')}, v25
        s_or_b64 vcc, vcc, s[64:65]
        v_cmp_ne_u32 s[64:65], {s('tag')}, v26
        s_or_b64 vcc, vcc, s[64:65]
        v_cmp_ne_u32 s[64:65], {s('tag')}, v27
        s_or_b64 vcc, vcc, s[64:65]
        s_cmp_eq_u64 vcc, 0
        s_cbranch_scc0 {lp}
        {sk}:
        """)
        L.drained()
    a.e('s_barrier')
    a.stamp(role, 'ph0 done')

def emit_allprep_poll(a, ph=0):
    sk = a.newlabel('Lap'); lp = a.newlabel('Lapp')
    a.e(f"""
    s_cmp_lg_u32 {s('layer')}, 0
    s_cbranch_scc1 {sk}
    v_lshrrev_b32 v4, 2, v0
    v_lshlrev_b32 v4, 9, v4
    v_and_b32 v5, 3, v0
    v_lshl_add_u32 v4, v5, 4, v4
    v_add_u32 v4, {FLAGS + ph*8192}, v4
    {lp}:
    buffer_load_dwordx4 v[212:215], v4, {s('WS',4)}, 0 offen sc1
    s_waitcnt vmcnt(0)
    v_cmp_ne_u32 vcc, {s('tag')}, v212
    v_cmp_ne_u32 s[64:65], {s('tag')}, v213
    s_or_b64 vcc, vcc, s[64:65]
    v_cmp_ne_u32 s[64:65], {s('tag')}, v214
    s_or_b64 vcc, vcc, s[64:65]
    v_cmp_ne_u32 s[64:65], {s('tag')}, v215
    s_or_b64 vcc, vcc, s[64:65]
    s_cmp_eq_u64 vcc, 0
    s_cbranch_scc0 {lp}
    {sk}:
    """)

def gen_main(a, stop_after=None, name='main_kernel'):
    a.begin_kernel(name)
    a.e(f"""
    s_cmp_ge_u32 s2, 256
    s_cbranch_scc1 LM_exit
    s_load_dwordx4 s[4:7], s[0:1], 0
    s_load_dwordx2 s[34:35], s[0:1], 56
    s_load_dwordx2 s[36:37], s[0:1], 72
    v_lshrrev_b32 v1, 6, v0
    s_nop 0
    v_readfirstlane_b32 {s('wave')}, v1
    v_and_b32 v0, 63, v0
    v_lshlrev_b32 v1, 4, v0
    v_and_b32 v2, 15, v0
    v_lshrrev_b32 v3, 4, v0
    s_waitcnt lgkmcnt(0)
    s_mov_b32 s8, s4
    s_mov_b32 s9, s5
    s_mov_b32 s10, 2621440
    s_mov_b32 s11, 0x20000
    s_mov_b32 s12, s6
    s_mov_b32 s13, s7
    s_mov_b32 s14, 2457600
    s_mov_b32 s15, 0x20000
    s_mov_b32 s16, s36
    s_mov_b32 s17, s37
    s_mov_b32 s18, {WS_BYTES}
    s_mov_b32 s19, 0x20000
    s_mov_b32 s20, s34
    s_mov_b32 s21, s35
    s_mov_b32 s22, 2621440
    s_mov_b32 s23, 0x20000
    s_mov_b32 s24, s4
    s_mov_b32 s25, s5
    s_mov_b32 s26, 2621440
    s_mov_b32 s27, 0x20000
    s_and_b32 {s('t0')}, s2, 7
    s_lshr_b32 {s('t1')}, s2, 3
    s_lshl_b32 {s('t2')}, {s('t0')}, 1
    s_lshr_b32 {s('t3')}, {s('t1')}, 4
    s_add_u32 {s('r')}, {s('t2')}, {s('t3')}
    s_and_b32 {s('j')}, {s('t1')}, 15
    s_mov_b32 {s('blk')}, {s('t0')}
    s_mov_b32 {s('head')}, {s('t1')}
    s_and_b32 {s('t2')}, {s('j')}, 1
    s_lshl_b32 {s('rb64')}, {s('r')}, 1
    s_add_u32 {s('rb64')}, {s('rb64')}, {s('t2')}
    s_lshr_b32 {s('cb')}, {s('j')}, 1
    s_and_b32 {s('lw')}, {s('wave')}, 3
    s_mov_b32 {s('layer')}, 0
    s_mov_b32 {s('lb')}, {LB0}
    s_lshl_b32 {s('flb')}, {s('r')}, 9
    s_add_u32 {s('flb')}, {s('flb')}, {FLAGS}
    s_mov_b32 s72, 0
    v_mov_b32 v245, 0
    s_mov_b32 {s('tag')}, 1
    """)
    a.stamp('C', 'start'); a.stampnames['L'].append('start')
    a.e(f"""
    s_cmp_ge_u32 {s('wave')}, 4
    s_cbranch_scc1 LM_loader
    """)
    a.e(f"""
    s_lshl_b32 {s('t0')}, {s('rb64')}, 2
    s_add_u32 {s('t0')}, {s('t0')}, {s('lw')}
    s_mul_i32 {s('t0')}, {s('t0')}, {16*1280}
    s_mul_i32 {s('t1')}, {s('cb')}, 160
    s_add_u32 {s('t0')}, {s('t0')}, {s('t1')}
    v_mul_u32_u24 v4, 1280, v2
    v_lshl_add_u32 v4, v3, 3, v4
    """)
    for ct in range(5):
        a.e(f'buffer_load_dwordx2 {vr(RESID+2*ct,2)}, v4, {s("XIN",4)}, {s("t0")} offen offset:{32*ct}')
    a.e(f"""
    v_mov_b32 v4, {M_SIG}
    v_mov_b32 v6, 0
    v_mov_b32 v7, 0
    ds_write_b64 v4, v[6:7]
    """)
    a.e('s_waitcnt lgkmcnt(0)')
    m = compute_gemm(a, 'P1R'); epilogue_P1(a, m)
    a.stamp('C', 'P1 epi done')
    nC0 = len(a.stampnames['C'])
    a.label('LC_common')
    def cfin(ph_idx):
        a.stamp('C', 'stores issued')
        a.e('s_waitcnt vmcnt(0)')
        a.stamp('C', 'drained')
        if ph_idx == 4:
            a.e(f's_cmp_eq_u32 {s("layer")}, 1\ns_cbranch_scc1 LM_fin')
        a.e('s_barrier\ns_barrier')
    a.e('s_barrier')
    attention_phase(a, 'C')
    a.e('s_barrier\ns_barrier')
    m = compute_gemm(a, 'P3'); epilogue_P35(a, m, 'P3'); cfin(2)
    m = compute_gemm(a, 'P4'); epilogue_P4(a, m); cfin(3)
    m = compute_gemm(a, 'P5'); epilogue_P35(a, m, 'P5'); cfin(4)
    a.e(f"""
    s_mov_b32 {s('layer')}, 1
    s_add_u32 {s('lb')}, {s('lb')}, {LSTRIDE}
    s_add_u32 {s('flb')}, {s('flb')}, {5*8192}
    """)
    nC1 = len(a.stampnames['C'])
    m = compute_gemm(a, 'P1'); epilogue_P1(a, m)
    a.stamp('C', 'P1 epi done')
    a.e('s_branch LC_common')
    a.label('LM_fin')
    a.e('s_branch LM_done')
    a.c_struct = (nC0, nC1)
    a.label('LM_loader')
    L = Loader(a)
    setup_W(a, 'P1R')
    setup_X(a, 'P1R')
    loader_gemm(a, L, 'P1R', first=True)
    nL0 = len(a.stampnames['L'])
    a.label('LL_afterP1')
    L = Loader(a)
    def prefetch(nxt):
        setup_W(a, nxt)
        for t in range(min(GE[nxt]['CW'], GE[nxt]['T'])):
            issue_W(a, L, nxt, t)
    a.e('s_barrier')
    attention_phase(a, 'L', prefetch_cb=lambda: prefetch('P3'))
    L.drained()
    emit_sync(a, L, 1, 'pair', pre=lambda: setup_X(a, 'P3'))
    loader_gemm(a, L, 'P3')
    prefetch('P4')
    emit_sync(a, L, 2, 'own', pre=lambda: setup_X(a, 'P4'))
    loader_gemm(a, L, 'P4')
    prefetch('P5')
    emit_sync(a, L, 3, 'own', pre=lambda: setup_X(a, 'P5'))
    loader_gemm(a, L, 'P5')
    a.e(f's_cmp_eq_u32 {s("layer")}, 1\ns_cbranch_scc1 LM_done')
    prefetch('P1')
    emit_sync(a, L, 4, 'pair', pre=lambda: setup_X(a, 'P1'))
    a.e(f"""
    s_mov_b32 {s('layer')}, 1
    s_add_u32 {s('lb')}, {s('lb')}, {LSTRIDE}
    s_add_u32 {s('flb')}, {s('flb')}, {5*8192}
    """)
    nL1 = len(a.stampnames['L'])
    loader_gemm(a, L, 'P1')
    a.e('s_branch LL_afterP1')
    a.l_struct = (nL0, nL1)
    a.label('LM_done')
    if a.stamps:
        a.stamp('X', 'end')
        a.e(f"""
        s_lshl_b32 {s('t0')}, s2, 3
        s_add_u32 {s('t0')}, {s('t0')}, {s('wave')}
        s_lshl_b32 {s('t0')}, {s('t0')}, 8
        s_add_u32 {s('t0')}, {s('t0')}, {TSB}
        v_lshlrev_b32 v4, 2, v0
        buffer_store_dword v245, v4, {s('WS',4)}, {s('t0')} offen
        """)
    a.e('LM_exit:\ns_endpgm')
    a.end_kernel(name, 256, 102, 256)
    a.launch(name, (256, 1, 1), (512, 1, 1), LDS_TOTAL)

if __name__ == '__main__':
    out = sys.argv[2] if len(sys.argv) > 2 else 'main.s'
    a = Gen()
    a.stampnames['X'] = []
    if len(sys.argv) > 3 and sys.argv[3] == 'stamps':
        a.stamps = True
    if len(sys.argv) > 4:
        DBG.update(sys.argv[4].split(','))
    gen_prep(a)
    gen_main(a)
    open(out, 'w').write(a.text())
    if a.stamps:
        C = a.stampnames['C']; Ln = a.stampnames['L']
        nC0, nC1 = a.c_struct
        cn = C[:nC1] + C[nC1:] + C[nC0:nC1] + ['end']
        nL0, nL1 = a.l_struct
        mid = Ln[nL0:nL1]
        ln = Ln[:nL1] + Ln[nL1:] + mid[:-1] + ['end']
        json.dump({'C': cn, 'L': ln}, open('stampnames.json', 'w'))
    print('lines', len(a.lines))
```
